```python
import torch

def _softmax(x, axis=-1):
    return torch.softmax(x, dim=axis)
def _gelu(x):
    return torch.nn.functional.gelu(x, approximate="tanh")
def _silu(x):
    return torch.nn.functional.silu(x)
def _sigmoid(x):
    return torch.sigmoid(x)
def _layernorm(x, axis=-1, eps=1e-5):
    m = x.mean(dim=axis, keepdim=True)
    v = x.var(dim=axis, keepdim=True, unbiased=False)
    return (x - m) / torch.sqrt(v + eps)
def _scatter_add(tgt, idx, src, axis=0):
    return tgt.clone().index_add_(axis, idx, src)
def _segment_sum(src, seg, n):
    out = torch.zeros((n,) + src.shape[1:], dtype=src.dtype)
    return out.index_add_(0, seg, src)
def _pad(x, pw):
    flat = tuple(v for pair in reversed(pw) for v in pair)
    return torch.nn.functional.pad(x, flat)

kernel_name = 'sequential_preLN__sliding_local_dilated__glu_gated_geglu__prompt'

def setup_inputs():

    _w = (lambda a: (lambda t: t.to(torch.bfloat16) if t.is_floating_point() else t)(torch.as_tensor(a)))
    def _A_setup():
        B, S, D = 1, 2048, 512
        return {
            "x": _w((lambda *s: torch.randn(*s, dtype=torch.bfloat16) * 0.05)(B, S, D)),
            "wqkv": _w((lambda *s: torch.randn(*s, dtype=torch.bfloat16) * 0.05)(D, 3 * D)),
            "wo": _w((lambda *s: torch.randn(*s, dtype=torch.bfloat16) * 0.05)(D, D)),
        }
    _A_in = _A_setup()

    def _B_setup():
        B, S, Dm, Df = 1, 2048, 512, 1792
        return {
            "x": _w((lambda *s: torch.randn(*s, dtype=torch.bfloat16) * 0.05)(B, S, Dm)),
            "w_gate": _w((lambda *s: torch.randn(*s, dtype=torch.bfloat16) * 0.8)(Dm, Df) * (Dm ** -0.5)),
            "w_up": _w((lambda *s: torch.randn(*s, dtype=torch.bfloat16) * 0.8)(Dm, Df) * (Dm ** -0.5)),
            "w_down": _w((lambda *s: torch.randn(*s, dtype=torch.bfloat16) * 0.8)(Df, Dm) * (Df ** -0.5)),
        }
    _B_in = _B_setup()

    return {
        "A_x": _A_in["x"],
        "A_wqkv": _A_in["wqkv"],
        "A_wo": _A_in["wo"],
        "B_x": _B_in["x"],
        "B_w_gate": _B_in["w_gate"],
        "B_w_up": _B_in["w_up"],
        "B_w_down": _B_in["w_down"],
    }

def reference(A_x, A_wqkv, A_wo, B_x, B_w_gate, B_w_up, B_w_down):
    def _A_ref(x, wqkv, wo):
        B, S, D = x.shape
        H = 32; Dh = D // H
        W, dil = 8, 2
        qkv = (lambda x, *d: x.permute(*d))((x @ wqkv).reshape(B, S, 3, H, Dh), 2, 0, 3, 1, 4)
        q, k, v = qkv[0], qkv[1], qkv[2]
        scale = Dh ** -0.5
        pos = torch.arange(S)
        off = torch.arange(W) * dil
        idx = pos[:, None] - off[None, :]
        mask = idx >= 0
        idx_c = torch.where(mask, idx, 0).reshape(-1)
        kg = k[:, :, idx_c, :].reshape(B, H, S, W, Dh)
        vg = v[:, :, idx_c, :].reshape(B, H, S, W, Dh)
        logits = torch.einsum("bhsd,bhswd->bhsw", q, kg) * scale
        logits = torch.where(mask[None, None, :, :], logits, -1e9)
        attn = _softmax(logits, axis=-1)
        o = torch.einsum("bhsw,bhswd->bhsd", attn, vg)
        return (lambda x, *d: x.permute(*d))(o, 0, 2, 1, 3).reshape(B, S, D) @ wo

    def _B_ref(x, w_gate, w_up, w_down):
        g = torch.einsum("bsd,df->bsf", x, w_gate)
        u = torch.einsum("bsd,df->bsf", x, w_up)
        h = _gelu(g) * u
        return torch.einsum("bsf,fd->bsd", h, w_down)

    x = A_x
    h = x + _A_ref(_layernorm(x, axis=-1), A_wqkv, A_wo)
    h2 = h + _B_ref(_layernorm(h, axis=-1), B_w_gate, B_w_up, B_w_down)
    return h2
```

```python
import re

class Kern:
    def __init__(self, name):
        self.name = name
        self.lines = []
        self.uid = 0
    def e(self, s):
        for ln in s.strip("\n").split("\n"):
            ln = ln.strip()
            if ln: self.lines.append(ln)
    def lab(self, base):
        self.uid += 1
        return f"L_{self.name}_{base}_{self.uid}"

REG_RE = re.compile(r"\b([vsa])\[(\d+):(\d+)\]|\b([vsa])(\d+)\b|\b(vcc|exec|m0|scc)\b")
def regs_of(tok):
    out = set()
    for m in REG_RE.finditer(tok):
        if m.group(1):
            for i in range(int(m.group(2)), int(m.group(3))+1): out.add((m.group(1), i))
        elif m.group(4):
            out.add((m.group(4), int(m.group(5))))
        else:
            out.add((m.group(6), 0))
    return out

TRANS = ("v_exp_f32","v_log_f32","v_rcp_f32","v_rsq_f32","v_sqrt_f32","v_sin_f32","v_cos_f32")
class Ins:
    def __init__(self, text):
        self.text = text
        t = text.split(";")[0].strip()
        self.is_label = t.endswith(":")
        self.op = None; self.dst=set(); self.src=set(); self.kind=None; self.ws=0
        self.srcC=set(); self.srcAB=set(); self.passes=0; self.target=None; self.dpp=False
        if self.is_label or not t:
            self.label = t[:-1] if t else None
            return
        parts = t.split(None, 1)
        op = parts[0]; self.op = op
        rest = parts[1] if len(parts)>1 else ""
        ops = [o.strip() for o in re.split(r",(?![^\[]*\])", rest)] if rest else []
        self.ws = 1
        if op == "s_nop":
            self.ws = int(ops[0],0)+1; self.kind="nop"; return
        if op in ("s_waitcnt","s_barrier","s_endpgm","s_sleep","s_setprio"):
            self.kind="misc"; return
        if op.startswith("s_cbranch") or op=="s_branch":
            self.kind="branch"; self.target=ops[0]; return
        if op.startswith("v_mfma"):
            self.kind="mfma"
            self.dst=regs_of(ops[0]); self.srcAB=regs_of(ops[1])|regs_of(ops[2]); self.srcC=regs_of(ops[3])
            self.src=self.srcAB|self.srcC
            self.passes = 8 if "32x32x16" in op else 4
            return
        if op.startswith("buffer_store") or op.startswith("global_store") or op.startswith("ds_write"):
            self.kind = "ds" if op.startswith("ds_") else "vmem"
            for o in ops: self.src |= regs_of(o)
            self.store_data = regs_of(ops[0]) if op.startswith("buffer_store") else (regs_of(ops[1]))
            self.wide = ("x4" in op or "x3" in op) and self.kind=="vmem"
            return
        if op.startswith("buffer_load") or op.startswith("global_load"):
            self.kind="vmem"
            if " lds" in t or "_lds_" in op:
                for o in ops: self.src |= regs_of(o)
                self.src.add(("m0",0)); self.ldsdma=True
            else:
                self.dst=regs_of(ops[0])
                for o in ops[1:]: self.src |= regs_of(o)
            return
        if op.startswith("buffer_atomic") or op.startswith("global_atomic"):
            self.kind="vmem"
            for o in ops: self.src |= regs_of(o)
            if "sc0" in t: self.dst = regs_of(ops[0])
            return
        if op.startswith("buffer_"):
            self.kind="vmem"; return
        if op.startswith("ds_"):
            self.kind="ds"; self.dst=regs_of(ops[0])
            for o in ops[1:]: self.src |= regs_of(o)
            return
        if op.startswith("s_load") or op.startswith("s_memtime") or op.startswith("s_memrealtime"):
            self.kind="smem"; self.dst=regs_of(ops[0])
            for o in ops[1:]: self.src |= regs_of(o)
            return
        if op.startswith("s_cmp"):
            self.kind="salu"
            for o in ops: self.src |= regs_of(o)
            self.dst={("scc",0)}; return
        if op.startswith("s_"):
            self.kind="salu"; self.dst=regs_of(ops[0])
            for o in ops[1:]: self.src |= regs_of(o)
            if "saveexec" in op: self.dst.add(("exec",0))
            return
        if op.startswith("v_"):
            self.kind="valu"
            self.dpp = ("quad_perm" in t or "row_" in t or "_dpp" in op)
            if op.startswith("v_permlane"):
                self.dst=regs_of(ops[0])|regs_of(ops[1]); self.src=set(self.dst); self.permlane=True; return
            self.dst=regs_of(ops[0])
            for o in ops[1:]:
                self.src |= regs_of(o.split(" ")[0])
            if op.startswith("v_add_co") or op.startswith("v_addc_co") or op.startswith("v_sub_co"):
                self.dst |= regs_of(ops[1])
            if op.startswith("v_fmac") or op.startswith("v_dot2c"): self.src |= self.dst
            if op.startswith("v_cmpx"): self.dst.add(("exec",0))
            return
        raise ValueError("unknown op "+t)

def need(p, c):
    n = 0
    vd = {r for r in p.dst if r[0] in "va"}
    sd = {r for r in p.dst if r[0]=="s" or r[0]=="vcc"}
    if p.kind=="valu":
        isdot = p.op.startswith("v_dot")
        if c.kind=="mfma" and vd & c.src: n=max(n,3 if isdot else 2)
        if sd:
            if c.kind=="vmem" and sd & c.src: n=max(n,5)
            if c.kind=="valu" and sd & c.src: n=max(n,2)
            if c.kind=="valu" and (c.op.startswith("v_readlane") or c.op.startswith("v_writelane")) and sd & c.src: n=max(n,4)
            if c.kind=="salu" and sd & c.src: n=max(n,1)
            if c.kind=="smem" and sd & c.src: n=max(n,1)
        if ("exec",0) in p.dst:
            if c.kind in("valu","mfma"): n=max(n,5)
        if c.kind=="valu" and vd & c.src:
            if c.op.startswith("v_readlane") or c.op.startswith("v_readfirstlane"): n=max(n,1)
            if c.dpp: n=max(n,2)
            if getattr(c,"permlane",False): n=max(n,2)
            if re.sub(r"_e(32|64)$","",p.op) in TRANS and re.sub(r"_e(32|64)$","",c.op) not in TRANS: n=max(n,1)
        if isdot and c.kind in("valu","vmem","ds"):
            if c.op==p.op:
                pass
                ab = set()
                toks=[o.strip() for o in re.split(r",(?![^\[]*\])", c.text.split(";")[0].split(None,1)[1])]
                ab = regs_of(toks[1])|regs_of(toks[2])
                if vd & ab: n=max(n,3)
            elif vd & (c.src|c.dst): n=max(n,3)
    if p.kind=="mfma":
        full = {4:8, 8:12}[p.passes]
        if c.kind=="mfma":
            if vd & c.srcAB: n=max(n,full)
            if vd & c.srcC:
                if c.srcC==p.dst and c.passes==p.passes: pass
                else: n=max(n,{4:6,8:10}[p.passes])
            if (vd & c.dst) and not (c.dst==p.dst): n=max(n,{4:6,8:10}[p.passes])
        elif c.kind in("valu","vmem","ds"):
            if vd & (c.src|c.dst): n=max(n,full)
        if c.kind=="valu" and p.srcC & c.dst: n=max(n,{4:3,8:7}[p.passes])
    if p.kind=="salu" and ("m0",0) in p.dst:
        if getattr(c,"ldsdma",False): n=max(n,1)
    if p.kind=="vmem" and getattr(p,"wide",False):
        if c.kind=="valu" and p.store_data & c.dst: n=max(n,2)
        elif p.store_data & c.dst: n=max(n,1)
    if p.kind=="salu" and ("exec",0) in p.dst:
        pass
    return n

def fix_hazards(lines, verbose=False):
    MAXW=20
    inserted=0
    while True:
        ins=[Ins(l) for l in lines]
        lab={x.label:i for i,x in enumerate(ins) if x.is_label}
        preds=[[] for _ in ins]
        for i,x in enumerate(ins):
            if i+1<len(ins) and not (x.op in("s_branch","s_endpgm")):
                preds[i+1].append(i)
            if x.kind=="branch":
                preds[lab[x.target]].append(i)
        viol=None
        for ci,c in enumerate(ins):
            if c.is_label or c.op is None or c.kind in("nop","misc","branch"): continue
            stack=[(p,0) for p in preds[ci]]
            seen={}
            while stack:
                pi,d=stack.pop()
                if d>=MAXW: continue
                if pi in seen and seen[pi]<=d: continue
                seen[pi]=d
                p=ins[pi]
                if not p.is_label and p.op is not None:
                    r=need(p,c)
                    if r>d:
                        if viol is None or True:
                            viol=(ci,r-d,p.text,c.text); break
                nd=d+(p.ws if not p.is_label else 0)
                for q in preds[pi]: stack.append((q,nd))
            if viol: break
        if not viol: break
        ci,k,pt,ct=viol
        if verbose: print("hazard: +%d nop between [%s] and [%s]"%(k,pt,ct))
        lines.insert(ci, f"s_nop {k-1}")
        inserted+=1
    return lines

def kernel_text(k, nvgpr, nsgpr=102, accum=None):
    lines = fix_hazards(list(k.lines))
    body = "\n".join(("" if l.endswith(":") else "    ")+l for l in lines)
    if accum is None: accum = (nvgpr+3)//4*4
    txt = f""".text
.globl {k.name}
.p2align 8
.type {k.name},@function
{k.name}:
{body}
.section .rodata,"a"
.p2align 6
.amdhsa_kernel {k.name}
  .amdhsa_next_free_vgpr {nvgpr}
  .amdhsa_next_free_sgpr {nsgpr}
  .amdhsa_accum_offset {accum}
  .amdhsa_group_segment_fixed_size 0
  .amdhsa_kernarg_size 80
  .amdhsa_user_sgpr_count 2
  .amdhsa_user_sgpr_kernarg_segment_ptr 1
  .amdhsa_system_sgpr_workgroup_id_x 1
.end_amdhsa_kernel
"""
    return txt

class LQ:
    def __init__(self, k): self.k=k; self.q=[]
    def rd(self, tag, text):
        self.k.e(text); self.q.append(tag)
        assert len(self.q) <= 15, "too many LDS ops outstanding"
    def wait(self, tags):
        last = -1
        for i,t in enumerate(self.q):
            if t in tags: last = i
        if last < 0: return
        n = len(self.q) - 1 - last
        self.k.e(f"s_waitcnt lgkmcnt({n})")
        self.q = self.q[last+1:]
```

```python
from asmlib import *
import struct
ARG = dict(x=0, wqkv=8, wo=16, bx=24, wg=32, wu=40, wd=48, out=56, dbg=64, ws=72)
WS_O, WS_H, WS_HH = 0, 2<<20, 4<<20
def f2u(f): return struct.unpack("<I", struct.pack("<f", f))[0]
def srd(k, sd, tmp, size, add=0):
    if add:
        k.e(f"s_add_u32 s{sd}, s{tmp}, {add}")
        k.e(f"s_addc_u32 s{sd+1}, s{tmp+1}, 0")
    else:
        k.e(f"s_mov_b32 s{sd}, s{tmp}")
        k.e(f"s_mov_b32 s{sd+1}, s{tmp+1}")
    k.e(f"s_mov_b32 s{sd+2}, {size}")
    k.e(f"s_mov_b32 s{sd+3}, 0x00020000")

def round_bf16(k, v, tmp):
    k.e(f"v_cvt_pk_bf16_f32 v{tmp}, v{v}, v{v}")
    k.e(f"v_lshlrev_b32 v{v}, 16, v{tmp}")

def ln_stats(k, vs, vq, vm, vr, tmp):
    k.e(f"""
    v_mul_f32 v{vm}, {f2u(1/512)}, v{vs}
    v_mul_f32 v{vr}, {f2u(1/512)}, v{vq}
    v_fma_f32 v{vr}, -v{vm}, v{vm}, v{vr}
    v_max_f32 v{vr}, 0, v{vr}
    """)
    round_bf16(k, vm, tmp)
    round_bf16(k, vr, tmp)
    k.e(f"v_add_f32 v{vr}, {f2u(1e-5)}, v{vr}")
    round_bf16(k, vr, tmp)
    k.e(f"v_sqrt_f32 v{vr}, v{vr}")
    round_bf16(k, vr, tmp)
    k.e(f"v_rcp_f32 v{vr}, v{vr}")

def red32(k, v, tmp):
    k.e(f"v_mov_b32 v{tmp}, v{v}")
    k.e(f"v_permlane32_swap_b32 v{v}, v{tmp}")
    k.e(f"v_add_f32 v{v}, v{v}, v{tmp}")
def red16(k, v, tmp):
    k.e(f"v_mov_b32 v{tmp}, v{v}")
    k.e(f"v_permlane16_swap_b32 v{v}, v{tmp}")
    k.e(f"v_add_f32 v{v}, v{v}, v{tmp}")

def k3():
    name = "k3_kernel"
    k = Kern(name)
    NS = 3; SLOT = 49152; nst = 8
    CS = NS*SLOT
    ST = CS + 1024
    END = f"L_{name}_end"
    k.e(f"""
    s_cmp_ge_u32 s2, 256
    s_cbranch_scc1 {END}
    s_load_dwordx2 s[40:41], s[0:1], {ARG['ws']}
    s_load_dwordx2 s[42:43], s[0:1], {ARG['wg']}
    s_load_dwordx2 s[44:45], s[0:1], {ARG['wu']}
    v_and_b32 v1, 63, v0
    v_lshrrev_b32 v2, 6, v0
    s_nop 0
    v_readfirstlane_b32 s20, v2
    s_and_b32 s3, s2, 7
    s_lshr_b32 s23, s2, 3
    s_and_b32 s21, s3, 1
    s_lshl_b32 s21, s21, 3
    s_and_b32 s24, s23, 7
    s_add_u32 s21, s21, s24
    s_lshr_b32 s22, s3, 1
    s_lshl_b32 s22, s22, 2
    s_lshr_b32 s24, s23, 3
    s_add_u32 s22, s22, s24
    """)
    k.e("""
    v_lshrrev_b32 v3, 3, v1
    v_and_b32 v4, 7, v1
    s_lshl_b32 s24, s20, 4
    v_add_u32 v5, s24, v3
    s_lshl_b32 s25, s21, 7
    """)
    for e_, vd in ((0, 10), (1, 11)):
        if e_: k.e("v_add_u32 v5, 8, v5")
        k.e(f"""
        v_lshrrev_b32 v6, 1, v5
        v_and_b32 v6, 7, v6
        v_xor_b32 v6, v6, v4
        v_lshlrev_b32 v6, 4, v6
        v_add_u32 v7, s25, v5
        v_lshlrev_b32 v7, 10, v7
        v_add_u32 v{vd}, v7, v6
        """)
    k.e("""
    v_lshrrev_b32 v3, 4, v1
    v_and_b32 v4, 15, v1
    v_lshrrev_b32 v5, 1, v4
    v_and_b32 v4, 1, v4
    v_xor_b32 v5, v5, v3
    s_lshl_b32 s24, s20, 3
    v_add_u32 v6, s24, v3
    s_movk_i32 s26, 3584
    v_mul_lo_u32 v6, v6, s26
    s_mul_i32 s26, s22, 224
    v_add_u32 v6, s26, v6
    v_lshlrev_b32 v4, 4, v4
    v_add_u32 v6, v6, v4
    s_mov_b32 s27, 0x80000000
    v_mov_b32 v8, s27
    v_lshlrev_b32 v7, 5, v5
    v_add_u32 v7, v6, v7
    v_cmp_eq_u32 vcc, 7, v5
    v_cndmask_b32 v12, v7, v8, vcc
    v_add_u32 v13, 14336, v12
    v_xor_b32 v5, 4, v5
    v_lshlrev_b32 v7, 5, v5
    v_add_u32 v7, v6, v7
    v_cmp_eq_u32 vcc, 7, v5
    v_cndmask_b32 v14, v7, v8, vcc
    v_add_u32 v15, 14336, v14
    """)
    k.e("""
    s_and_b32 s27, s20, 3
    s_lshr_b32 s28, s20, 2
    v_and_b32 v3, 31, v1
    s_lshl_b32 s29, s27, 5
    v_add_u32 v3, s29, v3
    v_lshrrev_b32 v4, 5, v1
    v_lshrrev_b32 v5, 1, v3
    v_and_b32 v5, 7, v5
    v_xor_b32 v5, v5, v4
    v_lshlrev_b32 v5, 4, v5
    v_lshlrev_b32 v6, 7, v3
    v_add_u32 v16, v6, v5
    v_xor_b32 v17, 32, v16
    v_xor_b32 v18, 64, v16
    v_xor_b32 v19, 0x60, v16
    """)
    k.e("""
    s_add_u32 s51, s27, 1
    s_add_u32 s52, s27, 2
    s_add_u32 s53, s27, 3
    s_mov_b32 s50, s27
    s_cmp_eq_u32 s28, 0
    s_cbranch_scc1 L_k3_pt4
    s_cmp_ge_u32 s50, 3
    s_cselect_b32 s54, 3, 0
    s_sub_u32 s50, s50, s54
    s_cmp_ge_u32 s51, 3
    s_cselect_b32 s54, 3, 0
    s_sub_u32 s51, s51, s54
    s_cmp_ge_u32 s52, 3
    s_cselect_b32 s54, 3, 0
    s_sub_u32 s52, s52, s54
    s_add_u32 s50, s50, 4
    s_add_u32 s51, s51, 4
    s_add_u32 s52, s52, 4
    s_branch L_k3_ptd
    L_k3_pt4:
    s_and_b32 s51, s51, 3
    s_and_b32 s52, s52, 3
    s_and_b32 s53, s53, 3
    L_k3_ptd:
    """)
    k.e("""
    v_lshrrev_b32 v5, 4, v1
    v_and_b32 v6, 1, v5
    v_lshrrev_b32 v5, 1, v5
    v_and_b32 v7, 15, v1
    v_lshrrev_b32 v8, 2, v7
    v_and_b32 v7, 3, v7
    v_lshlrev_b32 v5, 3, v5
    v_add_u32 v5, v5, v8
    v_lshlrev_b32 v5, 8, v5
    v_lshlrev_b32 v9, 14, v6
    v_add_u32 v5, v5, v9
    v_lshlrev_b32 v7, 3, v7
    v_add_u32 v5, v5, v7
    v_add_u32 v5, 0x4000, v5
    v_lshlrev_b32 v6, 2, v6
    v_xor_b32 v8, v8, v6
    """)
    for q in range(4):
        k.e(f"""
        v_xor_b32 v6, s{50+q}, v8
        v_lshlrev_b32 v6, 5, v6
        v_add_u32 v{20+q}, v5, v6
        """)
    k.e("""
    v_add_u32 v5, s25, v3
    s_movk_i32 s29, 3584
    v_mul_lo_u32 v5, v5, s29
    v_lshlrev_b32 v6, 4, v4
    v_add_u32 v5, v5, v6
    v_add_u32 v24, s26, v5
    v_mov_b32 v25, 0
    v_mov_b32 v26, 0
    v_mov_b32 v27, 0
    s_mov_b32 s55, 0x3f803f80
    """)
    for i in range(64): k.e(f"v_mov_b32 v{64+i}, 0")
    k.e("s_waitcnt lgkmcnt(0)")
    srd(k, 4, 40, 2<<20, add=WS_H); srd(k, 8, 42, 512*3584); srd(k, 12, 44, 512*3584); srd(k, 16, 40, 7<<20, add=WS_HH)
    k.e(f"""
    s_mov_b32 s30, 0
    s_mov_b32 s31, 0
    s_mov_b32 s32, 0
    s_lshl_b32 s35, s20, 11
    s_mov_b32 s33, s35
    s_mov_b32 s34, 0x40000000
    s_mov_b32 s49, {(-(NS-1)*SLOT) & 0xffffffff}
    s_mov_b32 s56, {SLOT}
    """)
    def issue():
        k.e(f"""
        s_cmp_lt_u32 s32, {nst}
        s_cselect_b32 s36, s30, s34
        s_cselect_b32 s37, s31, s34
        s_mov_b32 m0, s33
        s_add_u32 s30, s30, 128
        buffer_load_dwordx4 v10, s[4:7], s36 offen lds
        s_add_u32 m0, s33, 1024
        s_add_u32 s31, s31, {64*3584}
        buffer_load_dwordx4 v11, s[4:7], s36 offen lds
        s_add_u32 m0, s33, 0x4000
        s_add_u32 s32, s32, 1
        buffer_load_dwordx4 v12, s[8:11], s37 offen lds
        s_add_u32 m0, s33, 0x4400
        s_nop 0
        buffer_load_dwordx4 v13, s[8:11], s37 offen lds
        s_add_u32 m0, s33, 0x8000
        s_nop 0
        buffer_load_dwordx4 v14, s[12:15], s37 offen lds
        s_add_u32 m0, s33, 0x8400
        s_add_u32 s33, s33, {SLOT}
        buffer_load_dwordx4 v15, s[12:15], s37 offen lds
        s_cmp_ge_u32 s33, {NS*SLOT}
        s_cselect_b32 s33, s35, s33
        """)
    for _ in range(NS-1): issue()
    k.e("""
    s_mov_b32 s38, 0
    s_mov_b32 s39, 0
    s_cmp_eq_u32 s28, 0
    s_cbranch_scc0 L_k3_path3
    """)
    XB = [128, 132]; WBB = [136, 156]
    def body(NQ, stats):
        LOOP = k.lab("loop")
        k.e(f"{LOOP}:")
        k.e(f"s_waitcnt vmcnt({6*(NS-2)})")
        k.e("s_barrier")
        issue()
        def rdX(j): k.e(f"ds_read_b128 v[{XB[j&1]}:{XB[j&1]+3}], v{16+j}")
        def rdW(j,q):
            WB = WBB[j&1]
            k.e(f"ds_read_b64_tr_b16 v[{WB+4*q}:{WB+4*q+1}], v{20+q} offset:{4096*j}")
            k.e(f"ds_read_b64_tr_b16 v[{WB+4*q+2}:{WB+4*q+3}], v{20+q} offset:{4096*j+1024}")
        rdX(0)
        for q in range(NQ): rdW(0,q)
        k.e(f"""
        s_add_u32 s39, s39, 1
        s_cmp_ge_u32 s39, {NS}
        s_cselect_b32 s48, s49, s56
        s_cselect_b32 s39, 0, s39
        """)
        for j in range(4):
            x = XB[j&1]; WB = WBB[j&1]
            for q in range(NQ):
                if j < 3: n = 2*(NQ-1) + (1 if q >= 1 else 0)
                else: n = 2*(NQ-1-q)
                k.e(f"s_waitcnt lgkmcnt({n})")
                k.e(f"v_mfma_f32_32x32x16_bf16 v[{64+16*q}:{79+16*q}], v[{WB+4*q}:{WB+4*q+3}], v[{x}:{x+3}], v[{64+16*q}:{79+16*q}]")
                if q == 0:
                    for d in range(4): k.e(f"v_dot2_f32_bf16 v27, v{WB+d}, s55, v27")
                if j < 3:
                    if q == 0: rdX(j+1)
                    rdW(j+1, q)
                if stats and q == 1:
                    for d in range(4):
                        k.e(f"v_dot2_f32_bf16 v25, v{x+d}, s55, v25")
                        k.e(f"v_dot2_f32_bf16 v26, v{x+d}, v{x+d}, v26")
            k.e(f"v_add_u32 v{16+j}, s48, v{16+j}")
        for q in range(NQ): k.e(f"v_add_u32 v{20+q}, s48, v{20+q}")
        k.e(f"""
        s_add_u32 s38, s38, 1
        s_cmp_lt_u32 s38, {nst}
        s_cbranch_scc1 {LOOP}
        """)
        red32(k, 27, 28)
        k.e(f"""
        v_and_b32 v28, 31, v1
        v_lshlrev_b32 v28, 2, v28
        s_lshl_b32 s57, s50, 7
        s_add_u32 s57, s57, {CS}
        v_add_u32 v28, s57, v28
        ds_write_b32 v28, v27
        """)
        if stats:
            red32(k, 25, 28); red32(k, 26, 28)
            ln_stats(k, 25, 26, 30, 31, 28)
            k.e(f"""
            v_lshlrev_b32 v28, 3, v3
            v_add_u32 v28, {ST}, v28
            ds_write_b64 v28, v[30:31]
            """)
        k.e("s_waitcnt lgkmcnt(0)")
        k.e("s_barrier")
        k.e(f"""
        v_lshlrev_b32 v28, 3, v3
        v_add_u32 v28, {ST}, v28
        ds_read_b64 v[30:31], v28
        v_lshlrev_b32 v29, 4, v4
        v_add_u32 v29, {CS}, v29
        s_mov_b32 s58, {f2u(-2.302208198)}
        s_mov_b32 s59, {f2u(-0.1029432397)}
        """)
        for q in range(NQ):
            k.e(f"s_lshl_b32 s57, s{50+q}, 7")
            k.e(f"v_add_u32 v28, s57, v29")
            for qq in range(4): k.e(f"ds_read_b128 v[{128+4*qq}:{131+4*qq}], v28 offset:{32*qq}")
            k.e("s_waitcnt lgkmcnt(0)")
            A = 64+16*q
            for i in range(16):
                k.e(f"v_fma_f32 v{A+i}, -v30, v{128+i}, v{A+i}")
            for i in range(16):
                k.e(f"v_mul_f32 v{A+i}, v31, v{A+i}")
            for i in range(8):
                g = A+i; u = A+8+i; t0 = 144+(i&1)*4
                k.e(f"""
                v_cvt_pk_bf16_f32 v{t0}, v{g}, v{u}
                v_lshlrev_b32 v{g}, 16, v{t0}
                v_and_b32 v{u}, 0xffff0000, v{t0}
                v_mul_f32 v{t0+1}, v{g}, v{g}
                v_mov_b32 v{t0+2}, s58
                v_fmac_f32 v{t0+2}, s59, v{t0+1}
                v_mul_f32 v{t0+2}, v{g}, v{t0+2}
                v_exp_f32 v{t0+2}, v{t0+2}
                v_add_f32 v{t0+2}, 1.0, v{t0+2}
                v_rcp_f32 v{t0+2}, v{t0+2}
                v_mul_f32 v{g}, v{g}, v{t0+2}
                """)
            for i in range(0, 8, 2):
                g = A+i
                k.e(f"""
                v_cvt_pk_bf16_f32 v144, v{g}, v{g+1}
                v_lshlrev_b32 v{g}, 16, v144
                v_and_b32 v{g+1}, 0xffff0000, v144
                v_mul_f32 v{g}, v{g}, v{g+8}
                v_mul_f32 v{g+1}, v{g+1}, v{g+9}
                v_cvt_pk_bf16_f32 v{152+i//2}, v{g}, v{g+1}
                """)
            k.e("v_permlane32_swap_b32 v152, v154")
            k.e("v_permlane32_swap_b32 v153, v155")
            k.e(f"s_lshl_b32 s57, s{50+q}, 5")
            k.e(f"buffer_store_dwordx4 v[152:155], v24, s[16:19], s57 offen")
    body(4, False)
    k.e(f"s_branch {END}")
    k.e("L_k3_path3:")
    body(3, True)
    k.e(f"{END}:")
    k.e("s_endpgm")
    return k, 176, ST + 1024

def k1():
    name = "k1_kernel"
    k = Kern(name)
    NS = 5; SLOT = 30720; nst = 8; WOFF = 18432
    CS = NS*SLOT
    RS = 208
    END = f"L_{name}_end"
    k.e(f"""
    s_cmp_ge_u32 s2, 256
    s_cbranch_scc1 {END}
    s_load_dwordx2 s[40:41], s[0:1], {ARG['ws']}
    s_load_dwordx2 s[42:43], s[0:1], {ARG['wqkv']}
    s_load_dwordx2 s[44:45], s[0:1], {ARG['x']}
    v_and_b32 v1, 63, v0
    v_lshrrev_b32 v2, 6, v0
    s_nop 0
    v_readfirstlane_b32 s20, v2
    s_and_b32 s3, s2, 7
    s_lshr_b32 s23, s2, 3
    s_and_b32 s21, s3, 3
    s_lshl_b32 s21, s21, 2
    s_and_b32 s24, s23, 3
    s_add_u32 s21, s21, s24
    s_lshr_b32 s22, s3, 2
    s_lshl_b32 s22, s22, 3
    s_lshr_b32 s24, s23, 2
    s_add_u32 s22, s22, s24
    s_and_b32 s27, s20, 1
    s_lshr_b32 s28, s20, 1
    s_sub_u32 s29, s20, 2
    s_lshl_b32 s25, s21, 7
    s_sub_u32 s25, s25, 16
    """)
    k.e("""
    v_lshrrev_b32 v3, 3, v1
    v_and_b32 v4, 7, v1
    s_mul_i32 s24, s29, 24
    v_add_u32 v5, s24, v3
    """)
    for e_ in range(3):
        if e_: k.e("v_add_u32 v5, 8, v5")
        k.e(f"""
        v_lshrrev_b32 v6, 1, v5
        v_and_b32 v6, 7, v6
        v_xor_b32 v6, v6, v4
        v_lshlrev_b32 v6, 4, v6
        v_add_u32 v7, s25, v5
        v_max_i32 v7, 0, v7
        v_lshlrev_b32 v7, 10, v7
        v_add_u32 v{10+e_}, v7, v6
        """)
    k.e("s_lshl_b32 s24, s29, 7")
    k.e("s_lshl_b32 s26, s22, 6")
    k.e("v_add_u32 v5, s24, v1")
    for e_ in range(2):
        if e_: k.e("v_add_u32 v5, 64, v5")
        k.e(f"""
        v_mul_u32_u24 v6, 43691, v5
        v_lshrrev_b32 v6, 19, v6
        v_mul_u32_u24 v7, 12, v6
        v_sub_u32 v7, v5, v7
        v_lshrrev_b32 v8, 1, v7
        v_and_b32 v7, 1, v7
        v_lshrrev_b32 v9, 3, v6
        v_and_b32 v9, 1, v9
        v_xor_b32 v8, v8, v9
        v_lshrrev_b32 v9, 1, v8
        v_and_b32 v8, 1, v8
        v_mul_u32_u24 v6, 3072, v6
        v_lshlrev_b32 v9, 10, v9
        v_add_u32 v6, v6, v9
        v_lshlrev_b32 v8, 5, v8
        v_add_u32 v6, v6, v8
        v_lshlrev_b32 v7, 4, v7
        v_add_u32 v6, v6, v7
        v_add_u32 v{13+e_}, s26, v6
        """)
    k.e("""
    s_max_u32 s50, s28, 1
    s_sub_u32 s50, s50, 1
    s_add_u32 s51, s50, 1
    s_cmp_ge_u32 s51, 3
    s_cselect_b32 s54, 3, 0
    s_sub_u32 s51, s51, s54
    s_add_u32 s52, s50, 2
    s_cmp_ge_u32 s52, 3
    s_cselect_b32 s54, 3, 0
    s_sub_u32 s52, s52, s54
    """)
    k.e("""
    s_lshl_b32 s53, s28, 1
    s_add_u32 s53, s53, 1
    s_cmp_eq_u32 s28, 0
    s_cselect_b32 s53, 0, s53
    """)
    k.e("""
    v_and_b32 v3, 15, v1
    v_lshrrev_b32 v4, 4, v1
    v_lshrrev_b32 v5, 1, v3
    v_xor_b32 v5, v5, v4
    v_lshlrev_b32 v5, 4, v5
    v_lshlrev_b32 v6, 7, v3
    v_add_u32 v5, v5, v6
    s_lshl_b32 s24, s53, 11
    v_add_u32 v16, s24, v5
    v_xor_b32 v17, 64, v16
    """)
    k.e(f"""
    v_lshrrev_b32 v5, 2, v3
    v_and_b32 v6, 3, v3
    v_lshlrev_b32 v7, 3, v4
    v_add_u32 v5, v5, v7
    v_mul_u32_u24 v5, 192, v5
    v_and_b32 v7, 1, v4
    v_xor_b32 v7, s27, v7
    v_lshlrev_b32 v7, 5, v7
    v_add_u32 v5, v5, v7
    v_lshlrev_b32 v6, 3, v6
    v_add_u32 v5, v5, v6
    v_add_u32 v5, {WOFF}, v5
    """)
    for u in range(3):
        k.e(f"s_lshl_b32 s24, s{50+u}, 6")
        k.e(f"v_add_u32 v{18+u}, s24, v5")
    k.e("s_mov_b32 s55, 0x3f803f80")
    for i in range(22, 32): k.e(f"v_mov_b32 v{i}, 0")
    for i in range(36): k.e(f"v_mov_b32 v{64+i}, 0")
    k.e("s_waitcnt lgkmcnt(0)")
    srd(k, 4, 44, 2<<20); srd(k, 8, 42, 512*3072); srd(k, 16, 40, 2<<20, add=WS_O)
    k.e(f"""
    s_mov_b32 s30, 0
    s_mov_b32 s31, 0
    s_mov_b32 s32, 0
    s_mov_b32 s33, 0
    s_mul_i32 s35, s29, 3072
    s_lshl_b32 s46, s29, 11
    s_add_u32 s46, s46, {WOFF}
    s_mov_b32 s34, 0x80000000
    s_mov_b32 s49, {(-(NS-1)*SLOT) & 0xffffffff}
    s_mov_b32 s56, {SLOT}
    s_mov_b32 s38, 0
    s_mov_b32 s39, 0
    """)
    def issue():
        k.e(f"""
        s_cmp_lt_u32 s32, {nst}
        s_cselect_b32 s36, s30, s34
        s_cselect_b32 s37, s31, s34
        s_add_u32 s47, s33, s35
        s_mov_b32 m0, s47
        s_add_u32 s30, s30, 128
        buffer_load_dwordx4 v10, s[4:7], s36 offen lds
        s_add_u32 m0, s47, 1024
        s_add_u32 s31, s31, {64*3072}
        buffer_load_dwordx4 v11, s[4:7], s36 offen lds
        s_add_u32 m0, s47, 2048
        s_add_u32 s32, s32, 1
        buffer_load_dwordx4 v12, s[4:7], s36 offen lds
        s_add_u32 s47, s33, s46
        s_mov_b32 m0, s47
        s_add_u32 s33, s33, {SLOT}
        buffer_load_dwordx4 v13, s[8:11], s37 offen lds
        s_add_u32 m0, s47, 1024
        s_cmp_ge_u32 s33, {NS*SLOT}
        buffer_load_dwordx4 v14, s[8:11], s37 offen lds
        s_cselect_b32 s33, 0, s33
        """)
    WB = 100; XBs = [112, 124]
    def body(NT, loader):
        if loader:
            for _ in range(NS-1): issue()
        LOOP = k.lab("loop")
        k.e(f"{LOOP}:")
        if loader: k.e(f"s_waitcnt vmcnt({5*(NS-2)})")
        k.e("s_barrier")
        if loader: issue()
        WBs = [100, 136]
        q = LQ(k)
        def rdW(jj):
            for u in range(3):
                q.rd(("W",jj), f"ds_read_b64_tr_b16 v[{WBs[jj]+4*u}:{WBs[jj]+4*u+1}], v{18+u} offset:{(32*jj)*192}")
                q.rd(("W",jj), f"ds_read_b64_tr_b16 v[{WBs[jj]+4*u+2}:{WBs[jj]+4*u+3}], v{18+u} offset:{(32*jj+4)*192}")
        def rdX(jj):
            for t in range(NT):
                q.rd(("X",jj,t), f"ds_read_b128 v[{XBs[jj]+4*t}:{XBs[jj]+4*t+3}], v{16+jj} offset:{2048*t}")
        rdW(0); rdX(0); rdW(1)
        k.e(f"""
        s_add_u32 s39, s39, 1
        s_cmp_ge_u32 s39, {NS}
        s_cselect_b32 s48, s49, s56
        s_cselect_b32 s39, 0, s39
        """)
        for jj in range(2):
            for t in range(NT):
                q.wait([("W",jj), ("X",jj,t)])
                x = XBs[jj]+4*t
                for u in range(3):
                    if NT == 3 and t == 0 and u == 0: continue
                    a = 64+12*t+4*u
                    k.e(f"v_mfma_f32_16x16x32_bf16 v[{a}:{a+3}], v[{WBs[jj]+4*u}:{WBs[jj]+4*u+3}], v[{x}:{x+3}], v[{a}:{a+3}]")
                if jj == 0 and t == 0: rdX(1)
                for d in range(4):
                    k.e(f"v_dot2_f32_bf16 v{22+2*t}, v{x+d}, s55, v{22+2*t}")
                    k.e(f"v_dot2_f32_bf16 v{23+2*t}, v{x+d}, v{x+d}, v{23+2*t}")
            if loader:
                for d in range(4): k.e(f"v_dot2_f32_bf16 v28, v{WBs[jj]+d}, s55, v28")
        for r in (16,17,18,19,20): k.e(f"v_add_u32 v{r}, s48, v{r}")
        k.e(f"""
        s_add_u32 s38, s38, 1
        s_cmp_lt_u32 s38, {nst}
        s_cbranch_scc1 {LOOP}
        """)
        if loader:
            red16(k, 28, 29); red32(k, 28, 29)
            k.e(f"""
            s_lshl_b32 s57, s50, 7
            s_lshl_b32 s58, s27, 6
            s_add_u32 s57, s57, s58
            s_add_u32 s57, s57, {CS}
            v_lshlrev_b32 v29, 2, v3
            v_add_u32 v29, s57, v29
            ds_write_b32 v29, v28
            """)
        for t in range(NT):
            for r in (22+2*t, 23+2*t):
                red16(k, r, 29); red32(k, r, 29)
            ln_stats(k, 22+2*t, 23+2*t, 30+2*t, 31+2*t, 29)
        k.e("s_waitcnt vmcnt(0) lgkmcnt(0)")
        k.e("s_barrier")
        k.e(f"""
        v_lshlrev_b32 v29, 4, v4
        s_lshl_b32 s58, s27, 6
        v_add_u32 v29, s58, v29
        v_add_u32 v29, {CS}, v29
        s_mul_i32 s59, s53, {16*RS}
        v_mul_u32_u24 v36, {RS}, v3
        v_add_u32 v36, s59, v36
        v_lshlrev_b32 v37, 3, v4
        v_add_u32 v36, v36, v37
        s_lshl_b32 s58, s27, 5
        v_add_u32 v36, s58, v36
        """)
        for u in range(3):
            k.e(f"s_lshl_b32 s57, s{50+u}, 7")
            k.e(f"v_add_u32 v37, s57, v29")
            k.e(f"ds_read_b128 v[{100+4*u}:{103+4*u}], v37")
        k.e("s_waitcnt lgkmcnt(0)")
        for u in range(3):
            k.e(f"s_lshl_b32 s57, s{50+u}, 6")
            k.e(f"v_add_u32 v37, s57, v36")
            for t in range(NT):
                if NT == 3 and t == 0 and u == 0: continue
                a = 64+12*t+4*u
                for i in range(4):
                    k.e(f"v_fma_f32 v{a+i}, -v{30+2*t}, v{100+4*u+i}, v{a+i}")
                for i in range(4):
                    k.e(f"v_mul_f32 v{a+i}, v{31+2*t}, v{a+i}")
                k.e(f"v_cvt_pk_bf16_f32 v{a}, v{a}, v{a+1}")
                k.e(f"v_cvt_pk_bf16_f32 v{a+1}, v{a+2}, v{a+3}")
                k.e(f"ds_write_b64 v37, v[{a}:{a+1}] offset:{16*RS*t}")
    k.e("s_cmp_eq_u32 s28, 0")
    k.e("s_cbranch_scc0 L_k1_pathL")
    body(3, False)
    k.e("s_branch L_k1_attn")
    k.e("L_k1_pathL:")
    body(2, True)
    k.e("L_k1_attn:")
    k.e("s_waitcnt lgkmcnt(0)")
    k.e("s_barrier")
    k.e(f"""
    v_lshrrev_b32 v2, 2, v0
    v_lshrrev_b32 v3, 1, v0
    v_and_b32 v3, 1, v3
    v_and_b32 v4, 1, v0
    v_add_u32 v5, 16, v2
    v_mul_u32_u24 v5, {RS}, v5
    v_lshlrev_b32 v6, 5, v3
    v_add_u32 v5, v5, v6
    v_mul_u32_u24 v6, {8*RS}, v4
    v_sub_u32 v7, v5, v6
    v_subrev_u32 v7, {6*RS}, v7
    v_lshlrev_b32 v8, 4, v4
    v_add_u32 v9, v7, v8
    v_xor_b32 v10, 1, v4
    v_mul_u32_u24 v10, {8*RS}, v10
    v_sub_u32 v10, v5, v10
    v_subrev_u32 v10, {6*RS}, v10
    v_add_u32 v10, v10, v8
    ds_read_b128 v[16:19], v5
    ds_read_b128 v[20:23], v5 offset:16
    """)
    for i in range(4):
        k.e(f"ds_read_b128 v[{24+8*i}:{27+8*i}], v7 offset:{(6-2*i)*RS+64}")
        k.e(f"ds_read_b128 v[{28+8*i}:{31+8*i}], v7 offset:{(6-2*i)*RS+80}")
    for i in range(4):
        k.e(f"ds_read_b128 v[{64+4*i}:{67+4*i}], v9 offset:{(6-2*i)*RS+128}")
    k.e("s_waitcnt lgkmcnt(4)")
    for i in range(4):
        k.e(f"ds_read_b128 v[{80+4*i}:{83+4*i}], v10 offset:{(6-2*i)*RS+128}")
    for i in range(4): k.e(f"v_mov_b32 v{56+i}, 0")
    for d in range(8):
        for i in range(4):
            k.e(f"v_dot2_f32_bf16 v{56+i}, v{16+d}, v{24+8*i+d}, v{56+i}")
    k.e(f"""
    s_lshl_b32 s24, s21, 7
    v_add_u32 v11, s24, v2
    v_lshlrev_b32 v12, 3, v4
    v_sub_u32 v11, v11, v12
    s_mov_b32 s57, {f2u(-4e9)}
    v_mov_b32 v13, s57
    v_cvt_pk_bf16_f32 v60, v56, v57
    v_cvt_pk_bf16_f32 v61, v58, v59
    v_lshlrev_b32 v56, 16, v60
    v_and_b32 v57, 0xffff0000, v60
    v_lshlrev_b32 v58, 16, v61
    v_and_b32 v59, 0xffff0000, v61
    """)
    for i in range(4):
        k.e(f"v_cmp_gt_i32 vcc, {2*i}, v11")
        k.e(f"v_cndmask_b32 v{56+i}, v{56+i}, v13, vcc")
    for i in range(4):
        k.e(f"v_mov_b32_dpp v{60+i}, v{56+i} quad_perm:[1,0,3,2] row_mask:0xf bank_mask:0xf")
    c = 0.25*1.4426950408889634
    k.e(f"""
    v_max3_f32 v12, v56, v57, v58
    v_max3_f32 v12, v12, v59, v60
    v_max3_f32 v12, v12, v61, v62
    v_max_f32 v12, v12, v63
    s_mov_b32 s57, {f2u(c)}
    v_mul_f32 v12, s57, v12
    """)
    for i in range(8): k.e(f"v_fma_f32 v{56+i}, v{56+i}, s57, -v12")
    for i in range(8): k.e(f"v_exp_f32 v{56+i}, v{56+i}")
    k.e("""
    v_add_f32 v12, v56, v57
    v_add_f32 v13, v58, v59
    v_add_f32 v14, v60, v61
    v_add_f32 v15, v62, v63
    v_add_f32 v12, v12, v13
    v_add_f32 v14, v14, v15
    v_add_f32 v12, v12, v14
    v_rcp_f32 v12, v12
    """)
    for i in range(8): k.e(f"v_mul_f32 v{56+i}, v{56+i}, v12")
    for i in range(8):
        k.e(f"v_cvt_pk_bf16_f32 v{24+i}, v{56+i}, 0")
        k.e(f"v_lshlrev_b32 v{32+i}, 16, v{24+i}")
    for i in range(8): k.e(f"v_mov_b32 v{40+i}, 0")
    k.e("s_waitcnt lgkmcnt(0)")
    for i in range(8):
        for d in range(4):
            k.e(f"v_dot2_f32_bf16 v{40+2*d}, v{64+4*i+d}, v{24+i}, v{40+2*d}")
            k.e(f"v_dot2_f32_bf16 v{41+2*d}, v{64+4*i+d}, v{32+i}, v{41+2*d}")
    for d in range(4): k.e(f"v_cvt_pk_bf16_f32 v{48+d}, v{40+2*d}, v{41+2*d}")
    k.e("""
    v_add_u32 v11, s24, v2
    v_lshlrev_b32 v11, 10, v11
    v_and_b32 v12, 3, v0
    v_lshlrev_b32 v12, 4, v12
    v_add_u32 v11, v11, v12
    v_add_u32 v11, s26, v11
    buffer_store_dwordx4 v[48:51], v11, s[16:19], 0 offen
    """)
    k.e(f"{END}:")
    k.e("s_endpgm")
    return k, 152, CS + 512
```

```python
import sys
from asmlib import *

NAME = "sequential_preLN__sliding_local_dilated__glu_gated_geglu__prompt"
ARG = dict(x=0, wqkv=8, wo=16, bx=24, wg=32, wu=40, wd=48, out=56, dbg=64, ws=72)
WS_O, WS_H, WS_HH = 0, 2<<20, 4<<20

def srd_from_arg(k, sd, arg, size, add=0, tmp=None):
    if add:
        k.e(f"s_add_u32 s{sd}, s{tmp}, {add}")
        k.e(f"s_addc_u32 s{sd+1}, s{tmp+1}, 0")
    else:
        k.e(f"s_mov_b32 s{sd}, s{tmp}")
        k.e(f"s_mov_b32 s{sd+1}, s{tmp+1}")
    k.e(f"s_mov_b32 s{sd+2}, {size}")
    k.e(f"s_mov_b32 s{sd+3}, 0x00020000")

def gemm64(name, K, xsrc, xstride, warg, res, out, NS):
    k = Kern(name)
    nst = K // 64
    END = f"L_{name}_end"
    k.e(f"s_cmp_ge_u32 s2, 256")
    k.e(f"s_cbranch_scc1 {END}")
    k.e(f"s_load_dwordx2 s[40:41], s[0:1], {ARG['ws']}")
    k.e(f"s_load_dwordx2 s[42:43], s[0:1], {ARG[warg]}")
    k.e(f"s_load_dwordx2 s[44:45], s[0:1], {ARG['x']}")
    k.e(f"s_load_dwordx2 s[46:47], s[0:1], {ARG['out']}")
    k.e("""
    v_and_b32 v1, 63, v0
    v_lshrrev_b32 v2, 6, v0
    s_nop 0
    v_readfirstlane_b32 s20, v2
    s_and_b32 s3, s2, 7
    s_lshr_b32 s23, s2, 3
    s_and_b32 s21, s23, 3
    s_lshl_b32 s3, s3, 2
    s_add_u32 s21, s21, s3
    s_lshr_b32 s22, s23, 2
    """)
    k.e("""
    v_lshrrev_b32 v3, 3, v1
    v_and_b32 v4, 7, v1
    s_lshl_b32 s24, s20, 4
    v_add_u32 v5, s24, v3
    """)
    k.e(f"s_lshl_b32 s25, s21, 6")
    for e_, vd in ((0, 10), (1, 11)):
        if e_: k.e("v_add_u32 v5, 8, v5")
        k.e(f"""
        v_lshrrev_b32 v6, 1, v5
        v_and_b32 v6, 7, v6
        v_xor_b32 v6, v6, v4
        v_lshlrev_b32 v6, 4, v6
        v_add_u32 v7, s25, v5
        s_mov_b32 s26, {xstride}
        v_mul_lo_u32 v7, v7, s26
        v_add_u32 v{vd}, v7, v6
        """)
    k.e("""
    v_add_u32 v5, s24, v3
    v_lshrrev_b32 v6, 4, v1
    v_and_b32 v6, 1, v6
    v_lshlrev_b32 v6, 2, v6
    v_xor_b32 v6, v6, v4
    v_lshlrev_b32 v6, 4, v6
    v_lshlrev_b32 v7, 10, v5
    v_add_u32 v7, v7, v6
    s_lshl_b32 s26, s22, 7
    v_add_u32 v12, s26, v7
    v_add_u32 v13, 0x2000, v12
    """)
    k.e("""
    s_and_b32 s27, s20, 1
    s_lshr_b32 s28, s20, 1
    v_and_b32 v3, 31, v1
    s_lshl_b32 s29, s27, 5
    v_add_u32 v3, s29, v3
    v_lshrrev_b32 v4, 5, v1
    v_lshrrev_b32 v5, 1, v3
    v_and_b32 v5, 7, v5
    v_xor_b32 v5, v5, v4
    v_lshlrev_b32 v5, 4, v5
    v_lshlrev_b32 v6, 7, v3
    v_add_u32 v14, v6, v5
    v_xor_b32 v15, 32, v14
    v_xor_b32 v16, 64, v14
    v_xor_b32 v17, 0x60, v14
    """)
    k.e("""
    v_lshrrev_b32 v5, 4, v1
    v_and_b32 v6, 1, v5
    v_lshrrev_b32 v5, 1, v5
    v_and_b32 v7, 15, v1
    v_lshrrev_b32 v8, 2, v7
    v_and_b32 v7, 3, v7
    v_lshlrev_b32 v5, 3, v5
    v_add_u32 v5, v5, v8
    v_lshlrev_b32 v5, 7, v5
    v_lshrrev_b32 v8, 1, v8
    v_xor_b32 v8, s28, v8
    v_lshlrev_b32 v8, 6, v8
    v_add_u32 v5, v5, v8
    v_lshlrev_b32 v6, 5, v6
    v_add_u32 v5, v5, v6
    v_lshlrev_b32 v7, 3, v7
    v_add_u32 v5, v5, v7
    v_add_u32 v18, 0x2000, v5
    """)
    k.e("""
    v_add_u32 v5, s25, v3
    v_lshlrev_b32 v5, 10, v5
    s_lshl_b32 s29, s28, 6
    s_add_u32 s29, s29, s26
    v_lshlrev_b32 v6, 3, v4
    v_add_u32 v5, v5, v6
    v_add_u32 v19, s29, v5
    """)
    k.e("s_waitcnt lgkmcnt(0)")
    def mk(sd, spec):
        if spec[0] == 'ws': srd_from_arg(k, sd, None, spec[2], add=spec[1], tmp=40)
        elif spec[1] == 'x': srd_from_arg(k, sd, None, spec[2], tmp=44)
        else: srd_from_arg(k, sd, None, spec[2], tmp=46)
    mk(4, xsrc); srd_from_arg(k, 8, None, K*1024, tmp=42); mk(12, res); mk(16, out)
    for q in range(4):
        k.e(f"buffer_load_dwordx2 v[{20+2*q}:{21+2*q}], v19, s[12:15], 0 offen offset:{16*q}")
    for i in range(16): k.e(f"v_mov_b32 v{32+i}, 0")
    k.e(f"""
    s_mov_b32 s30, 0
    s_mov_b32 s31, 0
    s_mov_b32 s32, 0
    s_lshl_b32 s35, s20, 11
    s_mov_b32 s33, s35
    s_mov_b32 s34, 0x80000000
    """)
    def issue():
        k.e(f"""
        s_cmp_lt_u32 s32, {nst}
        s_cselect_b32 s36, s30, s34
        s_cselect_b32 s37, s31, s34
        s_mov_b32 m0, s33
        s_add_u32 s30, s30, 128
        buffer_load_dwordx4 v10, s[4:7], s36 offen lds
        s_add_u32 m0, s33, 1024
        s_add_u32 s31, s31, 0x10000
        buffer_load_dwordx4 v11, s[4:7], s36 offen lds
        s_add_u32 m0, s33, 0x2000
        s_add_u32 s32, s32, 1
        buffer_load_dwordx4 v12, s[8:11], s37 offen lds
        s_add_u32 m0, s33, 0x2400
        s_add_u32 s33, s33, 0x4000
        buffer_load_dwordx4 v13, s[8:11], s37 offen lds
        s_cmp_ge_u32 s33, {NS*16384}
        s_cselect_b32 s33, s35, s33
        """)
    PRO = k.lab("pro")
    k.e(f"{PRO}:")
    issue()
    k.e(f"s_cmp_lt_u32 s32, {NS-1}")
    k.e(f"s_cbranch_scc1 {PRO}")
    k.e("s_mov_b32 s38, 0")
    k.e("s_mov_b32 s39, 0")
    k.e(f"s_mov_b32 s49, {(-(NS-1)*16384) & 0xffffffff}")
    k.e(f"s_mov_b32 s50, 0x4000")
    LOOP = k.lab("loop")
    k.e(f"{LOOP}:")
    k.e(f"s_waitcnt vmcnt({4*(NS-2)})")
    k.e("s_barrier")
    issue()
    for j in range(4):
        b = 48 + 8*j
        k.e(f"ds_read_b128 v[{b}:{b+3}], v{14+j}")
        k.e(f"ds_read_b64_tr_b16 v[{b+4}:{b+5}], v18 offset:{2048*j}")
        k.e(f"ds_read_b64_tr_b16 v[{b+6}:{b+7}], v18 offset:{2048*j+512}")
    k.e(f"""
    s_add_u32 s39, s39, 1
    s_cmp_ge_u32 s39, {NS}
    s_cselect_b32 s48, s49, s50
    s_cselect_b32 s39, 0, s39
    """)
    for j in range(4):
        b = 48 + 8*j
        k.e(f"s_waitcnt lgkmcnt({9-3*j})")
        k.e(f"v_mfma_f32_32x32x16_bf16 v[32:47], v[{b+4}:{b+7}], v[{b}:{b+3}], v[32:47]")
        if j < 3: k.e(f"v_add_u32 v{14+j}, s48, v{14+j}")
    k.e("v_add_u32 v17, s48, v17")
    k.e("v_add_u32 v18, s48, v18")
    k.e(f"""
    s_add_u32 s38, s38, 1
    s_cmp_lt_u32 s38, {nst}
    s_cbranch_scc1 {LOOP}
    """)
    for q in range(4):
        for p in range(2):
            a = 32 + 4*q + 2*p; r = 20 + 2*q + p
            k.e(f"""
            v_cvt_pk_bf16_f32 v48, v{a}, v{a+1}
            v_lshlrev_b32 v49, 16, v48
            v_and_b32 v50, 0xffff0000, v48
            v_lshlrev_b32 v51, 16, v{r}
            v_and_b32 v52, 0xffff0000, v{r}
            v_add_f32 v49, v49, v51
            v_add_f32 v50, v50, v52
            v_cvt_pk_bf16_f32 v{r}, v49, v50
            """)
        k.e(f"buffer_store_dwordx2 v[{20+2*q}:{21+2*q}], v19, s[16:19], 0 offen offset:{16*q}")
    k.e(f"{END}:")
    k.e("s_endpgm")
    return k, 80, NS*16384

def main():
    kerns = []
    k2 = gemm64("k2_kernel", 512, ('ws', WS_O, 2<<20), 1024, 'wo', ('arg','x',2<<20), ('ws', WS_H, 2<<20), 8)
    k4 = gemm64("k4_kernel", 1792, ('ws', WS_HH, 7<<20), 3584, 'wd', ('ws', WS_H, 2<<20), ('arg','out',2<<20), 10)
    which = sys.argv[2].split(",") if len(sys.argv) > 2 else ["k1","k2","k3","k4"]
    allk = {}
    allk["k2"] = (k2, 256); allk["k4"] = (k4, 256)
    try:
        from gen13 import k1, k3
        allk["k1"] = (k1(), 512); allk["k3"] = (k3(), 512)
    except ImportError:
        pass
    hdr = open("cdna_kernels/"+NAME+".s.ref").read().split("; Override launch")[0]
    out = hdr
    for w in which:
        (k, nv, lds), blk = allk[w]
        out += f"; @launch kernel={k.name} grid=(256,1,1) block=({blk},1,1) lds={lds}\n"
    out += '.amdgcn_target "amdgcn-amd-amdhsa--gfx950"\n'
    for w in which:
        (k, nv, lds), blk = allk[w]
        out += kernel_text(k, nv)
    open(sys.argv[1], "w").write(out)
main()
```

```python
import re

class Kern:
    def __init__(self, name):
        self.name = name
        self.lines = []
        self.uid = 0
    def e(self, s):
        import os
        drop = [x for x in os.environ.get("DROP","").split(",") if x]
        for ln in s.strip("\n").split("\n"):
            ln = ln.strip()
            if any(ln.startswith(d) for d in drop): continue
            if ln: self.lines.append(ln)
    def lab(self, base):
        self.uid += 1
        return f"L_{self.name}_{base}_{self.uid}"

REG_RE = re.compile(r"\b([vsa])\[(\d+):(\d+)\]|\b([vsa])(\d+)\b|\b(vcc|exec|m0|scc)\b")
def regs_of(tok):
    out = set()
    for m in REG_RE.finditer(tok):
        if m.group(1):
            for i in range(int(m.group(2)), int(m.group(3))+1): out.add((m.group(1), i))
        elif m.group(4):
            out.add((m.group(4), int(m.group(5))))
        else:
            out.add((m.group(6), 0))
    return out

TRANS = ("v_exp_f32","v_log_f32","v_rcp_f32","v_rsq_f32","v_sqrt_f32","v_sin_f32","v_cos_f32")
class Ins:
    def __init__(self, text):
        self.text = text
        t = text.split(";")[0].strip()
        self.is_label = t.endswith(":")
        self.op = None; self.dst=set(); self.src=set(); self.kind=None; self.ws=0
        self.srcC=set(); self.srcAB=set(); self.passes=0; self.target=None; self.dpp=False
        if t.startswith("."):
            self.is_label = True; self.label = None; return
        if self.is_label or not t:
            self.label = t[:-1] if t else None
            return
        parts = t.split(None, 1)
        op = parts[0]; self.op = op
        rest = parts[1] if len(parts)>1 else ""
        ops = [o.strip() for o in re.split(r",(?![^\[]*\])", rest)] if rest else []
        self.ws = 1
        if op == "s_nop":
            self.ws = int(ops[0],0)+1; self.kind="nop"; return
        if op in ("s_waitcnt","s_barrier","s_endpgm","s_sleep","s_setprio"):
            self.kind="misc"; return
        if op.startswith("s_cbranch") or op=="s_branch":
            self.kind="branch"; self.target=ops[0]; return
        if op.startswith("v_mfma"):
            self.kind="mfma"
            self.dst=regs_of(ops[0]); self.srcAB=regs_of(ops[1])|regs_of(ops[2]); self.srcC=regs_of(ops[3])
            self.src=self.srcAB|self.srcC
            self.passes = 8 if "32x32x16" in op else 4
            return
        if op.startswith("buffer_store") or op.startswith("global_store") or op.startswith("ds_write"):
            self.kind = "ds" if op.startswith("ds_") else "vmem"
            for o in ops: self.src |= regs_of(o)
            self.store_data = regs_of(ops[0]) if op.startswith("buffer_store") else (regs_of(ops[1]))
            self.wide = ("x4" in op or "x3" in op) and self.kind=="vmem"
            return
        if op.startswith("buffer_load") or op.startswith("global_load"):
            self.kind="vmem"
            if " lds" in t or "_lds_" in op:
                for o in ops: self.src |= regs_of(o)
                self.src.add(("m0",0)); self.ldsdma=True
            else:
                self.dst=regs_of(ops[0])
                for o in ops[1:]: self.src |= regs_of(o)
            return
        if op.startswith("buffer_atomic") or op.startswith("global_atomic"):
            self.kind="vmem"
            for o in ops: self.src |= regs_of(o)
            if "sc0" in t: self.dst = regs_of(ops[0])
            return
        if op.startswith("buffer_"):
            self.kind="vmem"; return
        if op.startswith("ds_"):
            self.kind="ds"; self.dst=regs_of(ops[0])
            for o in ops[1:]: self.src |= regs_of(o)
            return
        if op.startswith("s_load") or op.startswith("s_memtime") or op.startswith("s_memrealtime"):
            self.kind="smem"; self.dst=regs_of(ops[0])
            for o in ops[1:]: self.src |= regs_of(o)
            return
        if op == "s_getpc_b64":
            self.kind="salu"; self.dst=regs_of(ops[0]); return
        if op.startswith("s_cmp"):
            self.kind="salu"
            for o in ops: self.src |= regs_of(o)
            self.dst={("scc",0)}; return
        if op.startswith("s_"):
            self.kind="salu"; self.dst=regs_of(ops[0])
            for o in ops[1:]: self.src |= regs_of(o)
            if "saveexec" in op: self.dst.add(("exec",0))
            return
        if op.startswith("v_"):
            self.kind="valu"
            self.dpp = ("quad_perm" in t or "row_" in t or "_dpp" in op)
            if op.startswith("v_permlane"):
                self.dst=regs_of(ops[0])|regs_of(ops[1]); self.src=set(self.dst); self.permlane=True; return
            self.dst=regs_of(ops[0])
            for o in ops[1:]:
                self.src |= regs_of(o.split(" ")[0])
            if op.startswith("v_add_co") or op.startswith("v_addc_co") or op.startswith("v_sub_co"):
                self.dst |= regs_of(ops[1])
            if op.startswith("v_fmac") or op.startswith("v_dot2c"): self.src |= self.dst
            if op.startswith("v_cmpx"): self.dst.add(("exec",0))
            return
        raise ValueError("unknown op "+t)

def need(p, c):
    n = 0
    vd = {r for r in p.dst if r[0] in "va"}
    sd = {r for r in p.dst if r[0]=="s" or r[0]=="vcc"}
    if p.kind=="valu":
        isdot = p.op.startswith("v_dot")
        if c.kind=="mfma" and vd & c.src: n=max(n,3 if isdot else 2)
        if sd:
            if c.kind=="vmem" and sd & c.src: n=max(n,5)
            if c.kind=="valu" and sd & c.src: n=max(n,2)
            if c.kind=="valu" and (c.op.startswith("v_readlane") or c.op.startswith("v_writelane")) and sd & c.src: n=max(n,4)
            if c.kind=="salu" and sd & c.src: n=max(n,1)
            if c.kind=="smem" and sd & c.src: n=max(n,1)
        if ("exec",0) in p.dst:
            if c.kind in("valu","mfma"): n=max(n,5)
        if c.kind=="valu" and vd & c.src:
            if c.op.startswith("v_readlane") or c.op.startswith("v_readfirstlane"): n=max(n,1)
            if c.dpp: n=max(n,2)
            if getattr(c,"permlane",False): n=max(n,2)
            if re.sub(r"_e(32|64)$","",p.op) in TRANS and re.sub(r"_e(32|64)$","",c.op) not in TRANS: n=max(n,1)
        if isdot and c.kind in("valu","vmem","ds"):
            if c.op==p.op:
                pass
                ab = set()
                toks=[o.strip() for o in re.split(r",(?![^\[]*\])", c.text.split(";")[0].split(None,1)[1])]
                ab = regs_of(toks[1])|regs_of(toks[2])
                if vd & ab: n=max(n,3)
            elif vd & (c.src|c.dst): n=max(n,3)
    if p.kind=="mfma":
        full = {4:8, 8:12}[p.passes]
        if c.kind=="mfma":
            if vd & c.srcAB: n=max(n,full)
            if vd & c.srcC:
                if c.srcC==p.dst and c.passes==p.passes: pass
                else: n=max(n,{4:6,8:10}[p.passes])
            if (vd & c.dst) and not (c.dst==p.dst): n=max(n,{4:6,8:10}[p.passes])
        elif c.kind in("valu","vmem","ds"):
            if vd & (c.src|c.dst): n=max(n,full)
        if c.kind=="valu" and p.srcC & c.dst: n=max(n,{4:3,8:7}[p.passes])
    if p.kind=="salu" and ("m0",0) in p.dst:
        if getattr(c,"ldsdma",False): n=max(n,1)
    if p.kind=="vmem" and getattr(p,"wide",False):
        if c.kind=="valu" and p.store_data & c.dst: n=max(n,2)
        elif p.store_data & c.dst: n=max(n,1)
    if p.kind=="salu" and ("exec",0) in p.dst:
        pass
    return n

def fix_hazards(lines, verbose=False):
    MAXW=20
    inserted=0
    while True:
        ins=[Ins(l) for l in lines]
        lab={x.label:i for i,x in enumerate(ins) if x.is_label}
        preds=[[] for _ in ins]
        for i,x in enumerate(ins):
            if i+1<len(ins) and not (x.op in("s_branch","s_endpgm")):
                preds[i+1].append(i)
            if x.kind=="branch":
                preds[lab[x.target]].append(i)
        viol=None
        for ci,c in enumerate(ins):
            if c.is_label or c.op is None or c.kind in("nop","misc","branch"): continue
            stack=[(p,0) for p in preds[ci]]
            seen={}
            while stack:
                pi,d=stack.pop()
                if d>=MAXW: continue
                if pi in seen and seen[pi]<=d: continue
                seen[pi]=d
                p=ins[pi]
                if not p.is_label and p.op is not None:
                    r=need(p,c)
                    if r>d:
                        if viol is None or True:
                            viol=(ci,r-d,p.text,c.text); break
                nd=d+(p.ws if not p.is_label else 0)
                for q in preds[pi]: stack.append((q,nd))
            if viol: break
        if not viol: break
        ci,k,pt,ct=viol
        if verbose: print("hazard: +%d nop between [%s] and [%s]"%(k,pt,ct))
        lines.insert(ci, f"s_nop {k-1}")
        inserted+=1
    return lines

def kernel_text(k, nvgpr, nsgpr=102, accum=None):
    lines = fix_hazards(list(k.lines))
    body = "\n".join(("" if l.endswith(":") else "    ")+l for l in lines)
    if accum is None: accum = (nvgpr+3)//4*4
    txt = f""".text
.globl {k.name}
.p2align 8
.type {k.name},@function
{k.name}:
{body}
.section .rodata,"a"
.p2align 6
.amdhsa_kernel {k.name}
  .amdhsa_next_free_vgpr {nvgpr}
  .amdhsa_next_free_sgpr {nsgpr}
  .amdhsa_accum_offset {accum}
  .amdhsa_group_segment_fixed_size 0
  .amdhsa_kernarg_size 80
  .amdhsa_user_sgpr_count 2
  .amdhsa_user_sgpr_kernarg_segment_ptr 1
  .amdhsa_system_sgpr_workgroup_id_x 1
.end_amdhsa_kernel
"""
    return txt

class LQ:
    def __init__(self, k): self.k=k; self.q=[]
    def rd(self, tag, text):
        self.k.e(text); self.q.append(tag)
        assert len(self.q) <= 15, "too many LDS ops outstanding"
    def wait(self, tags):
        last = -1
        for i,t in enumerate(self.q):
            if t in tags: last = i
        if last < 0: return
        n = len(self.q) - 1 - last
        self.k.e(f"s_waitcnt lgkmcnt({n})")
        self.q = self.q[last+1:]
```

```python
import sys, os, struct
from asmlib import *
NAME = "sequential_preLN__sliding_local_dilated__glu_gated_geglu__prompt"
WS_O, WS_H, WS_HH, WS_F = 0, 2<<20, 4<<20, 16<<20
def f2u(f): return struct.unpack("<I", struct.pack("<f", f))[0]
S_X, S_WQKV, S_WO, S_WG, S_WU, S_WD, S_OUT, S_DBG, S_WS = 84, 86, 88, 92, 94, 96, 98, 80, 82
S_W, S_RB64, S_CB, S_RB128, S_FB, S_NONCE, S_J = 20, 76, 77, 74, 75, 79, 21
STAMP = bool(os.environ.get("STAMP"))
FINE = int(os.environ.get("FINE","0"))
SC1 = " sc1"
PSLEEP = int(os.environ.get("PSLEEP","2"))
VRES = 58

def srd(k, sd, ptr, size, add=0):
    if add:
        k.e(f"s_add_u32 s{sd}, s{ptr}, {add}")
        k.e(f"s_addc_u32 s{sd+1}, s{ptr+1}, 0")
    else:
        k.e(f"s_mov_b32 s{sd}, s{ptr}")
        k.e(f"s_mov_b32 s{sd+1}, s{ptr+1}")
    k.e(f"s_mov_b32 s{sd+2}, {size}")
    k.e(f"s_mov_b32 s{sd+3}, 0x00020000")
def round_bf16(k, v, tmp):
    k.e(f"v_cvt_pk_bf16_f32 v{tmp}, v{v}, v{v}")
    k.e(f"v_lshlrev_b32 v{v}, 16, v{tmp}")
def ln_stats(k, vs, vq, vm, vr, tmp):
    k.e(f"""
    v_mul_f32 v{vm}, {f2u(1/512)}, v{vs}
    v_mul_f32 v{vr}, {f2u(1/512)}, v{vq}
    v_fma_f32 v{vr}, -v{vm}, v{vm}, v{vr}
    v_max_f32 v{vr}, 0, v{vr}
    """)
    round_bf16(k, vm, tmp); round_bf16(k, vr, tmp)
    k.e(f"v_add_f32 v{vr}, {f2u(1e-5)}, v{vr}")
    round_bf16(k, vr, tmp)
    k.e(f"v_sqrt_f32 v{vr}, v{vr}")
    round_bf16(k, vr, tmp)
    k.e(f"v_rcp_f32 v{vr}, v{vr}")
def red32(k, v, tmp):
    k.e(f"v_mov_b32 v{tmp}, v{v}"); k.e(f"v_permlane32_swap_b32 v{v}, v{tmp}"); k.e(f"v_add_f32 v{v}, v{v}, v{tmp}")
def red16(k, v, tmp):
    k.e(f"v_mov_b32 v{tmp}, v{v}"); k.e(f"v_permlane16_swap_b32 v{v}, v{tmp}"); k.e(f"v_add_f32 v{v}, v{v}, v{tmp}")
def stamp(k, force=False):
    if not STAMP: return
    if FINE == 9 and not force: return
    k.e("s_memtime s[100:101]")
    k.e("s_waitcnt lgkmcnt(0)")
    k.e("v_cmp_eq_u32 vcc, s78, v1")
    k.e("v_mov_b32 v62, s100")
    k.e("v_cndmask_b32 v63, v63, v62, vcc")
    k.e("s_add_u32 s78, s78, 1")

P1_NS, P1_SLOT, P1_WOFF = 4, 34816, 10240
P1_SC = P1_NS*P1_SLOT
P1_SC2 = P1_SC + 2560
RS = 400
P2_X, P2_W = 98304, 32768
P4_X, P4_W, P4_NS, P4_SL = 8192, 81920, 5, 14336
P3_OUT, RSO = 8192, 240
GS_RS = 272
P3_X, P3_XS, P3_W, P3_WS, P3_UOFF = 8192, 16384, 57344, 28800, 14464
P3_CS, P3_ST, P3_CS2 = 0, 4096, 6144

def dma(k, v, srdn, soff, m0expr, sc=""):
    k.e(m0expr)
    k.e(f"buffer_load_dwordx4 v{v}, s[{srdn}:{srdn+3}], {soff} offen{sc} lds")


WS_XS, WS_HS = 18<<20, 19<<20
WS_CS = 17<<20
def merge(k, groups, fill):
    if not fill:
        for g in groups: g()
        return
    fill = [x.strip() for x in fill if x.strip()]
    f2 = []; i = 0
    while i < len(fill):
        if fill[i].startswith("s_cmp"):
            j = i
            for t in range(i+1, min(i+8, len(fill))):
                if fill[t].startswith("s_cselect"): j = t
            f2.append("\n".join(fill[i:j+1])); i = j+1
        else:
            f2.append(fill[i]); i += 1
    fill = f2
    n = len(groups); m = len(fill); fi = 0
    for i, g in enumerate(groups):
        g()
        upto = (m*(i+1))//n
        while fi < upto:
            k.e(fill[fi]); fi += 1
def lstats_reads(k, base_sreg, ne):
    k.e(f"v_add_u32 v50, s{base_sreg}, v51")
    for e_ in range(ne): k.e(f"ds_read_b128 v[{64+4*e_}:{67+4*e_}], v50 offset:{1024*e_}")
def lstats_valu(ne, acc0):
    out = []
    for e_ in range(ne):
        out.append(f"s_waitcnt lgkmcnt({ne-1-e_})")
        a = acc0 + 4*e_
        for d in range(4):
            t0 = 52 + 2*(d&1)
            out += [f"v_lshlrev_b32 v{t0}, 16, v{64+4*e_+d}", f"v_and_b32 v{t0+1}, 0xffff0000, v{64+4*e_+d}",
                    f"v_pk_add_f32 v[{a}:{a+1}], v[{a}:{a+1}], v[{t0}:{t0+1}]",
                    f"v_pk_fma_f32 v[{a+2}:{a+3}], v[{t0}:{t0+1}], v[{t0}:{t0+1}], v[{a+2}:{a+3}]"]
    return out
def lstats_fin(k, ne, acc0, row0_sreg, stbase):
    k.e(f"""
    v_lshrrev_b32 v50, 3, v1
    v_add_u32 v50, s{row0_sreg}, v50
    v_lshlrev_b32 v50, 3, v50
    v_add_u32 v50, {stbase}, v50
    """)
    for e_ in range(ne):
        a = acc0 + 4*e_
        k.e(f"v_add_f32 v{a}, v{a}, v{a+1}")
        k.e(f"v_add_f32 v{a+2}, v{a+2}, v{a+3}")
    for perm in ("quad_perm:[1,0,3,2]", "quad_perm:[2,3,0,1]", "row_half_mirror"):
        for e_ in range(ne):
            a = acc0 + 4*e_
            for r in (a, a+2): k.e(f"v_add_f32_dpp v{r}, v{r}, v{r} {perm} row_mask:0xf bank_mask:0xf")
    for e_ in range(ne):
        a = acc0 + 4*e_
        k.e(f"v_mov_b32 v{a+1}, v{a+2}")
        k.e(f"ds_write_b64 v50, v[{a}:{a+1}] offset:{64*e_}")

def loader(k):
    J = S_J
    k.e("s_setprio 3")
    k.e(f"""
    s_lshl_b32 s25, s{S_RB64}, 6
    s_sub_u32 s25, s25, 16
    s_lshl_b32 s26, s{S_CB}, 7
    v_lshrrev_b32 v3, 3, v1
    v_and_b32 v4, 7, v1
    s_mul_i32 s24, s{J}, 20
    v_add_u32 v5, s24, v3
    s_lshl_b32 s30, s24, 7
    s_cmp_eq_u32 s{J}, 0
    s_cselect_b32 s31, 0xffffff00, -1
    """)
    for e_ in range(3):
        if e_: k.e("v_add_u32 v5, 8, v5")
        k.e(f"""
        v_bfe_u32 v6, v5, 1, 3
        v_xor_b32 v6, v6, v4
        v_add_u32 v7, s25, v5
        v_max_i32 v7, 0, v7
        v_lshlrev_b32 v7, 10, v7
        v_lshl_add_u32 v{10+e_}, v6, 4, v7
        """)
    srd(k, 4, S_X, 2<<20); srd(k, 8, S_WQKV, 512*3072)
    def x1(base, soff):
        return [lambda: (k.e(f"s_mov_b32 m0, {base}"), k.e("s_mov_b32 exec_lo, s31"), k.e(f"buffer_load_dwordx4 v10, s[4:7], {soff} offen lds"), k.e("s_mov_b32 exec_lo, -1")),
                lambda: dma(k, 11, 4, soff, f"s_add_u32 m0, {base}, 1024"),
                lambda: (k.e(f"s_add_u32 m0, {base}, 2048"), k.e("s_mov_b32 exec_hi, 0"), k.e(f"buffer_load_dwordx4 v12, s[4:7], {soff} offen lds"), k.e("s_mov_b32 exec_hi, -1"))]
    def w1(base, soff):
        return [(lambda e_=e_: dma(k, 13+e_, 8, soff, f"s_add_u32 m0, {base}, {1024*e_}")) for e_ in range(6)]
    wmath = [f"s_mul_i32 s24, s{J}, 384", "v_add_u32 v5, s24, v1", f"s_mul_i32 s32, s{J}, 6144", f"s_add_u32 s32, s32, {P1_WOFF}"]
    for e_ in range(3):
        if e_: wmath.append("v_add_u32 v5, 64, v5")
        wmath += f"""v_mul_u32_u24 v6, 2731, v5
        v_lshrrev_b32 v6, 16, v6
        v_mul_u32_u24 v7, 24, v6
        v_sub_u32 v7, v5, v7
        v_lshrrev_b32 v8, 1, v7
        v_and_b32 v7, 1, v7
        v_bfe_u32 v9, v6, 1, 1
        v_lshrrev_b32 v2, 2, v6
        v_and_b32 v2, 2, v2
        v_or_b32 v9, v9, v2
        v_xor_b32 v9, v8, v9
        v_and_b32 v9, 3, v9
        v_lshrrev_b32 v8, 2, v8
        v_mul_u32_u24 v6, 3072, v6
        v_lshl_add_u32 v6, v8, 10, v6
        v_lshl_add_u32 v6, v9, 5, v6
        v_lshl_add_u32 v6, v7, 4, v6
        v_add_u32 v{13+e_}, s26, v6
        v_xor_b32 v6, 64, v{13+e_}
        v_add_u32 v{16+e_}, 24576, v6""".split("\n")
    g = []
    for st in range(3):
        g.append(lambda st=st: (k.e(f"s_add_u32 s46, s30, {st*P1_SLOT}"), k.e(f"s_movk_i32 s36, {128*st}")))
        g += x1("s46", "s36")
    merge(k, g, wmath)
    misc = f"""v_lshrrev_b32 v3, 3, v1
    v_and_b32 v4, 7, v1
    s_lshl_b32 s24, s{J}, 5
    v_add_u32 v5, s24, v3
    v_bfe_u32 v6, v1, 4, 1
    v_lshlrev_b32 v6, 2, v6
    v_xor_b32 v6, v6, v4
    v_lshlrev_b32 v7, 10, v5
    v_lshl_add_u32 v7, v6, 4, v7
    v_add_u32 v20, s26, v7
    v_add_u32 v21, 0x2000, v20
    v_add_u32 v22, 0x4000, v20
    v_add_u32 v23, 0x6000, v20
    s_lshl_b32 s40, s{J}, 12
    v_lshlrev_b32 v51, 4, v1
    s_mov_b32 s12, s{S_WO}
    s_mov_b32 s13, s{S_WO+1}
    s_mov_b32 s14, {512*1024}
    s_mov_b32 s15, 0x00020000""".split("\n")
    misc += [f"v_mov_b32 v{i}, 0" for i in range(80, 92)]
    g = []
    for st in range(3):
        g.append(lambda st=st: (k.e(f"s_add_u32 s47, s32, {st*P1_SLOT}"), k.e(f"s_mov_b32 s37, {64*3072*st}")))
        g += w1("s47", "s37")
    merge(k, g, misc)
    def gW(srdn, soff, base):
        return [(lambda e_=e_: dma(k, 20+e_, srdn, soff, f"s_add_u32 m0, {base}, {1024*e_}")) for e_ in range(4)]
    def gX(soff, base):
        return [(lambda e_=e_: dma(k, 24+e_, 4, soff, f"s_add_u32 m0, {base}, {1024*e_}", SC1)) for e_ in range(4)]
    def run(lst):
        for f in lst: f()
    k.e(f"""
    s_movk_i32 s36, 384
    s_mov_b32 s37, {64*3072*3}
    s_mov_b32 s33, {3*P1_SLOT}
    s_mov_b32 s38, 0
    s_mov_b32 s45, s30
    s_waitcnt vmcnt(12)
    """)
    adv1 = f"""
    s_add_u32 s45, s45, {P1_SLOT}
    s_sub_u32 s46, s45, {P1_NS*P1_SLOT}
    s_cmp_ge_u32 s45, {P1_NS*P1_SLOT}
    s_cselect_b32 s45, s46, s45
    """
    L = k.lab("l1"); L15 = k.lab("l15")
    k.e(".p2align 6")
    k.e(f"""
    {L}:
    s_waitcnt vmcnt(15)
    s_barrier
    """)
    k.e("s_add_u32 s46, s33, s30"); k.e("s_add_u32 s47, s33, s32")
    run(x1("s46","s36") + w1("s47","s37"))
    k.e(f"""
    s_add_u32 s36, s36, 128
    s_add_u32 s37, s37, {64*3072}
    s_add_u32 s33, s33, {P1_SLOT}
    s_cmp_ge_u32 s33, {P1_NS*P1_SLOT}
    s_cselect_b32 s33, 0, s33
    """)
    k.e(f"""
    s_add_u32 s38, s38, 1
    s_cmp_lt_u32 s38, 5
    s_cbranch_scc1 {L}
    """)
    k.e("s_waitcnt vmcnt(18)"); k.e("s_barrier")
    LQ_ = k.lab("lgetn"); LXS = k.lab("lxs")
    srd(k, 16, S_WS, 32768, add=WS_XS)
    k.e(f"""
    v_mov_b32 v2, 0
    s_mov_b32 s59, 0
    s_mul_i32 s24, s{J}, 20
    v_min_u32 v6, 19, v1
    v_add_u32 v6, s24, v6
    v_add_u32 v7, s25, v6
    v_max_i32 v7, 0, v7
    v_lshlrev_b32 v7, 4, v7
    v_lshlrev_b32 v6, 3, v6
    v_add_u32 v6, {P1_SC}, v6
    {LQ_}:
    buffer_load_dword v3, v2, s[68:71], 0 offen sc1
    buffer_load_dwordx4 v[64:67], v7, s[16:19], 0 offen sc1
    s_waitcnt vmcnt(0)
    v_readfirstlane_b32 s{S_NONCE}, v3
    s_add_u32 s59, s59, 1
    s_cmp_ge_u32 s59, 400000
    s_cbranch_scc1 {LXS}
    s_cmp_eq_u32 s{S_NONCE}, 0
    s_cbranch_scc1 {LQ_}
    v_cmp_ne_u32 vcc, s{S_NONCE}, v66
    s_cmp_lg_u64 vcc, 0
    s_cbranch_scc1 {LQ_}
    {LXS}:
    ds_write_b64 v6, v[64:65]
    """)
    k.e(f"""
    s_cmp_ge_u32 s{J}, 2
    s_cselect_b32 s16, s{S_WU}, s{S_WG}
    s_cselect_b32 s17, s{S_WU+1}, s{S_WG+1}
    s_mov_b32 s18, {512*3584}
    s_mov_b32 s19, 0x00020000
    s_lshr_b32 s24, s2, 3
    s_mul_i32 s24, s24, 6
    s_and_b32 s29, s{J}, 1
    s_mul_i32 s29, s29, 3
    s_add_u32 s24, s24, s29
    s_mul_i32 s24, s24, 3584
    s_bfe_u32 s29, s2, 0x10002
    s_mul_i32 s29, s29, 1792
    s_add_u32 s28, s24, s29
    v_add_u32 v8, 1024, v51
    v_mov_b32 v9, 0x80000000
    v_cmp_gt_u32 vcc, 48, v1
    v_cndmask_b32 v46, v9, v8, vcc
    """)
    for st2 in range(2):
        k.e("s_barrier")
        k.e(f"s_mov_b32 s41, {st2*0x40000}"); k.e(f"s_add_u32 s46, s40, {P2_W+st2*32768}")
        k.e(f"s_mov_b32 s42, {st2*0x40000+0x20000}"); k.e(f"s_add_u32 s47, s40, {P2_W+st2*32768+16384}")
        run(gW(12,"s41","s46") + gW(12,"s42","s47"))
    k.e("s_waitcnt lgkmcnt(0)")
    k.e("s_barrier")
    k.e("s_barrier")
    for r in range(3):
        k.e(f"buffer_load_dwordx4 v[{128+8*r}:{131+8*r}], v51, s[16:19], s28 offen")
        k.e(f"buffer_load_dwordx4 v[{132+8*r}:{135+8*r}], v46, s[16:19], s28 offen")
        k.e("s_add_u32 s28, s28, 3584")
    def gx_setup(xstride):
        k.e(f"""
        v_lshrrev_b32 v3, 4, v1
        v_and_b32 v4, 15, v1
        s_lshl_b32 s24, s{J}, 4
        v_add_u32 v5, s24, v3
        s_lshl_b32 s25, s{S_RB64}, 6
        s_movk_i32 s42, {xstride}
        """)
        for e_ in range(4):
            if e_: k.e("v_add_u32 v5, 4, v5")
            k.e(f"""
            v_and_b32 v6, 15, v5
            v_xor_b32 v6, v6, v4
            v_add_u32 v7, s25, v5
            v_mul_lo_u32 v7, v7, s42
            v_lshl_add_u32 v{24+e_}, v6, 4, v7
            """)
    gx_setup(1024)
    srd(k, 4, S_WS, 2<<20, add=WS_O)
    k.e(f"""
    s_and_b32 s53, s2, 1
    s_lshr_b32 s52, s2, 1
    s_and_b32 s52, s52, 15
    s_lshr_b32 s54, s2, 5
    s_cmp_eq_u32 s53, 1
    s_cselect_b32 s16, s{S_WU}, s{S_WG}
    s_cselect_b32 s17, s{S_WU+1}, s{S_WG+1}
    v_mul_u32_u24 v6, 4682, v1
    v_lshrrev_b32 v6, 16, v6
    v_mul_u32_u24 v7, 14, v6
    v_sub_u32 v7, v1, v7
    v_mul_u32_u24 v8, 3584, v6
    v_lshl_add_u32 v8, v7, 4, v8
    s_mul_i32 s24, s52, 224
    s_lshl_b32 s29, s54, 2
    s_add_u32 s29, s29, s{J}
    s_mul_i32 s29, s29, {16*3584}
    s_add_u32 s24, s24, s29
    v_add_u32 v8, s24, v8
    v_mov_b32 v9, 0x80000000
    v_cmp_gt_u32 vcc, 56, v1
    v_cndmask_b32 v48, v9, v8, vcc
    s_mov_b32 s29, 0
    """)
    for e_ in range(4):
        k.e(f"buffer_load_dwordx4 v[{96+4*e_}:{99+4*e_}], v48, s[16:19], s29 offen"); k.e(f"s_add_u32 s29, s29, {4*3584}")
    for i in range(8): k.e(f"v_mov_b32 v{112+i}, 0")
    for e_ in range(4):
        k.e(f"s_waitcnt vmcnt({3-e_})")
        for d in range(4):
            t0 = 52 + 2*(d&1)
            k.e(f"v_lshlrev_b32 v{t0}, 16, v{96+4*e_+d}")
            k.e(f"v_and_b32 v{t0+1}, 0xffff0000, v{96+4*e_+d}")
            k.e(f"v_add_f32 v{112+2*d}, v{112+2*d}, v{t0}")
            k.e(f"v_add_f32 v{113+2*d}, v{113+2*d}, v{t0+1}")
    k.e(f"""
    v_add_u32 v50, 14, v1
    v_lshlrev_b32 v50, 2, v50
    v_add_u32 v49, 28, v1
    v_lshlrev_b32 v49, 2, v49
    """)
    for i in range(8): k.e(f"ds_bpermute_b32 v{64+i}, v50, v{112+i}")
    k.e("s_waitcnt lgkmcnt(0)")
    for i in range(8): k.e(f"v_add_f32 v{112+i}, v{112+i}, v{64+i}")
    for i in range(8): k.e(f"ds_bpermute_b32 v{64+i}, v49, v{112+i}")
    k.e("s_waitcnt lgkmcnt(0)")
    for i in range(8): k.e(f"v_add_f32 v{112+i}, v{112+i}, v{64+i}")
    srd(k, 16, S_WS, 1<<20, add=WS_CS)
    k.e("s_barrier")
    m3 = [f"s_mul_i32 s26, s{S_FB}, 224", "v_mov_b32 v5, v1"]
    for e_ in range(7):
        if e_: m3.append("v_add_u32 v5, 64, v5")
        m3 += f"""v_mul_u32_u24 v6, 4682, v5
        v_lshrrev_b32 v6, 16, v6
        v_mul_u32_u24 v7, 14, v6
        v_sub_u32 v7, v5, v7
        v_mul_u32_u24 v6, 3584, v6
        v_lshl_add_u32 v6, v7, 4, v6
        v_add_u32 v{30+e_}, s26, v6""".split("\n")
    m3 += f"""s_cmp_ge_u32 s{J}, 2
    s_cselect_b32 s8, s{S_WU}, s{S_WG}
    s_cselect_b32 s9, s{S_WU+1}, s{S_WG+1}
    s_mov_b32 s10, {512*3584}
    s_mov_b32 s11, 0x00020000
    s_cselect_b32 s44, {P3_UOFF}, 0
    s_and_b32 s24, s{J}, 1
    s_mul_i32 s45, s24, 7168
    s_add_u32 s44, s44, s45
    s_add_u32 s44, s44, {P3_W}
    s_mul_i32 s41, s24, {32*3584}
    v_lshrrev_b32 v3, 3, v1
    v_and_b32 v4, 7, v1
    s_lshl_b32 s24, s{J}, 5
    v_add_u32 v5, s24, v3
    s_lshl_b32 s25, s{S_RB128}, 7""".split("\n")
    for e_ in range(4):
        if e_: m3.append("v_add_u32 v5, 8, v5")
        m3 += f"""v_bfe_u32 v6, v5, 1, 3
        v_xor_b32 v6, v6, v4
        v_add_u32 v7, s25, v5
        v_lshlrev_b32 v7, 10, v7
        v_lshl_add_u32 v{40+e_}, v6, 4, v7""".split("\n")
    m3 += [f"v_mov_b32 v{i}, 0" for i in range(80, 96)]
    g = []
    for st in range(4):
        g.append(lambda st=st: (k.e(f"s_movk_i32 s43, {st*256}"), k.e(f"s_add_u32 s46, s40, {P2_X+st*16384}")))
        g += gX("s43", "s46")
    merge(k, g, m3)
    k.e(f"""
    v_min_u32 v50, 15, v1
    v_lshlrev_b32 v50, 5, v50
    s_lshl_b32 s24, s{J}, 9
    s_add_u32 s24, s24, 1024
    v_add_u32 v50, s24, v50
    v_cmp_gt_u32 vcc, 14, v1
    s_and_saveexec_b64 s[60:61], vcc
    ds_write_b128 v50, v[112:115]
    ds_write_b128 v50, v[116:119] offset:16
    s_mov_b64 exec, s[60:61]
    s_waitcnt vmcnt(12) lgkmcnt(0)
    s_barrier
    """)
    LJ0 = k.lab("csj0")
    k.e(f"""
    s_cmp_lg_u32 s{J}, 0
    s_cbranch_scc1 {LJ0}
    v_min_u32 v50, 31, v1
    v_lshlrev_b32 v50, 4, v50
    ds_read_b128 v[96:99], v50 offset:1024
    ds_read_b128 v[100:103], v50 offset:1536
    ds_read_b128 v[104:107], v50 offset:2048
    ds_read_b128 v[108:111], v50 offset:2560
    s_lshl_b32 s48, s52, 4
    s_lshl_b32 s49, s53, 3
    s_add_u32 s49, s49, s54
    s_add_u32 s48, s48, s49
    s_lshl_b32 s48, s48, 9
    v_add_u32 v8, s48, v51
    v_mov_b32 v9, 0x80000000
    v_cmp_gt_u32 vcc, 28, v1
    v_cndmask_b32 v8, v9, v8, vcc
    s_waitcnt lgkmcnt(0)
    """)
    for w in range(1,4):
        for i in range(4): k.e(f"v_add_f32 v{96+i}, v{96+i}, v{96+4*w+i}")
    k.e("buffer_store_dwordx4 v[96:99], v8, s[16:19], 0 offen sc1")
    k.e(f"{LJ0}:")
    for st in range(1,4):
        k.e(f"s_waitcnt vmcnt({12-4*st})"); k.e("s_barrier")
    LJ1 = k.lab("csj1")
    k.e(f"""
    s_cmp_lg_u32 s{J}, 0
    s_cbranch_scc1 {LJ1}
    s_lshl_b32 s47, s52, 7
    s_add_u32 s47, s47, 24576
    s_lshl_b32 s49, s49, 2
    s_add_u32 s47, s47, s49
    s_lshl_b32 s47, s47, 5
    v_mov_b32 v2, s47
    v_mov_b32 v3, s{S_NONCE}
    buffer_store_dword v3, v2, s[64:67], 0 offen sc1
    {LJ1}:
    """)
    def p3W(sbase):
        return [(lambda e_=e_: dma(k, 30+e_, 8, "s41", f"s_add_u32 m0, {sbase}, {1024*e_}")) for e_ in range(7)] + [lambda: k.e(f"s_add_u32 s41, s41, {64*3584}")]
    def p3X(sbase):
        return [(lambda e_=e_: dma(k, 40+e_, 4, "s43", f"s_add_u32 m0, {sbase}, {1024*e_}", SC1)) for e_ in range(4)] + [lambda: k.e("s_add_u32 s43, s43, 128")]
    k.e("s_barrier"); k.e("s_barrier")
    if FINE == 8: stamp(k)
    for st in range(3):
        k.e(f"s_add_u32 s46, s44, {st*P3_WS}"); run(p3W("s46"))
    srd(k, 4, S_WS, 2<<20, add=WS_H)
    if FINE == 8: stamp(k)
    k.e("s_barrier")
    k.e("s_mov_b32 s43, 0")
    k.e(f"s_add_u32 s45, s40, {P3_X}")
    for st in range(3):
        k.e(f"s_add_u32 s46, s45, {st*P3_XS}"); run(p3X("s46"))
    adv3 = f"""
    s_add_u32 s48, s48, {P3_XS}
    s_sub_u32 s46, s48, {3*P3_XS}
    s_add_u32 s47, s45, {3*P3_XS}
    s_cmp_ge_u32 s48, s47
    s_cselect_b32 s48, s46, s48
    """
    k.e("s_mov_b32 s48, s45")
    k.e(f"""
    s_mov_b32 s12, s{S_WD}
    s_mov_b32 s13, s{S_WD+1}
    s_mov_b32 s14, {1792*1024}
    s_mov_b32 s15, 0x00020000
    v_lshrrev_b32 v6, 5, v1
    v_and_b32 v7, 31, v1
    v_lshlrev_b32 v7, 4, v7
    v_lshl_add_u32 v47, v6, 10, v7
    s_lshr_b32 s24, s2, 3
    s_mul_i32 s24, s24, 56
    s_mul_i32 s29, s{J}, 14
    s_add_u32 s24, s24, s29
    s_lshl_b32 s24, s24, 10
    s_bfe_u32 s29, s2, 0x10002
    s_lshl_b32 s29, s29, 9
    s_add_u32 s50, s24, s29
    """)
    k.e("s_waitcnt vmcnt(8)"); k.e("s_barrier")
    for _ in range(2):
        k.e("buffer_load_dwordx4 v[160:163], v47, s[12:15], s50 offen"); k.e("s_add_u32 s50, s50, 2048")
    k.e("s_mov_b32 s38, 1"); k.e("s_mov_b32 s39, 0"); k.e("s_waitcnt vmcnt(6)")
    L = k.lab("l3")
    k.e(".p2align 6")
    k.e(f"""
    {L}:
    s_waitcnt vmcnt(12)
    s_barrier
    """)
    k.e(f"""
    s_mul_i32 s46, s39, {P3_XS}
    s_add_u32 s46, s46, s45
    s_mul_i32 s47, s39, {P3_WS}
    s_add_u32 s47, s47, s44
    """)
    merge(k, p3X("s46") + p3W("s47") + [lambda: (k.e("buffer_load_dwordx4 v[160:163], v47, s[12:15], s50 offen"), k.e("s_add_u32 s50, s50, 2048"))], [])
    k.e(f"""
    s_add_u32 s39, s39, 1
    s_cmp_ge_u32 s39, 3
    s_cselect_b32 s39, 0, s39
    """)
    k.e(f"""
    s_add_u32 s38, s38, 1
    s_cmp_lt_u32 s38, 6
    s_cbranch_scc1 {L}
    s_waitcnt vmcnt(12)
    s_barrier
    """)
    srd(k, 12, S_WS, 131072, add=WS_HS)
    k.e(f"""
    s_lshl_b32 s24, s{S_RB128}, 7
    s_lshl_b32 s29, s{J}, 5
    s_add_u32 s24, s24, s29
    s_lshl_b32 s24, s24, 6
    v_add_u32 v6, s24, v51
    buffer_load_dwordx4 v[64:67], v6, s[12:15], 0 offen sc1
    buffer_load_dwordx4 v[68:71], v6, s[12:15], 0 offen offset:1024 sc1
    """)
    k.e(f"""
    s_lshl_b32 s46, s{S_FB}, 4
    s_and_b32 s49, s{J}, 1
    s_lshl_b32 s49, s49, 3
    s_add_u32 s46, s46, s49
    s_lshl_b32 s46, s46, 9
    v_lshlrev_b32 v8, 4, v1
    v_add_u32 v8, s46, v8
    v_mov_b32 v9, 0x80000000
    v_cmp_gt_u32 vcc, 28, v1
    v_cndmask_b32 v8, v9, v8, vcc
    """)
    for kp in range(8): k.e(f"buffer_load_dwordx4 v[{96+4*kp}:{99+4*kp}], v8, s[16:19], 0 offen offset:{512*kp} sc1")
    k.e("s_waitcnt vmcnt(11)"); k.e("s_barrier")
    k.e("s_waitcnt vmcnt(0)")
    for b0 in (64, 68):
        k.e(f"v_add_f32 v{b0}, v{b0}, v{b0+2}"); k.e(f"v_add_f32 v{b0+1}, v{b0+1}, v{b0+3}")
    for perm in ("quad_perm:[1,0,3,2]", "quad_perm:[2,3,0,1]"):
        for r in (64,65,68,69): k.e(f"v_add_f32_dpp v{r}, v{r}, v{r} {perm} row_mask:0xf bank_mask:0xf")
    k.e(f"""
    v_lshrrev_b32 v6, 2, v1
    s_lshl_b32 s24, s{J}, 5
    v_add_u32 v6, s24, v6
    v_lshlrev_b32 v6, 3, v6
    v_add_u32 v6, {P3_ST}, v6
    ds_write_b64 v6, v[64:65]
    ds_write_b64 v6, v[68:69] offset:128
    """)
    for kp in range(1,8):
        for i in range(4): k.e(f"v_add_f32 v{96+i}, v{96+i}, v{96+4*kp+i}")
    k.e(f"""
    v_lshrrev_b32 v8, 2, v1
    v_lshlrev_b32 v8, 7, v8
    v_and_b32 v9, 3, v1
    v_lshl_add_u32 v8, v9, 4, v8
    s_and_b32 s46, s{J}, 1
    s_lshl_b32 s46, s46, 6
    s_add_u32 s46, s46, {P3_CS}
    v_add_u32 v8, s46, v8
    ds_write_b128 v8, v[96:99]
    """)
    k.e(f"""
    s_and_b32 s24, s{J}, 1
    s_mul_i32 s24, s24, 448
    v_add_u32 v5, s24, v1
    s_and_b32 s25, s{S_RB64}, 1
    s_mul_i32 s25, s25, {64*224}
    s_lshr_b32 s29, s{S_RB64}, 1
    s_mul_i32 s29, s29, {16*28672}
    s_add_u32 s25, s25, s29
    s_lshl_b32 s26, s{S_CB}, 7
    """)
    LWS = k.lab("p4ws"); LWD = k.lab("p4wd")
    k.e(f"s_cmp_ge_u32 s{J}, 2"); k.e(f"s_cbranch_scc1 {LWS}")
    for e_ in range(7):
        if e_: k.e("v_add_u32 v5, 64, v5")
        k.e(f"""
        v_mul_u32_u24 v6, 4682, v5
        v_lshrrev_b32 v6, 16, v6
        v_mul_u32_u24 v7, 14, v6
        v_sub_u32 v7, v5, v7
        v_bfe_u32 v8, v6, 3, 1
        v_xor_b32 v7, v7, v8
        v_mul_u32_u24 v6, 224, v6
        v_lshl_add_u32 v6, v7, 4, v6
        v_add_u32 v{24+e_}, s25, v6
        """)
    srd(k, 4, S_WS, 7<<20, add=WS_HH)
    k.e(f"""
    s_mov_b32 s42, 28672
    s_mul_i32 s44, s{J}, 7168
    s_add_u32 s44, s44, {P4_X}
    s_branch {LWD}
    {LWS}:
    v_lshrrev_b32 v6, 3, v5
    v_and_b32 v7, 7, v5
    v_bfe_u32 v8, v6, 1, 1
    v_lshlrev_b32 v8, 2, v8
    v_xor_b32 v7, v7, v8
    v_lshlrev_b32 v6, 10, v6
    v_lshl_add_u32 v6, v7, 4, v6
    v_add_u32 v24, s26, v6
    """)
    for e_ in range(1,7): k.e(f"v_add_u32 v{24+e_}, {8192*e_}, v24")
    srd(k, 4, S_WD, 1792*1024)
    k.e(f"""
    s_mov_b32 s42, {112*1024}
    s_and_b32 s44, s{J}, 1
    s_mul_i32 s44, s44, 7168
    s_add_u32 s44, s44, {P4_W}
    {LWD}:
    s_mov_b32 s43, 0
    """)
    def p4(sbase):
        for e_ in range(7): dma(k, 24+e_, 4, "s43", f"s_add_u32 m0, {sbase}, {1024*e_}", SC1)
        k.e("s_add_u32 s43, s43, s42")
    def prefill4():
        Lf = k.lab("p4f")
        k.e("s_mov_b32 s46, s44"); k.e("s_mov_b32 s38, 0")
        k.e(f"{Lf}:")
        p4("s46")
        k.e(f"""
        s_add_u32 s46, s46, {P4_SL}
        s_add_u32 s38, s38, 1
        s_cmp_lt_u32 s38, {P4_NS}
        s_cbranch_scc1 {Lf}
        """)
    k.e("s_waitcnt lgkmcnt(0)")
    k.e("s_barrier")
    LX = k.lab("p4x"); LJ = k.lab("p4j")
    k.e(f"s_cmp_lt_u32 s{J}, 2"); k.e(f"s_cbranch_scc1 {LX}")
    prefill4()
    k.e("s_barrier"); k.e("s_barrier")
    k.e(f"s_branch {LJ}")
    k.e(f"{LX}:")
    k.e("s_barrier"); k.e("s_barrier")
    prefill4()
    k.e(f"{LJ}:")
    k.e("s_waitcnt vmcnt(28)"); k.e("s_barrier")
    k.e(f"""
    s_mov_b32 s38, 1
    s_mov_b32 s46, s44
    s_add_u32 s48, s44, {P4_NS*P4_SL}
    """)
    L = k.lab("l4")
    k.e(".p2align 6")
    k.e(f"""
    {L}:
    s_waitcnt vmcnt(21)
    s_barrier
    """)
    p4("s46")
    k.e(f"""
    s_add_u32 s46, s46, {P4_SL}
    s_cmp_ge_u32 s46, s48
    s_cselect_b32 s46, s44, s46
    s_add_u32 s38, s38, 1
    s_cmp_lt_u32 s38, 12
    s_cbranch_scc1 {L}
    s_waitcnt vmcnt(21)
    s_barrier
    s_waitcnt vmcnt(14)
    s_barrier
    s_waitcnt vmcnt(7)
    s_barrier
    s_waitcnt vmcnt(0)
    s_barrier
    s_barrier
    s_barrier
    """)
    stamp(k)


P1_CSP = P1_SC2 + 4608
def cs_job(k):
    k.e(f"""
    s_and_b32 s73, s2, 1
    s_lshr_b32 s72, s2, 1
    s_and_b32 s72, s72, 15
    s_lshr_b32 s63, s2, 5
    s_cmp_eq_u32 s73, 1
    s_cselect_b32 s8, s{S_WU}, s{S_WG}
    s_cselect_b32 s9, s{S_WU+1}, s{S_WG+1}
    s_mov_b32 s10, {512*3584}
    s_mov_b32 s11, 0x00020000
    v_mul_u32_u24 v6, 4682, v1
    v_lshrrev_b32 v6, 16, v6
    v_mul_u32_u24 v7, 14, v6
    v_sub_u32 v7, v1, v7
    v_mul_u32_u24 v8, 3584, v6
    v_lshl_add_u32 v8, v7, 4, v8
    s_mul_i32 s24, s72, 224
    s_lshl_b32 s29, s63, 3
    s_add_u32 s29, s29, s{S_W}
    s_mul_i32 s29, s29, {8*3584}
    s_add_u32 s24, s24, s29
    v_add_u32 v8, s24, v8
    v_mov_b32 v9, 0x80000000
    v_cmp_gt_u32 vcc, 56, v1
    v_cndmask_b32 v8, v9, v8, vcc
    s_movk_i32 s29, {4*3584}
    buffer_load_dwordx4 v[148:151], v8, s[8:11], 0 offen
    buffer_load_dwordx4 v[152:155], v8, s[8:11], s29 offen
    """)
def cs_job2(k):
    for i in range(8): k.e(f"v_mov_b32 v{40+i}, 0")
    for e_ in range(2):
        k.e(f"s_waitcnt vmcnt({1-e_})")
        for d in range(4):
            t0 = 52 + 2*(d&1)
            k.e(f"v_lshlrev_b32 v{t0}, 16, v{148+4*e_+d}")
            k.e(f"v_and_b32 v{t0+1}, 0xffff0000, v{148+4*e_+d}")
            k.e(f"v_add_f32 v{40+2*d}, v{40+2*d}, v{t0}")
            k.e(f"v_add_f32 v{41+2*d}, v{41+2*d}, v{t0+1}")
    k.e("v_add_u32 v50, 14, v1"); k.e("v_lshlrev_b32 v50, 2, v50")
    k.e("v_add_u32 v49, 28, v1"); k.e("v_lshlrev_b32 v49, 2, v49")
    for i in range(8): k.e(f"ds_bpermute_b32 v{148+i}, v50, v{40+i}")
    k.e("s_waitcnt lgkmcnt(0)")
    for i in range(8): k.e(f"v_add_f32 v{40+i}, v{40+i}, v{148+i}")
    for i in range(8): k.e(f"ds_bpermute_b32 v{148+i}, v49, v{40+i}")
    k.e("s_waitcnt lgkmcnt(0)")
    for i in range(8): k.e(f"v_add_f32 v{40+i}, v{40+i}, v{148+i}")
    k.e(f"""
    v_min_u32 v50, 15, v1
    v_lshlrev_b32 v50, 5, v50
    s_lshl_b32 s24, s{S_W}, 9
    s_add_u32 s24, s24, {P1_CSP}
    v_add_u32 v50, s24, v50
    v_cmp_gt_u32 vcc, 14, v1
    s_and_saveexec_b64 s[60:61], vcc
    ds_write_b128 v50, v[40:43]
    ds_write_b128 v50, v[44:47] offset:16
    s_mov_b64 exec, s[60:61]
    """)
def cs_job3(k):
    L = k.lab("csj3")
    k.e(f"""
    s_cmp_lg_u32 s{S_W}, 0
    s_cbranch_scc1 {L}
    v_min_u32 v50, 31, v1
    v_lshlrev_b32 v50, 4, v50
    v_add_u32 v50, {P1_CSP}, v50
    """)
    for w in range(8): k.e(f"ds_read_b128 v[{104+4*w}:{107+4*w}], v50 offset:{512*w}")
    srd(k, 8, S_WS, 1<<20, add=WS_CS)
    k.e(f"""
    s_lshl_b32 s24, s72, 4
    s_lshl_b32 s29, s73, 3
    s_add_u32 s29, s29, s63
    s_add_u32 s24, s24, s29
    s_lshl_b32 s24, s24, 9
    v_lshlrev_b32 v51, 4, v1
    v_add_u32 v51, s24, v51
    v_mov_b32 v9, 0x80000000
    v_cmp_gt_u32 vcc, 28, v1
    v_cndmask_b32 v51, v9, v51, vcc
    s_waitcnt lgkmcnt(0)
    """)
    for w in range(1,8):
        for i in range(4): k.e(f"v_add_f32 v{104+i}, v{104+i}, v{104+4*w+i}")
    k.e("buffer_store_dwordx4 v[104:107], v51, s[8:11], 0 offen sc1")
    k.e(f"{L}:")
def czero(k, addr):
    k.e(f"v_mov_b32 v2, {addr}"); k.e("v_mov_b32 v5, 0"); k.e("ds_write_b32 v2, v5")
def sync(k, cnt, pubs, polls, first=False):
    L = k.lab("sync"); LC_ = k.lab("cw")
    k.e(f"""
    v_mov_b32 v2, {cnt}
    v_mov_b32 v5, 1
    """)
    if FINE == 8: stamp(k)
    k.e("s_waitcnt vmcnt(0)")
    if FINE == 8: stamp(k)
    k.e(f"""
    s_mov_b64 s[60:61], exec
    s_mov_b64 exec, 1
    ds_add_u32 v2, v5
    s_mov_b64 exec, s[60:61]
    """)
    k.e(f"s_cmp_lg_u32 s{S_W}, 0"); k.e(f"s_cbranch_scc1 {L}")
    if first:
        LQ_ = k.lab("getn")
        k.e(f"""
        v_mov_b32 v2, 0
        s_mov_b32 s59, 0
        {LQ_}:
        buffer_load_dword v3, v2, s[68:71], 0 offen sc1
        s_waitcnt vmcnt(0)
        v_readfirstlane_b32 s{S_NONCE}, v3
        s_add_u32 s59, s59, 1
        s_cmp_lg_u32 s{S_NONCE}, 0
        s_cbranch_scc1 {LQ_}_d
        s_cmp_lt_u32 s59, 400000
        s_cbranch_scc1 {LQ_}
        {LQ_}_d:
        """)
    k.e(f"""
    v_mov_b32 v2, {cnt}
    {LC_}:
    ds_read_b32 v5, v2
    s_waitcnt lgkmcnt(0)
    v_readfirstlane_b32 s59, v5
    s_cmp_lt_u32 s59, 8
    s_cbranch_scc1 {LC_}
    """)
    if FINE == 8: stamp(k)
    k.e(f"v_mov_b32 v3, s{S_NONCE}")
    for code in pubs:
        k.e(code)
        k.e("s_lshl_b32 s59, s59, 5")
        k.e("v_mov_b32 v2, s59")
        k.e("buffer_store_dword v3, v2, s[64:67], 0 offen sc1")
    (code, nwords) = polls[0]
    k.e(code)
    k.e(f"""
    v_and_b32 v2, {nwords-1}, v1
    v_lshlrev_b32 v2, 7, v2
    s_lshl_b32 s58, s58, 5
    v_add_u32 v2, s58, v2
    """)
    if len(polls) > 1:
        k.e(polls[1][0])
        k.e(f"""
        v_and_b32 v5, 15, v1
        v_lshlrev_b32 v5, 7, v5
        s_lshl_b32 s58, s58, 5
        v_add_u32 v5, s58, v5
        v_cmp_gt_u32 vcc, 32, v1
        v_cndmask_b32 v2, v5, v2, vcc
        """)
    Lp = k.lab("poll"); D = k.lab("polld")
    k.e(f"""
    s_mov_b32 s59, 0
    {Lp}:
    s_sleep {PSLEEP}
    buffer_load_dword v3, v2, s[64:67], 0 offen sc1
    s_waitcnt vmcnt(0)
    v_cmp_ne_u32 vcc, s{S_NONCE}, v3
    s_add_u32 s59, s59, 1
    s_cmp_eq_u64 vcc, 0
    s_cbranch_scc1 {D}
    s_cmp_lt_u32 s59, 400000
    s_cbranch_scc1 {Lp}
    {D}:
    """)
    if FINE == 8: stamp(k)
    k.e(f"{L}:")
    k.e("s_barrier")
    if FINE == 8: stamp(k)

def interleave(k, mfmas, fillers):
    n = len(mfmas); m = len(fillers); fi = 0
    for i, mf in enumerate(mfmas):
        mf()
        upto = (m*(i+1))//n
        while fi < upto:
            fillers[fi](); fi += 1

def xstats(k):
    srd(k, 8, S_X, 2<<20); srd(k, 12, S_WS, 32768, add=WS_XS)
    LQ_ = k.lab("getn0")
    k.e(f"""
    s_lshl_b32 s24, s2, 3
    s_add_u32 s24, s24, s{S_W}
    s_lshl_b32 s29, s24, 10
    v_lshlrev_b32 v5, 4, v1
    buffer_load_dwordx4 v[40:43], v5, s[8:11], s29 offen
    v_mov_b32 v2, 0
    s_mov_b32 s59, 0
    {LQ_}:
    buffer_load_dword v3, v2, s[68:71], 0 offen sc1
    s_waitcnt vmcnt(0)
    v_readfirstlane_b32 s{S_NONCE}, v3
    s_add_u32 s59, s59, 1
    s_cmp_lg_u32 s{S_NONCE}, 0
    s_cbranch_scc1 {LQ_}_d
    s_cmp_lt_u32 s59, 400000
    s_cbranch_scc1 {LQ_}
    {LQ_}_d:
    v_mov_b32 v44, 0
    v_mov_b32 v45, 0
    """)
    for d in range(4):
        k.e(f"""
        v_lshlrev_b32 v48, 16, v{40+d}
        v_and_b32 v49, 0xffff0000, v{40+d}
        v_add_f32 v44, v44, v48
        v_fmac_f32 v45, v48, v48
        v_add_f32 v44, v44, v49
        v_fmac_f32 v45, v49, v49
        """)
    for perm in ("quad_perm:[1,0,3,2]", "quad_perm:[2,3,0,1]", "row_half_mirror", "row_mirror"):
        for r in (44,45): k.e(f"v_add_f32_dpp v{r}, v{r}, v{r} {perm} row_mask:0xf bank_mask:0xf")
    for r in (44,45): red16(k, r, 48); red32(k, r, 48)
    k.e(f"""
    v_mov_b32 v46, s{S_NONCE}
    v_mov_b32 v47, 0
    s_lshl_b32 s24, s24, 4
    v_mov_b32 v5, s24
    s_mov_b64 s[60:61], exec
    s_mov_b64 exec, 1
    buffer_store_dwordx4 v[44:47], v5, s[12:15], 0 offen sc1
    s_mov_b64 exec, s[60:61]
    """)

def p1(k):
    NS, SLOT, WOFF, nst = P1_NS, P1_SLOT, P1_WOFF, 8
    xstats(k)
    k.e(f"""
    s_and_b32 s27, s{S_W}, 3
    s_lshr_b32 s28, s{S_W}, 2
    v_and_b32 v3, 15, v1
    v_lshrrev_b32 v4, 4, v1
    v_lshrrev_b32 v5, 1, v3
    v_xor_b32 v5, v5, v4
    v_lshlrev_b32 v5, 4, v5
    v_lshlrev_b32 v6, 7, v3
    v_add_u32 v9, v5, v6
    v_lshrrev_b32 v5, 2, v3
    v_and_b32 v6, 3, v3
    v_lshlrev_b32 v7, 3, v4
    v_add_u32 v7, v5, v7
    v_mul_u32_u24 v7, 384, v7
    v_lshrrev_b32 v5, 1, v5
    v_and_b32 v8, 1, v4
    v_lshlrev_b32 v8, 1, v8
    v_or_b32 v5, v5, v8
    v_xor_b32 v5, s27, v5
    v_lshlrev_b32 v5, 5, v5
    v_add_u32 v7, v7, v5
    v_lshlrev_b32 v6, 3, v6
    v_add_u32 v7, v7, v6
    v_add_u32 v18, {WOFF}, v7
    s_mov_b32 s55, 0x3f803f80
    """)
    k.e(f"""
    s_cmp_eq_u32 s27, 3
    s_cselect_b32 s50, 0, s27
    s_add_u32 s51, s50, 1
    s_cmp_ge_u32 s51, 3
    s_cselect_b32 s54, 3, 0
    s_sub_u32 s51, s51, s54
    s_add_u32 s52, s50, 2
    s_cmp_ge_u32 s52, 3
    s_cselect_b32 s54, 3, 0
    s_sub_u32 s52, s52, s54
    s_and_b32 s53, s27, 1
    s_add_u32 s54, s53, 3
    s_xor_b32 s53, s53, 1
    s_add_u32 s53, s53, 3
    s_cmp_eq_u32 s28, 0
    s_cselect_b32 s50, s50, s54
    s_cselect_b32 s51, s51, s53
    """)
    for t in range(3):
        k.e(f"s_lshl_b32 s24, s{50+t}, 11")
        k.e(f"v_add_u32 v{10+2*t}, s24, v9")
        k.e(f"v_xor_b32 v{11+2*t}, 64, v{10+2*t}")
    for i in range(22, 31): k.e(f"v_mov_b32 v{i}, 0")
    for i in range(36): k.e(f"v_mov_b32 v{64+i}, 0")
    for i in range(124, 148): k.e(f"v_mov_b32 v{i}, 0")
    srd(k, 16, S_WS, 2<<20, add=WS_O)
    k.e(f"""
    s_mov_b32 s49, {(-(NS-1)*SLOT) & 0xffffffff}
    s_mov_b32 s56, {SLOT}
    s_mov_b32 s38, 0
    s_mov_b32 s39, 0
    v_lshrrev_b32 v5, 3, v1
    v_and_b32 v5, 3, v5
    v_mul_u32_u24 v5, {SLOT}, v5
    v_and_b32 v6, 7, v1
    v_lshlrev_b32 v6, 4, v6
    v_add_u32 v5, v5, v6
    v_mov_b32 v32, s55
    v_mov_b32 v33, s55
    v_mov_b32 v34, s55
    v_mov_b32 v35, s55
    ds_write_b128 v5, v[32:35]
    """)
    WB = [100, 124]; XB = [112, 136]
    def body(NT, th):
        q = LQ(k)
        def read_list(jj):
            out = []
            def w(u, h):
                return lambda: q.rd(("W",jj,u), f"ds_read_b64_tr_b16 v[{WB[jj]+4*u+2*h}:{WB[jj]+4*u+2*h+1}], v18 offset:{128*u+(32*jj+4*h)*384}")
            def x(t):
                return lambda: q.rd(("X",jj,t), f"ds_read_b128 v[{XB[jj]+4*t}:{XB[jj]+4*t+3}], v{10+2*t+jj}")
            out += [x(0), w(0,0), w(0,1), w(1,0), w(1,1), w(2,0), w(2,1)]
            for t in range(1, NT): out.append(x(t))
            return out
        def dots(jj):
            out = []
            x = XB[jj]
            for d in range(4):
                t0 = 32 + 2*(d&1)
                out.append(lambda d=d,t0=t0: k.e(f"v_lshlrev_b32 v{t0}, 16, v{x+d}"))
                out.append(lambda d=d,t0=t0: k.e(f"v_and_b32 v{t0+1}, 0xffff0000, v{x+d}"))
                out.append(lambda d=d,t0=t0: k.e(f"v_add_f32 v22, v22, v{t0}"))
                out.append(lambda d=d,t0=t0: k.e(f"v_add_f32 v26, v26, v{t0+1}"))
                out.append(lambda d=d,t0=t0: k.e(f"v_fmac_f32 v23, v{t0}, v{t0}"))
                out.append(lambda d=d,t0=t0: k.e(f"v_fmac_f32 v27, v{t0+1}, v{t0+1}"))
            return out
        def step(jj, nxt, waits):
            mf = []
            for t in range(NT):
                for u in range(3):
                    def f(t=t, u=u):
                        if waits: q.wait([("W",jj,u), ("X",jj,t)])
                        a = 64+12*t+4*u; x = XB[jj]+4*t
                        k.e(f"v_mfma_f32_16x16x32_bf16 v[{a}:{a+3}], v[{WB[jj]+4*u}:{WB[jj]+4*u+3}], v[{x}:{x+3}], v[{a}:{a+3}]")
                    mf.append(f)
            rl = read_list(nxt) if nxt is not None else []
            dl = []
            fill = []
            n = len(mf)
            interleave(k, mf[:3], rl[:4])
            interleave(k, mf[3:], rl[4:] + dl)
        LOOP = k.lab("loop")
        k.e(".p2align 6")
        k.e(f"{LOOP}:")
        k.e(f"s_waitcnt lgkmcnt(0)")
        q.q = []
        if FINE == 1: stamp(k)
        k.e("s_barrier")
        if FINE == 1: stamp(k)
        k.e(f"""
        s_add_u32 s39, s39, 1
        s_cmp_ge_u32 s39, {NS}
        s_cselect_b32 s48, s49, s56
        s_cselect_b32 s39, 0, s39
        s_add_u32 s38, s38, 1
        """)
        step(1, 0, False)
        step(0, 1, True)
        for r in list(range(10, 10+2*NT)) + [18]: k.e(f"v_add_u32 v{r}, s48, v{r}")
        k.e(f"""
        s_cmp_lt_u32 s38, {nst}
        s_cbranch_scc1 {LOOP}
        s_waitcnt lgkmcnt(0)
        """)
        q.q = []
        step(1, None, False)
        if th == 0:
            k.e(f"""
            s_lshl_b32 s57, s27, 6
            s_add_u32 s57, s57, {P1_SC2}
            v_lshlrev_b32 v32, 4, v4
            v_add_u32 v32, s57, v32
            v_mov_b32 v33, {P1_SC2 + 2304}
            v_cmp_eq_u32 vcc, 0, v3
            v_cndmask_b32 v32, v33, v32, vcc
            """)
            for t in range(3):
                k.e(f"s_mul_i32 s57, s{50+t}, 768")
                k.e(f"v_add_u32 v33, s57, v32")
                for u in range(3):
                    a = 64+12*t+4*u
                    k.e(f"ds_write_b128 v33, v[{a}:{a+3}] offset:{256*u}")
        k.e("s_waitcnt lgkmcnt(0)")
        if FINE == 4: stamp(k)
        k.e("s_barrier")
        if FINE == 4: stamp(k)
        k.e(f"""
        v_lshlrev_b32 v31, 3, v3
        v_add_u32 v31, {P1_SC}, v31
        s_lshl_b32 s57, s27, 6
        s_add_u32 s57, s57, {P1_SC2}
        v_lshlrev_b32 v32, 4, v4
        v_add_u32 v32, s57, v32
        v_mul_u32_u24 v40, {RS}, v3
        v_lshlrev_b32 v41, 3, v4
        v_add_u32 v40, v40, v41
        s_lshl_b32 s57, s27, 5
        v_add_u32 v40, s57, v40
        """)
        for t in range(NT):
            k.e(f"s_lshl_b32 s57, s{50+t}, 7")
            k.e(f"v_add_u32 v33, s57, v31")
            k.e(f"ds_read_b64 v[{34+2*t}:{35+2*t}], v33")
            k.e(f"s_mul_i32 s57, s{50+t}, {16*RS}")
            k.e(f"v_add_u32 v{42+t}, s57, v40")
        for u4 in range(3): k.e(f"ds_read_b128 v[{124+4*u4}:{127+4*u4}], v32 offset:{256*u4}")
        k.e("s_waitcnt lgkmcnt(0)")
        for t in range(NT):
            k.e(f"v_mov_b32 v22, v{34+2*t}"); k.e(f"v_mov_b32 v23, v{35+2*t}")
            ln_stats(k, 22, 23, 34+2*t, 35+2*t, 31)
        for t in range(NT):
            k.e(f"v_mul_f32 v{34+2*t}, v{34+2*t}, v{35+2*t}")
            k.e(f"v_sub_f32 v{34+2*t}, 0, v{34+2*t}")
        for u in range(3):
            for t in range(NT):
                a = 64+12*t+4*u
                for i in range(4): k.e(f"v_mul_f32 v{a+i}, v{35+2*t}, v{a+i}")
                for i in range(4): k.e(f"v_fmac_f32 v{a+i}, v{34+2*t}, v{124+4*u+i}")
                k.e(f"v_cvt_pk_bf16_f32 v{a}, v{a}, v{a+1}")
                k.e(f"v_cvt_pk_bf16_f32 v{a+1}, v{a+2}, v{a+3}")
                k.e(f"ds_write_b64 v{42+t}, v[{a}:{a+1}] offset:{128*u}")
    L1 = k.lab("th1"); LA = k.lab("attn")
    k.e("s_cmp_eq_u32 s28, 0"); k.e(f"s_cbranch_scc0 {L1}")
    body(3, 0)
    k.e(f"s_branch {LA}")
    k.e(f"{L1}:")
    body(2, 1)
    k.e(f"{LA}:")
    czero(k, 32256)
    k.e("s_waitcnt lgkmcnt(0)")
    k.e("s_barrier")

def attention(k):
    LG = 96
    k.e(f"""
    v_lshrrev_b32 v2, 3, v0
    v_lshrrev_b32 v3, 1, v0
    v_and_b32 v3, 3, v3
    v_and_b32 v4, 1, v0
    v_add_u32 v5, 16, v2
    v_mul_u32_u24 v5, {RS}, v5
    v_lshlrev_b32 v6, 5, v3
    v_add_u32 v5, v5, v6
    v_mul_u32_u24 v6, {8*RS}, v4
    v_sub_u32 v7, v5, v6
    v_subrev_u32 v7, {6*RS}, v7
    v_lshlrev_b32 v8, 4, v4
    v_add_u32 v9, v7, v8
    v_xor_b32 v10, 1, v4
    v_mul_u32_u24 v10, {8*RS}, v10
    v_sub_u32 v10, v5, v10
    v_subrev_u32 v10, {6*RS}, v10
    v_add_u32 v10, v10, v8
    ds_read_b128 v[16:19], v5
    ds_read_b128 v[20:23], v5 offset:16
    """)
    for i in range(4):
        k.e(f"ds_read_b128 v[{24+8*i}:{27+8*i}], v7 offset:{(6-2*i)*RS+128}")
        k.e(f"ds_read_b128 v[{28+8*i}:{31+8*i}], v7 offset:{(6-2*i)*RS+144}")
    for i in range(4): k.e(f"ds_read_b128 v[{64+4*i}:{67+4*i}], v9 offset:{(6-2*i)*RS+256}")
    k.e("s_waitcnt lgkmcnt(4)")
    for i in range(4): k.e(f"ds_read_b128 v[{80+4*i}:{83+4*i}], v10 offset:{(6-2*i)*RS+256}")
    for i in range(4): k.e(f"v_mov_b32 v{LG+i}, 0")
    for d in range(8):
        for i in range(4): k.e(f"v_dot2_f32_bf16 v{LG+i}, v{16+d}, v{24+8*i+d}, v{LG+i}")
    k.e(f"""
    s_lshl_b32 s24, s{S_RB64}, 6
    v_add_u32 v11, s24, v2
    v_lshlrev_b32 v12, 3, v4
    v_sub_u32 v11, v11, v12
    s_mov_b32 s57, {f2u(-4e9)}
    v_mov_b32 v13, s57
    v_cvt_pk_bf16_f32 v{LG+4}, v{LG}, v{LG+1}
    v_cvt_pk_bf16_f32 v{LG+5}, v{LG+2}, v{LG+3}
    v_lshlrev_b32 v{LG}, 16, v{LG+4}
    v_and_b32 v{LG+1}, 0xffff0000, v{LG+4}
    v_lshlrev_b32 v{LG+2}, 16, v{LG+5}
    v_and_b32 v{LG+3}, 0xffff0000, v{LG+5}
    """)
    for i in range(4):
        k.e(f"v_cmp_gt_i32 vcc, {2*i}, v11")
        k.e(f"v_cndmask_b32 v{LG+i}, v{LG+i}, v13, vcc")
    for i in range(4): k.e(f"v_mov_b32_dpp v{LG+4+i}, v{LG+i} quad_perm:[1,0,3,2] row_mask:0xf bank_mask:0xf")
    c = 0.25*1.4426950408889634
    k.e(f"""
    v_max3_f32 v12, v{LG}, v{LG+1}, v{LG+2}
    v_max3_f32 v12, v12, v{LG+3}, v{LG+4}
    v_max3_f32 v12, v12, v{LG+5}, v{LG+6}
    v_max_f32 v12, v12, v{LG+7}
    s_mov_b32 s57, {f2u(c)}
    v_mul_f32 v12, s57, v12
    """)
    for i in range(8): k.e(f"v_fma_f32 v{LG+i}, v{LG+i}, s57, -v12")
    for i in range(8): k.e(f"v_exp_f32 v{LG+i}, v{LG+i}")
    k.e(f"""
    v_add_f32 v12, v{LG}, v{LG+1}
    v_add_f32 v13, v{LG+2}, v{LG+3}
    v_add_f32 v14, v{LG+4}, v{LG+5}
    v_add_f32 v15, v{LG+6}, v{LG+7}
    v_add_f32 v12, v12, v13
    v_add_f32 v14, v14, v15
    v_add_f32 v12, v12, v14
    v_rcp_f32 v12, v12
    """)
    for i in range(8): k.e(f"v_mul_f32 v{LG+i}, v{LG+i}, v12")
    for i in range(8):
        k.e(f"v_cvt_pk_bf16_f32 v{24+i}, v{LG+i}, 0")
        k.e(f"v_lshlrev_b32 v{32+i}, 16, v{24+i}")
    for i in range(8): k.e(f"v_mov_b32 v{40+i}, 0")
    k.e("s_waitcnt lgkmcnt(0)")
    for i in range(8):
        for d in range(4):
            k.e(f"v_dot2_f32_bf16 v{40+2*d}, v{64+4*i+d}, v{24+i}, v{40+2*d}")
            k.e(f"v_dot2_f32_bf16 v{41+2*d}, v{64+4*i+d}, v{32+i}, v{41+2*d}")
    for d in range(4): k.e(f"v_cvt_pk_bf16_f32 v{48+d}, v{40+2*d}, v{41+2*d}")
    k.e(f"""
    v_add_u32 v11, s24, v2
    v_lshlrev_b32 v11, 10, v11
    v_and_b32 v12, 7, v0
    v_lshlrev_b32 v12, 4, v12
    v_add_u32 v11, v11, v12
    s_lshl_b32 s26, s{S_CB}, 7
    v_add_u32 v11, s26, v11
    buffer_store_dwordx4 v[48:51], v11, s[16:19], 0 offen{SC1}
    """)


def g_common(k):
    k.e(f"""
    s_and_b32 s27, s{S_W}, 1
    s_lshr_b32 s28, s{S_W}, 1
    s_and_b32 s28, s28, 1
    s_lshr_b32 s29, s{S_W}, 2
    v_and_b32 v3, 31, v1
    s_lshl_b32 s24, s27, 5
    v_add_u32 v3, s24, v3
    v_lshrrev_b32 v4, 5, v1
    v_lshrrev_b32 v5, 4, v1
    v_and_b32 v6, 1, v5
    v_lshrrev_b32 v5, 1, v5
    v_and_b32 v7, 15, v1
    v_lshrrev_b32 v8, 2, v7
    v_and_b32 v7, 3, v7
    v_lshl_add_u32 v5, v5, 3, v8
    v_lshlrev_b32 v5, 7, v5
    v_lshrrev_b32 v8, 1, v8
    v_xor_b32 v8, s28, v8
    v_lshl_add_u32 v5, v8, 6, v5
    v_lshl_add_u32 v5, v6, 5, v5
    v_lshl_add_u32 v9, v7, 3, v5
    """)
    for i in range(16): k.e(f"v_mov_b32 v{32+i}, 0")
    for i in range(16): k.e(f"v_mov_b32 v{96+i}, 0")
def g_mfma(k, b): k.e(f"v_mfma_f32_32x32x16_bf16 v[32:47], v[{b+4}:{b+7}], v[{b}:{b+3}], v[32:47]")
def p2_main(k):
    g_common(k)
    k.e(f"""
    v_and_b32 v5, 15, v3
    v_xor_b32 v5, v5, v4
    v_lshlrev_b32 v5, 4, v5
    v_lshl_add_u32 v5, v3, 8, v5
    s_lshl_b32 s24, s29, 7
    v_xor_b32 v5, s24, v5
    v_add_u32 v10, {P2_X}, v5
    v_xor_b32 v11, 32, v10
    v_xor_b32 v12, 64, v10
    v_xor_b32 v13, 0x60, v10
    s_lshl_b32 s24, s29, 13
    s_add_u32 s24, s24, {P2_W}
    v_add_u32 v14, s24, v9
    v_lshrrev_b32 v5, 3, v0
    s_lshl_b32 s25, s{S_RB64}, 6
    v_add_u32 v5, s25, v5
    v_and_b32 v6, 7, v0
    v_lshlrev_b32 v6, 4, v6
    v_lshl_add_u32 v5, v5, 10, v6
    s_lshl_b32 s26, s{S_CB}, 7
    v_add_u32 v57, s26, v5
    """)
    srd(k, 12, S_X, 2<<20)
    k.e(f"buffer_load_dwordx4 v[{VRES}:{VRES+3}], v57, s[12:15], 0 offen")
    BUF = [80, 96]
    def reads(st, hf):
        for j2 in range(2):
            j = 2*hf + j2; b = BUF[hf] + 8*j2
            k.e(f"ds_read_b128 v[{b}:{b+3}], v{10+j} offset:{16384*st}")
            k.e(f"ds_read_b64_tr_b16 v[{b+4}:{b+5}], v14 offset:{16384*st+2048*j}")
            k.e(f"ds_read_b64_tr_b16 v[{b+6}:{b+7}], v14 offset:{16384*st+2048*j+512}")
    for st in range(4):
        k.e("s_waitcnt lgkmcnt(0)"); k.e("s_barrier")
        reads(st, 0)
        if st: g_mfma(k, 96); g_mfma(k, 104)
        reads(st, 1)
        k.e("s_waitcnt lgkmcnt(6)")
        g_mfma(k, 80); g_mfma(k, 88)
    k.e("s_waitcnt lgkmcnt(0)")
    g_mfma(k, 96); g_mfma(k, 104)
def p4_main(k):
    g_common(k)
    k.e(f"""
    v_bfe_u32 v5, v3, 3, 1
    v_xor_b32 v5, v5, v4
    v_lshlrev_b32 v5, 4, v5
    v_mul_u32_u24 v6, 224, v3
    v_add_u32 v5, v5, v6
    s_lshl_b32 s24, s29, 7
    s_add_u32 s24, s24, {P4_X}
    v_add_u32 v10, s24, v5
    s_lshl_b32 s24, s29, 13
    s_add_u32 s24, s24, {P4_W}
    v_add_u32 v14, s24, v9
    s_mov_b32 s49, {(-(P4_NS-1)*P4_SL) & 0xffffffff}
    s_mov_b32 s56, {P4_SL}
    s_mov_b32 s38, 0
    s_mov_b32 s39, 0
    """)
    BUF = [80, 96]
    def body(NK):
        nb = NK - 2
        def reads(hf):
            for j2 in range(2 if hf == 0 else nb):
                j = 2*hf + j2; b = BUF[hf] + 8*j2
                k.e(f"ds_read_b128 v[{b}:{b+3}], v10 offset:{32*j}")
                k.e(f"ds_read_b64_tr_b16 v[{b+4}:{b+5}], v14 offset:{2048*j}")
                k.e(f"ds_read_b64_tr_b16 v[{b+6}:{b+7}], v14 offset:{2048*j+512}")
        LOOP = k.lab("gloop")
        k.e(".p2align 6")
        k.e(f"""
        {LOOP}:
        s_waitcnt lgkmcnt(0)
        s_barrier
        """)
        reads(0)
        k.e(f"""
        s_add_u32 s39, s39, 1
        s_cmp_ge_u32 s39, {P4_NS}
        s_cselect_b32 s48, s49, s56
        s_cselect_b32 s39, 0, s39
        s_add_u32 s38, s38, 1
        """)
        for j2 in range(nb): g_mfma(k, 96+8*j2)
        reads(1)
        k.e(f"s_waitcnt lgkmcnt({3*nb})")
        g_mfma(k, 80); g_mfma(k, 88)
        k.e(f"""
        v_add_u32 v10, s48, v10
        v_add_u32 v14, s48, v14
        s_cmp_lt_u32 s38, 16
        s_cbranch_scc1 {LOOP}
        s_waitcnt lgkmcnt(0)
        """)
        for j2 in range(nb): g_mfma(k, 96+8*j2)
    L3 = k.lab("p4b"); LE = k.lab("p4e")
    k.e("s_cmp_eq_u32 s29, 0"); k.e(f"s_cbranch_scc0 {L3}")
    body(4)
    k.e(f"s_branch {LE}")
    k.e(f"{L3}:")
    body(3)
    k.e(f"{LE}:")
def g_epi(k, osrd_fn, sc, hstats=False):
    osrd_fn()
    k.e(f"""
    s_barrier
    v_mul_u32_u24 v5, {GS_RS}, v3
    v_lshl_add_u32 v5, v4, 4, v5
    s_mul_i32 s24, s29, {64*GS_RS}
    s_lshl_b32 s30, s28, 7
    s_add_u32 s24, s24, s30
    v_add_u32 v5, s24, v5
    v_lshrrev_b32 v6, 3, v0
    v_mul_u32_u24 v6, {GS_RS}, v6
    v_and_b32 v7, 7, v0
    v_lshl_add_u32 v6, v7, 5, v6
    """)
    for q in range(4): k.e(f"ds_write_b128 v5, v[{32+4*q}:{35+4*q}] offset:{32*q}")
    czero(k, 40960)
    k.e("s_waitcnt vmcnt(0) lgkmcnt(0)")
    k.e("s_barrier")
    k.e(f"""
    ds_read_b128 v[32:35], v6
    ds_read_b128 v[36:39], v6 offset:16
    ds_read_b128 v[40:43], v6 offset:{64*GS_RS}
    ds_read_b128 v[44:47], v6 offset:{64*GS_RS+16}
    s_waitcnt lgkmcnt(0)
    """)
    for i in range(8): k.e(f"v_add_f32 v{32+i}, v{32+i}, v{40+i}")
    for p in range(4):
        a = 32+2*p; r = VRES+p
        k.e(f"""
        v_cvt_pk_bf16_f32 v48, v{a}, v{a+1}
        v_lshlrev_b32 v49, 16, v48
        v_and_b32 v50, 0xffff0000, v48
        v_lshlrev_b32 v51, 16, v{r}
        v_and_b32 v52, 0xffff0000, v{r}
        v_add_f32 v49, v49, v51
        v_add_f32 v50, v50, v52
        v_cvt_pk_bf16_f32 v{r}, v49, v50
        """)
    k.e(f"buffer_store_dwordx4 v[{VRES}:{VRES+3}], v57, s[16:19], 0 offen{sc}")
    if hstats:
        srd(k, 12, S_WS, 131072, add=WS_HS)
        k.e("v_mov_b32 v44, 0"); k.e("v_mov_b32 v45, 0")
        for d in range(4):
            k.e(f"""
            v_lshlrev_b32 v48, 16, v{VRES+d}
            v_and_b32 v49, 0xffff0000, v{VRES+d}
            v_add_f32 v44, v44, v48
            v_fmac_f32 v45, v48, v48
            v_add_f32 v44, v44, v49
            v_fmac_f32 v45, v49, v49
            """)
        for perm in ("quad_perm:[1,0,3,2]", "quad_perm:[2,3,0,1]", "row_half_mirror"):
            for r in (44,45): k.e(f"v_add_f32_dpp v{r}, v{r}, v{r} {perm} row_mask:0xf bank_mask:0xf")
        k.e(f"""
        v_lshrrev_b32 v5, 3, v0
        s_lshl_b32 s24, s{S_RB64}, 6
        v_add_u32 v5, s24, v5
        v_lshlrev_b32 v5, 6, v5
        s_lshl_b32 s24, s{S_CB}, 3
        v_add_u32 v5, s24, v5
        v_and_b32 v6, 7, v0
        v_cmp_eq_u32 vcc, 0, v6
        s_and_saveexec_b64 s[60:61], vcc
        buffer_store_dwordx2 v[44:45], v5, s[12:15], 0 offen sc1
        s_mov_b64 exec, s[60:61]
        """)

def p3_main(k):
    nst = 8
    czero(k, 7168)
    srd(k, 16, S_WS, 7<<20, add=WS_HH)
    k.e(f"""
    s_lshl_b32 s25, s{S_RB128}, 7
    s_and_b32 s27, s{S_W}, 3
    s_lshr_b32 s28, s{S_W}, 2
    v_and_b32 v3, 31, v1
    s_lshl_b32 s29, s27, 5
    v_add_u32 v3, s29, v3
    v_lshrrev_b32 v4, 5, v1
    v_lshrrev_b32 v5, 1, v3
    v_and_b32 v5, 7, v5
    v_xor_b32 v5, v5, v4
    v_lshlrev_b32 v5, 4, v5
    v_lshlrev_b32 v6, 7, v3
    v_add_u32 v5, v6, v5
    v_add_u32 v16, {P3_X}, v5
    v_xor_b32 v17, 32, v16
    v_xor_b32 v18, 64, v16
    v_xor_b32 v19, 0x60, v16
    v_lshrrev_b32 v5, 4, v1
    v_and_b32 v6, 1, v5
    v_lshrrev_b32 v5, 1, v5
    v_and_b32 v7, 15, v1
    v_lshrrev_b32 v8, 2, v7
    v_and_b32 v7, 3, v7
    v_lshlrev_b32 v5, 3, v5
    v_add_u32 v5, v5, v8
    v_mul_u32_u24 v5, 224, v5
    v_mul_u32_u24 v6, {P3_UOFF}, v6
    v_add_u32 v5, v5, v6
    v_lshlrev_b32 v7, 3, v7
    v_add_u32 v5, v5, v7
    v_add_u32 v9, {P3_W}, v5
    v_mul_u32_u24 v5, {RSO}, v3
    v_lshl_add_u32 v5, v4, 4, v5
    v_add_u32 v24, {P3_OUT}, v5
    s_mov_b32 s55, 0x3f803f80
    """)
    k.e("""
    s_cmp_eq_u32 s27, 3
    s_cselect_b32 s60, 0, s27
    s_add_u32 s61, s60, 1
    s_cmp_ge_u32 s61, 3
    s_cselect_b32 s54, 3, 0
    s_sub_u32 s61, s61, s54
    s_add_u32 s62, s60, 2
    s_cmp_ge_u32 s62, 3
    s_cselect_b32 s54, 3, 0
    s_sub_u32 s62, s62, s54
    s_add_u32 s60, s60, 4
    s_add_u32 s61, s61, 4
    s_add_u32 s62, s62, 4
    s_add_u32 s51, s27, 1
    s_and_b32 s51, s51, 3
    s_add_u32 s52, s27, 2
    s_and_b32 s52, s52, 3
    s_add_u32 s53, s27, 3
    s_and_b32 s53, s53, 3
    s_cmp_eq_u32 s28, 0
    s_cselect_b32 s50, s27, s60
    s_cselect_b32 s51, s51, s61
    s_cselect_b32 s52, s52, s62
    """)
    for q in range(4):
        k.e(f"s_lshl_b32 s24, s{50+q}, 5"); k.e(f"v_add_u32 v{20+q}, s24, v9")
    for i in range(26, 32): k.e(f"v_mov_b32 v{i}, 0")
    for i in range(64): k.e(f"v_mov_b32 v{64+i}, 0")
    for i in range(132,136): k.e(f"v_mov_b32 v{i}, 0")
    for i in range(152,168): k.e(f"v_mov_b32 v{i}, 0")
    k.e(f"""
    s_mov_b32 s49, {(-2*P3_XS) & 0xffffffff}
    s_mov_b32 s46, {(-2*P3_WS) & 0xffffffff}
    s_mov_b32 s56, {P3_XS}
    s_mov_b32 s45, {P3_WS}
    s_mov_b32 s38, 0
    s_mov_b32 s39, 0
    """)
    XB = [128, 132]; WBB = [136, 152]
    def body(NQ, nh):
        def rdX(j): k.e(f"ds_read_b128 v[{XB[j&1]}:{XB[j&1]+3}], v{16+j}")
        def rdW(j,q):
            WB = WBB[j&1]
            k.e(f"ds_read_b64_tr_b16 v[{WB+4*q}:{WB+4*q+1}], v{20+q} offset:{3584*j}")
            k.e(f"ds_read_b64_tr_b16 v[{WB+4*q+2}:{WB+4*q+3}], v{20+q} offset:{3584*j+896}")
        def step(j, nxt, waits):
            x = XB[j&1]; WB = WBB[j&1]
            for q in range(NQ):
                if waits: k.e(f"s_waitcnt lgkmcnt({2*(NQ-1) + (1 if q>=1 else 0)})")
                k.e(f"v_mfma_f32_32x32x16_bf16 v[{64+16*q}:{79+16*q}], v[{WB+4*q}:{WB+4*q+3}], v[{x}:{x+3}], v[{64+16*q}:{79+16*q}]")
                if nxt is not None:
                    if q == 0: rdX(nxt)
                    rdW(nxt, q)
        LOOP = k.lab("loop3")
        k.e(".p2align 6")
        k.e(f"""
        {LOOP}:
        s_waitcnt lgkmcnt(0)
        """)
        if FINE == 3: stamp(k)
        k.e("s_barrier")
        if FINE == 3: stamp(k)
        k.e(f"""
        s_add_u32 s39, s39, 1
        s_cmp_ge_u32 s39, 3
        s_cselect_b32 s48, s49, s56
        s_cselect_b32 s47, s46, s45
        s_cselect_b32 s39, 0, s39
        s_add_u32 s38, s38, 1
        """)
        step(3, 0, False)
        step(0, 1, True); step(1, 2, True); step(2, 3, True)
        for r in range(16, 20): k.e(f"v_add_u32 v{r}, s48, v{r}")
        for q in range(NQ): k.e(f"v_add_u32 v{20+q}, s47, v{20+q}")
        k.e(f"""
        s_cmp_lt_u32 s38, {nst}
        s_cbranch_scc1 {LOOP}
        s_waitcnt lgkmcnt(0)
        """)
        step(3, None, False)
    L3 = k.lab("p3b"); LE = k.lab("p3e")
    k.e("s_cmp_eq_u32 s28, 0"); k.e(f"s_cbranch_scc0 {L3}")
    body(4, 0)
    k.e(f"s_branch {LE}")
    k.e(f"{L3}:")
    body(3, 1)
    k.e(f"{LE}:")
    k.e("s_barrier")
def p3_epi(k):
    k.e(f"""
    v_lshlrev_b32 v33, 3, v3
    v_add_u32 v33, {P3_ST}, v33
    ds_read_b64 v[26:27], v33
    v_lshlrev_b32 v33, 4, v4
    v_add_u32 v33, {P3_CS}, v33
    s_waitcnt lgkmcnt(0)
    """)
    ln_stats(k, 26, 27, 30, 31, 28)
    k.e(f"""
    v_mul_f32 v30, v30, v31
    v_sub_f32 v30, 0, v30
    v_mov_b32 v34, {f2u(-0.1029432397)}
    """)
    for q in range(4):
        LS = k.lab("skq")
        if q == 3:
            k.e("s_cmp_eq_u32 s28, 1"); k.e(f"s_cbranch_scc1 {LS}")
        k.e(f"s_lshl_b32 s57, s{50+q}, 7"); k.e("v_add_u32 v32, s57, v33")
        for qq in range(4): k.e(f"ds_read_b128 v[{128+4*qq}:{131+4*qq}], v32 offset:{32*qq}")
        A = 64+16*q
        for i in range(16): k.e(f"v_mul_f32 v{A+i}, v31, v{A+i}")
        k.e("s_waitcnt lgkmcnt(0)")
        for i in range(16): k.e(f"v_fmac_f32 v{A+i}, v30, v{128+i}")
        for i in range(8): k.e(f"v_mul_f32 v{144+i}, v{A+i}, v{A+i}")
        for i in range(8): k.e(f"v_fmaak_f32 v{152+i}, v{144+i}, v34, {f2u(-2.302208198)}")
        for i in range(8): k.e(f"v_mul_f32 v{152+i}, v{A+i}, v{152+i}")
        for i in range(8): k.e(f"v_exp_f32 v{152+i}, v{152+i}")
        for i in range(8): k.e(f"v_mul_f32 v{A+i}, v{A+i}, v{A+8+i}")
        for i in range(8): k.e(f"v_add_f32 v{152+i}, 1.0, v{152+i}")
        for i in range(8): k.e(f"v_rcp_f32 v{152+i}, v{152+i}")
        for i in range(8): k.e(f"v_mul_f32 v{A+i}, v{A+i}, v{152+i}")
        for i in range(0,8,2): k.e(f"v_cvt_pk_bf16_f32 v{160+i//2}, v{A+i}, v{A+i+1}")
        k.e("v_permlane32_swap_b32 v160, v162")
        k.e("v_permlane32_swap_b32 v161, v163")
        k.e(f"s_lshl_b32 s57, s{50+q}, 5")
        k.e(f"v_add_u32 v32, s57, v24")
        k.e(f"ds_write_b128 v32, v[160:163]")
        if q == 3: k.e(f"{LS}:")
        if FINE == 4: stamp(k)
    k.e("s_waitcnt lgkmcnt(0)")
    k.e("s_barrier")
    k.e(f"""
    s_lshl_b32 s24, s{S_RB128}, 4
    s_add_u32 s24, s24, s{S_FB}
    s_mul_i32 s24, s24, 28672
    v_lshlrev_b32 v33, 4, v0
    v_add_u32 v33, s24, v33
    v_mov_b32 v5, v0
    """)
    for i in range(4):
        if i: k.e("v_add_u32 v5, 512, v5")
        k.e(f"""
        v_mul_u32_u24 v6, 4682, v5
        v_lshrrev_b32 v6, 16, v6
        v_mul_u32_u24 v7, 14, v6
        v_sub_u32 v7, v5, v7
        v_mul_u32_u24 v6, {RSO}, v6
        v_lshl_add_u32 v6, v7, 4, v6
        ds_read_b128 v[{128+4*i}:{131+4*i}], v6 offset:{P3_OUT}
        """)
    for i in range(3):
        k.e(f"s_waitcnt lgkmcnt({3-i})")
        k.e(f"s_movk_i32 s57, {8192*i}")
        k.e(f"buffer_store_dwordx4 v[{128+4*i}:{131+4*i}], v33, s[16:19], s57 offen{SC1}")
    LS4 = k.lab("sk4")
    k.e(f"""
    s_cmp_ge_u32 s{S_W}, 4
    s_cbranch_scc1 {LS4}
    s_waitcnt lgkmcnt(0)
    s_movk_i32 s57, 24576
    buffer_store_dwordx4 v[140:143], v33, s[16:19], s57 offen{SC1}
    {LS4}:
    """)
    k.e("s_waitcnt lgkmcnt(0)")

def build():
    k = Kern(NAME + "_kernel")
    END = "L_end"
    k.e(f"""
    s_cmp_ge_u32 s2, 256
    s_cbranch_scc1 {END}
    s_load_dwordx8 s[84:91], s[0:1], 0
    s_load_dwordx8 s[92:99], s[0:1], 32
    s_load_dwordx4 s[80:83], s[0:1], 64
    s_memrealtime s[100:101]
    v_and_b32 v1, 63, v0
    v_lshrrev_b32 v2, 6, v0
    s_nop 0
    v_readfirstlane_b32 s{S_W}, v2
    s_and_b32 s3, s2, 7
    s_lshr_b32 s23, s2, 3
    s_and_b32 s21, s3, 3
    s_lshr_b32 s22, s3, 2
    s_lshl_b32 s{S_RB64}, s21, 3
    s_and_b32 s24, s23, 7
    s_add_u32 s{S_RB64}, s{S_RB64}, s24
    s_lshl_b32 s{S_CB}, s22, 2
    s_lshr_b32 s24, s23, 3
    s_add_u32 s{S_CB}, s{S_CB}, s24
    s_lshl_b32 s{S_RB128}, s21, 2
    s_and_b32 s24, s23, 3
    s_add_u32 s{S_RB128}, s{S_RB128}, s24
    s_lshl_b32 s{S_FB}, s22, 3
    s_lshr_b32 s24, s23, 2
    s_add_u32 s{S_FB}, s{S_FB}, s24
    s_sub_u32 s{S_J}, s{S_W}, 8
    s_mov_b32 s78, 0
    s_waitcnt lgkmcnt(0)
    """)
    srd(k, 64, S_WS, 1<<20, add=WS_F)
    srd(k, 68, S_DBG, 256)
    LN = k.lab("nonce")
    k.e(f"""
    s_or_b32 s24, s2, s{S_W}
    s_cmp_lg_u32 s24, 0
    s_cbranch_scc1 {LN}
    s_or_b32 s100, s100, 1
    v_mov_b32 v2, 0
    v_mov_b32 v3, s100
    buffer_store_dword v3, v2, s[68:71], 0 offen sc1
    {LN}:
    """)
    stamp(k, True)
    LC = k.lab("compute"); LD = k.lab("done")
    k.e(f"s_cmp_lt_u32 s{S_W}, 8"); k.e(f"s_cbranch_scc1 {LC}")
    loader(k)
    k.e(f"s_branch {LD}")
    k.e(f"{LC}:")
    p1(k); stamp(k)
    attention(k); stamp(k)
    sync(k, 32256, [f"s_lshl_b32 s59, s{S_RB64}, 7\ns_lshl_b32 s58, s{S_CB}, 2\ns_add_u32 s59, s59, s58"],
            [(f"s_lshl_b32 s58, s{S_RB64}, 7", 8)])
    p2_main(k); stamp(k)
    g_epi(k, lambda: srd(k, 16, S_WS, 2<<20, add=WS_H), SC1, True)
    sync(k, 40960, [f"s_lshr_b32 s59, s{S_RB64}, 1\ns_lshl_b32 s59, s59, 7\ns_add_u32 s59, s59, 8192\ns_and_b32 s58, s{S_RB64}, 1\ns_lshl_b32 s58, s58, 3\ns_add_u32 s58, s58, s{S_CB}\ns_lshl_b32 s58, s58, 2\ns_add_u32 s59, s59, s58"],
            [(f"s_lshl_b32 s58, s{S_RB128}, 7\ns_add_u32 s58, s58, 8192", 16), (f"s_lshl_b32 s58, s{S_FB}, 7\ns_add_u32 s58, s58, 24576", 16)])
    stamp(k)
    p3_main(k); stamp(k)
    p3_epi(k); stamp(k)
    sync(k, 7168, [f"s_lshl_b32 s59, s{S_RB128}, 7\ns_add_u32 s59, s59, 16384\ns_lshl_b32 s58, s{S_FB}, 2\ns_add_u32 s59, s59, s58"],
            [(f"s_lshr_b32 s58, s{S_RB64}, 1\ns_lshl_b32 s58, s58, 7\ns_add_u32 s58, s58, 16384", 16)])
    p4_main(k); stamp(k)
    g_epi(k, lambda: srd(k, 16, S_OUT, 2<<20), "")
    k.e(f"{LD}:")
    if STAMP:
        k.e("s_waitcnt vmcnt(0)")
        stamp(k, True)
        srd(k, 4, S_WS, 1<<20, add=32<<20)
        k.e(f"""
        s_lshl_b32 s24, s2, 4
        s_add_u32 s24, s24, s{S_W}
        s_lshl_b32 s24, s24, 8
        v_lshlrev_b32 v2, 2, v1
        v_add_u32 v2, s24, v2
        buffer_store_dword v63, v2, s[4:7], 0 offen
        """)
    k.e(f"{END}:")
    k.e("s_endpgm")
    return k

if __name__ == "__main__":
    k = build()
    if FINE == 9:
        out_l = []
        for ln in k.lines:
            out_l.append(ln)
            if ln == "s_barrier":
                out_l += ["s_memtime s[100:101]", "s_waitcnt lgkmcnt(0)", "v_cmp_eq_u32 vcc, s78, v1", "v_mov_b32 v62, s100", "v_cndmask_b32 v63, v63, v62, vcc", "s_add_u32 s78, s78, 1"]
        k.lines = out_l
    hdr = open("cdna_kernels/"+NAME+".s.ref").read().split("; Override launch")[0]
    out = hdr + "; @launch grid=(256,1,1) block=(768,1,1) lds=163840\n"
    out += '.amdgcn_target "amdgcn-amd-amdhsa--gfx950"\n'
    out += kernel_text(k, 168)
    open(sys.argv[1], "w").write(out)
```

```python
import sys, os, struct
from asmlib import *
NAME = "sequential_preLN__sliding_local_dilated__glu_gated_geglu__prompt"
WS_O, WS_H, WS_HH, WS_F = 0, 2<<20, 4<<20, 16<<20
def f2u(f): return struct.unpack("<I", struct.pack("<f", f))[0]
S_X, S_WQKV, S_WO, S_WG, S_WU, S_WD, S_OUT, S_DBG, S_WS = 84, 86, 88, 92, 94, 96, 98, 80, 82
S_W, S_RB64, S_CB, S_RB128, S_FB, S_NONCE, S_J = 20, 76, 77, 74, 75, 79, 21
STAMP = bool(os.environ.get("STAMP"))
FINE = int(os.environ.get("FINE","0"))
SC1 = " sc1"
PSLEEP = int(os.environ.get("PSLEEP","2"))
VRES = 58

def srd(k, sd, ptr, size, add=0):
    if add:
        k.e(f"s_add_u32 s{sd}, s{ptr}, {add}")
        k.e(f"s_addc_u32 s{sd+1}, s{ptr+1}, 0")
    else:
        k.e(f"s_mov_b32 s{sd}, s{ptr}")
        k.e(f"s_mov_b32 s{sd+1}, s{ptr+1}")
    k.e(f"s_mov_b32 s{sd+2}, {size}")
    k.e(f"s_mov_b32 s{sd+3}, 0x00020000")
def round_bf16(k, v, tmp):
    k.e(f"v_cvt_pk_bf16_f32 v{tmp}, v{v}, v{v}")
    k.e(f"v_lshlrev_b32 v{v}, 16, v{tmp}")
def ln_stats(k, vs, vq, vm, vr, tmp):
    k.e(f"""
    v_mul_f32 v{vm}, {f2u(1/512)}, v{vs}
    v_mul_f32 v{vr}, {f2u(1/512)}, v{vq}
    v_fma_f32 v{vr}, -v{vm}, v{vm}, v{vr}
    v_max_f32 v{vr}, 0, v{vr}
    """)
    round_bf16(k, vm, tmp); round_bf16(k, vr, tmp)
    k.e(f"v_add_f32 v{vr}, {f2u(1e-5)}, v{vr}")
    round_bf16(k, vr, tmp)
    k.e(f"v_sqrt_f32 v{vr}, v{vr}")
    round_bf16(k, vr, tmp)
    k.e(f"v_rcp_f32 v{vr}, v{vr}")
def red32(k, v, tmp):
    k.e(f"v_mov_b32 v{tmp}, v{v}"); k.e(f"v_permlane32_swap_b32 v{v}, v{tmp}"); k.e(f"v_add_f32 v{v}, v{v}, v{tmp}")
def red16(k, v, tmp):
    k.e(f"v_mov_b32 v{tmp}, v{v}"); k.e(f"v_permlane16_swap_b32 v{v}, v{tmp}"); k.e(f"v_add_f32 v{v}, v{v}, v{tmp}")
def stamp(k, force=False):
    if not STAMP: return
    if FINE == 9 and not force: return
    k.e("s_memrealtime s[100:101]" if os.environ.get("RT") else "s_memtime s[100:101]")
    k.e("s_waitcnt lgkmcnt(0)")
    k.e("v_cmp_eq_u32 vcc, s78, v1")
    k.e("v_mov_b32 v62, s100")
    k.e("v_cndmask_b32 v63, v63, v62, vcc")
    k.e("s_add_u32 s78, s78, 1")

P1_NS, P1_SLOT, P1_WOFF = 4, 34816, 10240
P1_SC = P1_NS*P1_SLOT
P1_SC2 = P1_SC + 2560
RS = 400
P2_X, P2_W = 98304, 32768
P4_X, P4_W, P4_NS, P4_SL = 8192, 81920, 5, 14336
P3_OUT, RSO = 8192, 240
GS_RS = 272
P3_X, P3_XS, P3_W, P3_WS, P3_UOFF = 8192, 16384, 57344, 28800, 14464
P3_CS, P3_ST, P3_CS2 = 0, 4096, 6144

def dma(k, v, srdn, soff, m0expr, sc=""):
    k.e(m0expr)
    k.e(f"buffer_load_dwordx4 v{v}, s[{srdn}:{srdn+3}], {soff} offen{sc} lds")


WS_XS, WS_HS = 18<<20, 19<<20
WS_CS = 17<<20
def merge(k, groups, fill):
    if not fill:
        for g in groups: g()
        return
    fill = [x.strip() for x in fill if x.strip()]
    f2 = []; i = 0
    while i < len(fill):
        if fill[i].startswith("s_cmp"):
            j = i
            for t in range(i+1, min(i+8, len(fill))):
                if fill[t].startswith("s_cselect"): j = t
            f2.append("\n".join(fill[i:j+1])); i = j+1
        else:
            f2.append(fill[i]); i += 1
    fill = f2
    n = len(groups); m = len(fill); fi = 0
    for i, g in enumerate(groups):
        g()
        upto = (m*(i+1))//n
        while fi < upto:
            k.e(fill[fi]); fi += 1
def lstats_reads(k, base_sreg, ne):
    k.e(f"v_add_u32 v50, s{base_sreg}, v51")
    for e_ in range(ne): k.e(f"ds_read_b128 v[{64+4*e_}:{67+4*e_}], v50 offset:{1024*e_}")
def lstats_valu(ne, acc0):
    out = []
    for e_ in range(ne):
        out.append(f"s_waitcnt lgkmcnt({ne-1-e_})")
        a = acc0 + 4*e_
        for d in range(4):
            t0 = 52 + 2*(d&1)
            out += [f"v_lshlrev_b32 v{t0}, 16, v{64+4*e_+d}", f"v_and_b32 v{t0+1}, 0xffff0000, v{64+4*e_+d}",
                    f"v_pk_add_f32 v[{a}:{a+1}], v[{a}:{a+1}], v[{t0}:{t0+1}]",
                    f"v_pk_fma_f32 v[{a+2}:{a+3}], v[{t0}:{t0+1}], v[{t0}:{t0+1}], v[{a+2}:{a+3}]"]
    return out
def lstats_fin(k, ne, acc0, row0_sreg, stbase):
    k.e(f"""
    v_lshrrev_b32 v50, 3, v1
    v_add_u32 v50, s{row0_sreg}, v50
    v_lshlrev_b32 v50, 3, v50
    v_add_u32 v50, {stbase}, v50
    """)
    for e_ in range(ne):
        a = acc0 + 4*e_
        k.e(f"v_add_f32 v{a}, v{a}, v{a+1}")
        k.e(f"v_add_f32 v{a+2}, v{a+2}, v{a+3}")
    for perm in ("quad_perm:[1,0,3,2]", "quad_perm:[2,3,0,1]", "row_half_mirror"):
        for e_ in range(ne):
            a = acc0 + 4*e_
            for r in (a, a+2): k.e(f"v_add_f32_dpp v{r}, v{r}, v{r} {perm} row_mask:0xf bank_mask:0xf")
    for e_ in range(ne):
        a = acc0 + 4*e_
        k.e(f"v_mov_b32 v{a+1}, v{a+2}")
        k.e(f"ds_write_b64 v50, v[{a}:{a+1}] offset:{64*e_}")

def loader(k):
    J = S_J
    k.e("s_setprio 3")
    k.e(f"""
    s_lshl_b32 s25, s{S_RB64}, 6
    s_sub_u32 s25, s25, 16
    s_lshl_b32 s26, s{S_CB}, 7
    v_lshrrev_b32 v3, 3, v1
    v_and_b32 v4, 7, v1
    s_mul_i32 s24, s{J}, 20
    v_add_u32 v5, s24, v3
    s_lshl_b32 s30, s24, 7
    s_cmp_eq_u32 s{J}, 0
    s_cselect_b32 s31, 0xffffff00, -1
    """)
    for e_ in range(3):
        if e_: k.e("v_add_u32 v5, 8, v5")
        k.e(f"""
        v_bfe_u32 v6, v5, 1, 3
        v_xor_b32 v6, v6, v4
        v_add_u32 v7, s25, v5
        v_max_i32 v7, 0, v7
        v_lshlrev_b32 v7, 10, v7
        v_lshl_add_u32 v{10+e_}, v6, 4, v7
        """)
    srd(k, 4, S_X, 2<<20); srd(k, 8, S_WQKV, 512*3072)
    def x1(base, soff):
        return [lambda: (k.e(f"s_mov_b32 m0, {base}"), k.e("s_mov_b32 exec_lo, s31"), k.e(f"buffer_load_dwordx4 v10, s[4:7], {soff} offen lds"), k.e("s_mov_b32 exec_lo, -1")),
                lambda: dma(k, 11, 4, soff, f"s_add_u32 m0, {base}, 1024"),
                lambda: (k.e(f"s_add_u32 m0, {base}, 2048"), k.e("s_mov_b32 exec_hi, 0"), k.e(f"buffer_load_dwordx4 v12, s[4:7], {soff} offen lds"), k.e("s_mov_b32 exec_hi, -1"))]
    def w1(base, soff):
        return [(lambda e_=e_: dma(k, 13+e_, 8, soff, f"s_add_u32 m0, {base}, {1024*e_}")) for e_ in range(6)]
    wmath = [f"s_mul_i32 s24, s{J}, 384", "v_add_u32 v5, s24, v1", f"s_mul_i32 s32, s{J}, 6144", f"s_add_u32 s32, s32, {P1_WOFF}"]
    for e_ in range(3):
        if e_: wmath.append("v_add_u32 v5, 64, v5")
        wmath += f"""v_mul_u32_u24 v6, 2731, v5
        v_lshrrev_b32 v6, 16, v6
        v_mul_u32_u24 v7, 24, v6
        v_sub_u32 v7, v5, v7
        v_lshrrev_b32 v8, 1, v7
        v_and_b32 v7, 1, v7
        v_bfe_u32 v9, v6, 1, 1
        v_lshrrev_b32 v2, 2, v6
        v_and_b32 v2, 2, v2
        v_or_b32 v9, v9, v2
        v_xor_b32 v9, v8, v9
        v_and_b32 v9, 3, v9
        v_lshrrev_b32 v8, 2, v8
        v_mul_u32_u24 v6, 3072, v6
        v_lshl_add_u32 v6, v8, 10, v6
        v_lshl_add_u32 v6, v9, 5, v6
        v_lshl_add_u32 v6, v7, 4, v6
        v_add_u32 v{13+e_}, s26, v6
        v_xor_b32 v6, 64, v{13+e_}
        v_add_u32 v{16+e_}, 24576, v6""".split("\n")
    g = []
    for st in range(3):
        g.append(lambda st=st: (k.e(f"s_add_u32 s46, s30, {st*P1_SLOT}"), k.e(f"s_movk_i32 s36, {128*st}")))
        g += x1("s46", "s36")
    merge(k, g, wmath)
    misc = f"""v_lshrrev_b32 v3, 3, v1
    v_and_b32 v4, 7, v1
    s_lshl_b32 s24, s{J}, 5
    v_add_u32 v5, s24, v3
    v_bfe_u32 v6, v1, 4, 1
    v_lshlrev_b32 v6, 2, v6
    v_xor_b32 v6, v6, v4
    v_lshlrev_b32 v7, 10, v5
    v_lshl_add_u32 v7, v6, 4, v7
    v_add_u32 v20, s26, v7
    v_add_u32 v21, 0x2000, v20
    v_add_u32 v22, 0x4000, v20
    v_add_u32 v23, 0x6000, v20
    s_lshl_b32 s40, s{J}, 12
    v_lshlrev_b32 v51, 4, v1
    s_mov_b32 s12, s{S_WO}
    s_mov_b32 s13, s{S_WO+1}
    s_mov_b32 s14, {512*1024}
    s_mov_b32 s15, 0x00020000""".split("\n")
    misc += [f"v_mov_b32 v{i}, 0" for i in range(80, 92)]
    g = []
    for st in range(3):
        g.append(lambda st=st: (k.e(f"s_add_u32 s47, s32, {st*P1_SLOT}"), k.e(f"s_mov_b32 s37, {64*3072*st}")))
        g += w1("s47", "s37")
    merge(k, g, misc)
    def gW(srdn, soff, base):
        return [(lambda e_=e_: dma(k, 20+e_, srdn, soff, f"s_add_u32 m0, {base}, {1024*e_}")) for e_ in range(4)]
    def gX(soff, base):
        return [(lambda e_=e_: dma(k, 24+e_, 4, soff, f"s_add_u32 m0, {base}, {1024*e_}", SC1)) for e_ in range(4)]
    def run(lst):
        for f in lst: f()
    k.e(f"""
    s_movk_i32 s36, 384
    s_mov_b32 s37, {64*3072*3}
    s_mov_b32 s33, {3*P1_SLOT}
    s_mov_b32 s38, 0
    s_mov_b32 s45, s30
    s_waitcnt vmcnt(12)
    """)
    adv1 = f"""
    s_add_u32 s45, s45, {P1_SLOT}
    s_sub_u32 s46, s45, {P1_NS*P1_SLOT}
    s_cmp_ge_u32 s45, {P1_NS*P1_SLOT}
    s_cselect_b32 s45, s46, s45
    """
    L = k.lab("l1"); L15 = k.lab("l15")
    k.e(".p2align 6")
    k.e(f"""
    {L}:
    s_waitcnt vmcnt(15)
    s_barrier
    """)
    k.e("s_add_u32 s46, s33, s30"); k.e("s_add_u32 s47, s33, s32")
    run(x1("s46","s36") + w1("s47","s37"))
    k.e(f"""
    s_add_u32 s36, s36, 128
    s_add_u32 s37, s37, {64*3072}
    s_add_u32 s33, s33, {P1_SLOT}
    s_cmp_ge_u32 s33, {P1_NS*P1_SLOT}
    s_cselect_b32 s33, 0, s33
    """)
    k.e(f"""
    s_add_u32 s38, s38, 1
    s_cmp_lt_u32 s38, 5
    s_cbranch_scc1 {L}
    """)
    k.e("s_waitcnt vmcnt(18)"); k.e("s_barrier")
    LQ_ = k.lab("lgetn"); LXS = k.lab("lxs")
    srd(k, 8, S_WS, 32768, add=WS_XS)
    k.e(f"""
    v_mov_b32 v2, 0
    s_mov_b32 s59, 0
    s_mul_i32 s24, s{J}, 20
    v_min_u32 v6, 19, v1
    v_add_u32 v6, s24, v6
    v_add_u32 v7, s25, v6
    v_max_i32 v7, 0, v7
    v_lshlrev_b32 v7, 4, v7
    v_lshlrev_b32 v6, 3, v6
    v_add_u32 v6, {P1_SC}, v6
    v_mov_b32 v44, v6
    v_mov_b32 v45, v7
    v_mov_b32 v2, {P1_SC+712}
    ds_read_b32 v3, v2
    buffer_load_dwordx4 v[64:67], v45, s[8:11], 0 offen sc1
    s_waitcnt lgkmcnt(0)
    v_readfirstlane_b32 s{S_NONCE}, v3
    """)
    k.e(f"""
    s_cmp_ge_u32 s{J}, 2
    s_cselect_b32 s16, s{S_WU}, s{S_WG}
    s_cselect_b32 s17, s{S_WU+1}, s{S_WG+1}
    s_mov_b32 s18, {512*3584}
    s_mov_b32 s19, 0x00020000
    s_lshr_b32 s24, s2, 3
    s_mul_i32 s24, s24, 6
    s_and_b32 s29, s{J}, 1
    s_mul_i32 s29, s29, 3
    s_add_u32 s24, s24, s29
    s_mul_i32 s24, s24, 3584
    s_bfe_u32 s29, s2, 0x10002
    s_mul_i32 s29, s29, 1792
    s_add_u32 s28, s24, s29
    v_add_u32 v8, 1024, v51
    v_mov_b32 v9, 0x80000000
    v_cmp_gt_u32 vcc, 48, v1
    v_cndmask_b32 v46, v9, v8, vcc
    """)
    for st2 in range(2):
        k.e(f"s_waitcnt vmcnt({10-st2})")
        k.e("s_barrier")
        k.e(f"s_mov_b32 s41, {st2*0x40000}"); k.e(f"s_add_u32 s46, s40, {P2_W+st2*32768}")
        k.e(f"s_mov_b32 s42, {st2*0x40000+0x20000}"); k.e(f"s_add_u32 s47, s40, {P2_W+st2*32768+16384}")
        run(gW(12,"s41","s46") + gW(12,"s42","s47"))
    k.e(f"""
    s_waitcnt vmcnt(16)
    {LQ_}:
    s_add_u32 s59, s59, 1
    s_cmp_ge_u32 s59, 400000
    s_cbranch_scc1 {LXS}
    v_cmp_ne_u32 vcc, s{S_NONCE}, v66
    s_cmp_eq_u64 vcc, 0
    s_cbranch_scc1 {LXS}
    buffer_load_dwordx4 v[64:67], v45, s[8:11], 0 offen sc1
    s_waitcnt vmcnt(0)
    s_branch {LQ_}
    {LXS}:
    """)
    ln_stats(k, 64, 65, 52, 53, 54)
    k.e("v_mul_f32 v52, v52, v53"); k.e("v_sub_f32 v52, 0, v52")
    k.e("ds_write_b64 v44, v[52:53]")
    k.e("s_waitcnt lgkmcnt(0)")
    k.e("s_barrier")
    k.e("s_barrier")
    if FINE == 8: stamp(k)
    for r in range(3):
        k.e(f"buffer_load_dwordx4 v[{128+8*r}:{131+8*r}], v51, s[16:19], s28 offen")
        k.e(f"buffer_load_dwordx4 v[{132+8*r}:{135+8*r}], v46, s[16:19], s28 offen")
        k.e("s_add_u32 s28, s28, 3584")
    def gx_setup(xstride):
        k.e(f"""
        v_lshrrev_b32 v3, 4, v1
        v_and_b32 v4, 15, v1
        s_lshl_b32 s24, s{J}, 4
        v_add_u32 v5, s24, v3
        s_lshl_b32 s25, s{S_RB64}, 6
        s_movk_i32 s42, {xstride}
        """)
        for e_ in range(4):
            if e_: k.e("v_add_u32 v5, 4, v5")
            k.e(f"""
            v_and_b32 v6, 15, v5
            v_xor_b32 v6, v6, v4
            v_add_u32 v7, s25, v5
            v_mul_lo_u32 v7, v7, s42
            v_lshl_add_u32 v{24+e_}, v6, 4, v7
            """)
    gx_setup(1024)
    srd(k, 4, S_WS, 2<<20, add=WS_O)
    k.e(f"""
    s_and_b32 s53, s2, 1
    s_lshr_b32 s52, s2, 1
    s_and_b32 s52, s52, 15
    s_lshr_b32 s54, s2, 5
    s_cmp_eq_u32 s53, 1
    s_cselect_b32 s16, s{S_WU}, s{S_WG}
    s_cselect_b32 s17, s{S_WU+1}, s{S_WG+1}
    v_mul_u32_u24 v6, 4682, v1
    v_lshrrev_b32 v6, 16, v6
    v_mul_u32_u24 v7, 14, v6
    v_sub_u32 v7, v1, v7
    v_mul_u32_u24 v8, 3584, v6
    v_lshl_add_u32 v8, v7, 4, v8
    s_mul_i32 s24, s52, 224
    s_lshl_b32 s29, s54, 2
    s_add_u32 s29, s29, s{J}
    s_mul_i32 s29, s29, {16*3584}
    s_add_u32 s24, s24, s29
    v_add_u32 v8, s24, v8
    v_mov_b32 v9, 0x80000000
    v_cmp_gt_u32 vcc, 56, v1
    v_cndmask_b32 v48, v9, v8, vcc
    s_mov_b32 s29, 0
    """)
    for e_ in range(4):
        k.e(f"buffer_load_dwordx4 v[{96+4*e_}:{99+4*e_}], v48, s[16:19], s29 offen"); k.e(f"s_add_u32 s29, s29, {4*3584}")
    for i in range(8): k.e(f"v_mov_b32 v{112+i}, 0")
    for e_ in range(4):
        k.e(f"s_waitcnt vmcnt({3-e_})")
        for d in range(4):
            t0 = 52 + 2*(d&1)
            k.e(f"v_lshlrev_b32 v{t0}, 16, v{96+4*e_+d}")
            k.e(f"v_and_b32 v{t0+1}, 0xffff0000, v{96+4*e_+d}")
            k.e(f"v_add_f32 v{112+2*d}, v{112+2*d}, v{t0}")
            k.e(f"v_add_f32 v{113+2*d}, v{113+2*d}, v{t0+1}")
    k.e(f"""
    v_add_u32 v50, 14, v1
    v_lshlrev_b32 v50, 2, v50
    v_add_u32 v49, 28, v1
    v_lshlrev_b32 v49, 2, v49
    """)
    for i in range(8): k.e(f"ds_bpermute_b32 v{64+i}, v50, v{112+i}")
    k.e("s_waitcnt lgkmcnt(0)")
    for i in range(8): k.e(f"v_add_f32 v{112+i}, v{112+i}, v{64+i}")
    for i in range(8): k.e(f"ds_bpermute_b32 v{64+i}, v49, v{112+i}")
    k.e("s_waitcnt lgkmcnt(0)")
    for i in range(8): k.e(f"v_add_f32 v{112+i}, v{112+i}, v{64+i}")
    srd(k, 16, S_WS, 1<<20, add=WS_CS)
    if FINE == 8: stamp(k)
    k.e("s_barrier")
    if FINE == 8: stamp(k)
    m3 = [f"s_mul_i32 s26, s{S_FB}, 224", "v_mov_b32 v5, v1"]
    for e_ in range(7):
        if e_: m3.append("v_add_u32 v5, 64, v5")
        m3 += f"""v_mul_u32_u24 v6, 4682, v5
        v_lshrrev_b32 v6, 16, v6
        v_mul_u32_u24 v7, 14, v6
        v_sub_u32 v7, v5, v7
        v_mul_u32_u24 v6, 3584, v6
        v_lshl_add_u32 v6, v7, 4, v6
        v_add_u32 v{30+e_}, s26, v6""".split("\n")
    m3 += f"""s_cmp_ge_u32 s{J}, 2
    s_cselect_b32 s8, s{S_WU}, s{S_WG}
    s_cselect_b32 s9, s{S_WU+1}, s{S_WG+1}
    s_mov_b32 s10, {512*3584}
    s_mov_b32 s11, 0x00020000
    s_cselect_b32 s44, {P3_UOFF}, 0
    s_and_b32 s24, s{J}, 1
    s_mul_i32 s45, s24, 7168
    s_add_u32 s44, s44, s45
    s_add_u32 s44, s44, {P3_W}
    s_mul_i32 s41, s24, {32*3584}
    v_lshrrev_b32 v3, 3, v1
    v_and_b32 v4, 7, v1
    s_lshl_b32 s24, s{J}, 5
    v_add_u32 v5, s24, v3
    s_lshl_b32 s25, s{S_RB128}, 7""".split("\n")
    for e_ in range(4):
        if e_: m3.append("v_add_u32 v5, 8, v5")
        m3 += f"""v_bfe_u32 v6, v5, 1, 3
        v_xor_b32 v6, v6, v4
        v_add_u32 v7, s25, v5
        v_lshlrev_b32 v7, 10, v7
        v_lshl_add_u32 v{40+e_}, v6, 4, v7""".split("\n")
    m3 += [f"v_mov_b32 v{i}, 0" for i in range(80, 96)]
    g = []
    for st in range(4):
        g.append(lambda st=st: (k.e(f"s_movk_i32 s43, {st*256}"), k.e(f"s_add_u32 s46, s40, {P2_X+st*16384}")))
        g += gX("s43", "s46")
    merge(k, g, m3)
    k.e(f"""
    v_min_u32 v50, 15, v1
    v_lshlrev_b32 v50, 5, v50
    s_lshl_b32 s24, s{J}, 9
    s_add_u32 s24, s24, 1024
    v_add_u32 v50, s24, v50
    v_cmp_gt_u32 vcc, 14, v1
    s_and_saveexec_b64 s[60:61], vcc
    ds_write_b128 v50, v[112:115]
    ds_write_b128 v50, v[116:119] offset:16
    s_mov_b64 exec, s[60:61]
    s_waitcnt vmcnt(12) lgkmcnt(0)
    s_barrier
    """)
    LJ0 = k.lab("csj0")
    k.e(f"""
    s_cmp_lg_u32 s{J}, 0
    s_cbranch_scc1 {LJ0}
    v_min_u32 v50, 31, v1
    v_lshlrev_b32 v50, 4, v50
    ds_read_b128 v[96:99], v50 offset:1024
    ds_read_b128 v[100:103], v50 offset:1536
    ds_read_b128 v[104:107], v50 offset:2048
    ds_read_b128 v[108:111], v50 offset:2560
    s_lshl_b32 s48, s52, 4
    s_lshl_b32 s49, s53, 3
    s_add_u32 s49, s49, s54
    s_add_u32 s48, s48, s49
    s_lshl_b32 s48, s48, 9
    v_add_u32 v8, s48, v51
    v_mov_b32 v9, 0x80000000
    v_cmp_gt_u32 vcc, 28, v1
    v_cndmask_b32 v8, v9, v8, vcc
    s_waitcnt lgkmcnt(0)
    """)
    for w in range(1,4):
        for i in range(4): k.e(f"v_add_f32 v{96+i}, v{96+i}, v{96+4*w+i}")
    k.e("buffer_store_dwordx4 v[96:99], v8, s[16:19], 0 offen sc1")
    k.e(f"{LJ0}:")
    for st in range(1,4):
        k.e(f"s_waitcnt vmcnt({12-4*st})"); k.e("s_barrier")
    LJ1 = k.lab("csj1")
    k.e(f"""
    s_cmp_lg_u32 s{J}, 0
    s_cbranch_scc1 {LJ1}
    s_lshl_b32 s47, s52, 7
    s_add_u32 s47, s47, 24576
    s_lshl_b32 s49, s49, 2
    s_add_u32 s47, s47, s49
    s_lshl_b32 s47, s47, 5
    v_mov_b32 v2, s47
    v_mov_b32 v3, s{S_NONCE}
    buffer_store_dword v3, v2, s[64:67], 0 offen sc1
    {LJ1}:
    """)
    def p3W(sbase):
        return [(lambda e_=e_: dma(k, 30+e_, 8, "s41", f"s_add_u32 m0, {sbase}, {1024*e_}")) for e_ in range(7)] + [lambda: k.e(f"s_add_u32 s41, s41, {64*3584}")]
    def p3X(sbase):
        return [(lambda e_=e_: dma(k, 40+e_, 4, "s43", f"s_add_u32 m0, {sbase}, {1024*e_}", SC1)) for e_ in range(4)] + [lambda: k.e("s_add_u32 s43, s43, 128")]
    k.e("s_barrier")
    if FINE == 8: stamp(k)
    for st in range(3):
        k.e(f"s_add_u32 s46, s44, {st*P3_WS}"); run(p3W("s46"))
    srd(k, 4, S_WS, 2<<20, add=WS_H)
    if FINE == 8: stamp(k)
    k.e("s_barrier")
    k.e("s_mov_b32 s43, 0")
    k.e(f"s_add_u32 s45, s40, {P3_X}")
    for st in range(3):
        k.e(f"s_add_u32 s46, s45, {st*P3_XS}"); run(p3X("s46"))
    adv3 = f"""
    s_add_u32 s48, s48, {P3_XS}
    s_sub_u32 s46, s48, {3*P3_XS}
    s_add_u32 s47, s45, {3*P3_XS}
    s_cmp_ge_u32 s48, s47
    s_cselect_b32 s48, s46, s48
    """
    k.e("s_mov_b32 s48, s45")
    k.e(f"""
    s_mov_b32 s12, s{S_WD}
    s_mov_b32 s13, s{S_WD+1}
    s_mov_b32 s14, {1792*1024}
    s_mov_b32 s15, 0x00020000
    v_lshrrev_b32 v6, 5, v1
    v_and_b32 v7, 31, v1
    v_lshlrev_b32 v7, 4, v7
    v_lshl_add_u32 v47, v6, 10, v7
    s_lshr_b32 s24, s2, 3
    s_mul_i32 s24, s24, 56
    s_mul_i32 s29, s{J}, 14
    s_add_u32 s24, s24, s29
    s_lshl_b32 s24, s24, 10
    s_bfe_u32 s29, s2, 0x10002
    s_lshl_b32 s29, s29, 9
    s_add_u32 s50, s24, s29
    """)
    k.e("s_waitcnt vmcnt(8)"); k.e("s_barrier")
    for _ in range(2):
        k.e("buffer_load_dwordx4 v[160:163], v47, s[12:15], s50 offen"); k.e("s_add_u32 s50, s50, 2048")
    k.e("s_mov_b32 s38, 1"); k.e("s_mov_b32 s39, 0"); k.e("s_waitcnt vmcnt(6)")
    L = k.lab("l3")
    k.e(".p2align 6")
    k.e(f"""
    {L}:
    s_waitcnt vmcnt(12)
    s_barrier
    """)
    k.e(f"""
    s_mul_i32 s46, s39, {P3_XS}
    s_add_u32 s46, s46, s45
    s_mul_i32 s47, s39, {P3_WS}
    s_add_u32 s47, s47, s44
    """)
    merge(k, p3X("s46") + p3W("s47") + [lambda: (k.e("buffer_load_dwordx4 v[160:163], v47, s[12:15], s50 offen"), k.e("s_add_u32 s50, s50, 2048"))], [])
    k.e(f"""
    s_add_u32 s39, s39, 1
    s_cmp_ge_u32 s39, 3
    s_cselect_b32 s39, 0, s39
    """)
    k.e(f"""
    s_add_u32 s38, s38, 1
    s_cmp_lt_u32 s38, 6
    s_cbranch_scc1 {L}
    s_waitcnt vmcnt(12)
    s_barrier
    """)
    srd(k, 12, S_WS, 131072, add=WS_HS)
    k.e(f"""
    s_lshl_b32 s24, s{S_RB128}, 7
    s_lshl_b32 s29, s{J}, 5
    s_add_u32 s24, s24, s29
    s_lshl_b32 s24, s24, 6
    v_add_u32 v6, s24, v51
    buffer_load_dwordx4 v[64:67], v6, s[12:15], 0 offen sc1
    buffer_load_dwordx4 v[68:71], v6, s[12:15], 0 offen offset:1024 sc1
    """)
    k.e(f"""
    s_lshl_b32 s46, s{S_FB}, 4
    s_and_b32 s49, s{J}, 1
    s_lshl_b32 s49, s49, 3
    s_add_u32 s46, s46, s49
    s_lshl_b32 s46, s46, 9
    v_lshlrev_b32 v8, 4, v1
    v_add_u32 v8, s46, v8
    v_mov_b32 v9, 0x80000000
    v_cmp_gt_u32 vcc, 28, v1
    v_cndmask_b32 v8, v9, v8, vcc
    """)
    for kp in range(8): k.e(f"buffer_load_dwordx4 v[{96+4*kp}:{99+4*kp}], v8, s[16:19], 0 offen offset:{512*kp} sc1")
    k.e("s_waitcnt vmcnt(11)"); k.e("s_barrier")
    k.e("s_waitcnt vmcnt(0)")
    for b0 in (64, 68):
        k.e(f"v_add_f32 v{b0}, v{b0}, v{b0+2}"); k.e(f"v_add_f32 v{b0+1}, v{b0+1}, v{b0+3}")
    for perm in ("quad_perm:[1,0,3,2]", "quad_perm:[2,3,0,1]"):
        for r in (64,65,68,69): k.e(f"v_add_f32_dpp v{r}, v{r}, v{r} {perm} row_mask:0xf bank_mask:0xf")
    k.e(f"""
    v_lshrrev_b32 v6, 2, v1
    s_lshl_b32 s24, s{J}, 5
    v_add_u32 v6, s24, v6
    v_lshlrev_b32 v6, 3, v6
    v_add_u32 v6, {P3_ST}, v6
    """)
    for (b0, off) in ((64,0),(68,128)):
        ln_stats(k, b0, b0+1, 52, 53, 54)
        k.e(f"ds_write_b64 v6, v[52:53] offset:{off}")
    for kp in range(1,8):
        for i in range(4): k.e(f"v_add_f32 v{96+i}, v{96+i}, v{96+4*kp+i}")
    k.e(f"""
    v_min_u32 v8, 27, v1
    v_lshlrev_b32 v8, 3, v8
    s_and_b32 s46, s{J}, 1
    s_mul_i32 s46, s46, {P3_UOFF}
    s_add_u32 s46, s46, 40960
    v_add_u32 v8, s46, v8
    v_cmp_gt_u32 vcc, 28, v1
    s_and_saveexec_b64 s[60:61], vcc
    """)
    for part in range(3):
        k.e("v_cvt_pk_bf16_f32 v100, v96, v97"); k.e("v_cvt_pk_bf16_f32 v101, v98, v99")
        k.e(f"ds_write_b64 v8, v[100:101] offset:{224*part}")
        if part < 2:
            k.e("""
            v_lshlrev_b32 v102, 16, v100
            v_and_b32 v103, 0xffff0000, v100
            v_lshlrev_b32 v104, 16, v101
            v_and_b32 v105, 0xffff0000, v101
            v_sub_f32 v96, v96, v102
            v_sub_f32 v97, v97, v103
            v_sub_f32 v98, v98, v104
            v_sub_f32 v99, v99, v105
            """)
    k.e("s_mov_b64 exec, s[60:61]")
    k.e(f"""
    s_and_b32 s24, s{J}, 1
    s_mul_i32 s24, s24, 448
    v_add_u32 v5, s24, v1
    s_and_b32 s25, s{S_RB64}, 1
    s_mul_i32 s25, s25, {64*224}
    s_lshr_b32 s29, s{S_RB64}, 1
    s_mul_i32 s29, s29, {16*28672}
    s_add_u32 s25, s25, s29
    s_lshl_b32 s26, s{S_CB}, 7
    """)
    LWS = k.lab("p4ws"); LWD = k.lab("p4wd")
    k.e(f"s_cmp_ge_u32 s{J}, 2"); k.e(f"s_cbranch_scc1 {LWS}")
    for e_ in range(7):
        if e_: k.e("v_add_u32 v5, 64, v5")
        k.e(f"""
        v_mul_u32_u24 v6, 4682, v5
        v_lshrrev_b32 v6, 16, v6
        v_mul_u32_u24 v7, 14, v6
        v_sub_u32 v7, v5, v7
        v_bfe_u32 v8, v6, 3, 1
        v_xor_b32 v7, v7, v8
        v_mul_u32_u24 v6, 224, v6
        v_lshl_add_u32 v6, v7, 4, v6
        v_add_u32 v{24+e_}, s25, v6
        """)
    srd(k, 4, S_WS, 7<<20, add=WS_HH)
    k.e(f"""
    s_mov_b32 s42, 28672
    s_mul_i32 s44, s{J}, 7168
    s_add_u32 s44, s44, {P4_X}
    s_branch {LWD}
    {LWS}:
    v_lshrrev_b32 v6, 3, v5
    v_and_b32 v7, 7, v5
    v_bfe_u32 v8, v6, 1, 1
    v_lshlrev_b32 v8, 2, v8
    v_xor_b32 v7, v7, v8
    v_lshlrev_b32 v6, 10, v6
    v_lshl_add_u32 v6, v7, 4, v6
    v_add_u32 v24, s26, v6
    """)
    for e_ in range(1,7): k.e(f"v_add_u32 v{24+e_}, {8192*e_}, v24")
    srd(k, 4, S_WD, 1792*1024)
    k.e(f"""
    s_mov_b32 s42, {112*1024}
    s_and_b32 s44, s{J}, 1
    s_mul_i32 s44, s44, 7168
    s_add_u32 s44, s44, {P4_W}
    {LWD}:
    s_mov_b32 s43, 0
    """)
    def p4(sbase):
        for e_ in range(7): dma(k, 24+e_, 4, "s43", f"s_add_u32 m0, {sbase}, {1024*e_}", SC1)
        k.e("s_add_u32 s43, s43, s42")
    def prefill4():
        Lf = k.lab("p4f")
        k.e("s_mov_b32 s46, s44"); k.e("s_mov_b32 s38, 0")
        k.e(f"{Lf}:")
        p4("s46")
        k.e(f"""
        s_add_u32 s46, s46, {P4_SL}
        s_add_u32 s38, s38, 1
        s_cmp_lt_u32 s38, {P4_NS}
        s_cbranch_scc1 {Lf}
        """)
    k.e("s_waitcnt lgkmcnt(0)")
    k.e("s_barrier")
    LX = k.lab("p4x"); LJ = k.lab("p4j")
    k.e(f"s_cmp_lt_u32 s{J}, 2"); k.e(f"s_cbranch_scc1 {LX}")
    prefill4()
    k.e("s_barrier"); k.e("s_barrier")
    k.e(f"s_branch {LJ}")
    k.e(f"{LX}:")
    k.e("s_barrier"); k.e("s_barrier")
    prefill4()
    k.e(f"{LJ}:")
    k.e("s_waitcnt vmcnt(28)"); k.e("s_barrier")
    k.e(f"""
    s_mov_b32 s38, 1
    s_mov_b32 s46, s44
    s_add_u32 s48, s44, {P4_NS*P4_SL}
    """)
    L = k.lab("l4")
    k.e(".p2align 6")
    k.e(f"""
    {L}:
    s_waitcnt vmcnt(21)
    s_barrier
    """)
    p4("s46")
    k.e(f"""
    s_add_u32 s46, s46, {P4_SL}
    s_cmp_ge_u32 s46, s48
    s_cselect_b32 s46, s44, s46
    s_add_u32 s38, s38, 1
    s_cmp_lt_u32 s38, 12
    s_cbranch_scc1 {L}
    s_waitcnt vmcnt(21)
    s_barrier
    s_waitcnt vmcnt(14)
    s_barrier
    s_waitcnt vmcnt(7)
    s_barrier
    s_waitcnt vmcnt(0)
    s_barrier
    s_barrier
    """)
    stamp(k)


P1_CSP = P1_SC2 + 4608
def cs_job(k):
    k.e(f"""
    s_and_b32 s73, s2, 1
    s_lshr_b32 s72, s2, 1
    s_and_b32 s72, s72, 15
    s_lshr_b32 s63, s2, 5
    s_cmp_eq_u32 s73, 1
    s_cselect_b32 s8, s{S_WU}, s{S_WG}
    s_cselect_b32 s9, s{S_WU+1}, s{S_WG+1}
    s_mov_b32 s10, {512*3584}
    s_mov_b32 s11, 0x00020000
    v_mul_u32_u24 v6, 4682, v1
    v_lshrrev_b32 v6, 16, v6
    v_mul_u32_u24 v7, 14, v6
    v_sub_u32 v7, v1, v7
    v_mul_u32_u24 v8, 3584, v6
    v_lshl_add_u32 v8, v7, 4, v8
    s_mul_i32 s24, s72, 224
    s_lshl_b32 s29, s63, 3
    s_add_u32 s29, s29, s{S_W}
    s_mul_i32 s29, s29, {8*3584}
    s_add_u32 s24, s24, s29
    v_add_u32 v8, s24, v8
    v_mov_b32 v9, 0x80000000
    v_cmp_gt_u32 vcc, 56, v1
    v_cndmask_b32 v8, v9, v8, vcc
    s_movk_i32 s29, {4*3584}
    buffer_load_dwordx4 v[148:151], v8, s[8:11], 0 offen
    buffer_load_dwordx4 v[152:155], v8, s[8:11], s29 offen
    """)
def cs_job2(k):
    for i in range(8): k.e(f"v_mov_b32 v{40+i}, 0")
    for e_ in range(2):
        k.e(f"s_waitcnt vmcnt({1-e_})")
        for d in range(4):
            t0 = 52 + 2*(d&1)
            k.e(f"v_lshlrev_b32 v{t0}, 16, v{148+4*e_+d}")
            k.e(f"v_and_b32 v{t0+1}, 0xffff0000, v{148+4*e_+d}")
            k.e(f"v_add_f32 v{40+2*d}, v{40+2*d}, v{t0}")
            k.e(f"v_add_f32 v{41+2*d}, v{41+2*d}, v{t0+1}")
    k.e("v_add_u32 v50, 14, v1"); k.e("v_lshlrev_b32 v50, 2, v50")
    k.e("v_add_u32 v49, 28, v1"); k.e("v_lshlrev_b32 v49, 2, v49")
    for i in range(8): k.e(f"ds_bpermute_b32 v{148+i}, v50, v{40+i}")
    k.e("s_waitcnt lgkmcnt(0)")
    for i in range(8): k.e(f"v_add_f32 v{40+i}, v{40+i}, v{148+i}")
    for i in range(8): k.e(f"ds_bpermute_b32 v{148+i}, v49, v{40+i}")
    k.e("s_waitcnt lgkmcnt(0)")
    for i in range(8): k.e(f"v_add_f32 v{40+i}, v{40+i}, v{148+i}")
    k.e(f"""
    v_min_u32 v50, 15, v1
    v_lshlrev_b32 v50, 5, v50
    s_lshl_b32 s24, s{S_W}, 9
    s_add_u32 s24, s24, {P1_CSP}
    v_add_u32 v50, s24, v50
    v_cmp_gt_u32 vcc, 14, v1
    s_and_saveexec_b64 s[60:61], vcc
    ds_write_b128 v50, v[40:43]
    ds_write_b128 v50, v[44:47] offset:16
    s_mov_b64 exec, s[60:61]
    """)
def cs_job3(k):
    L = k.lab("csj3")
    k.e(f"""
    s_cmp_lg_u32 s{S_W}, 0
    s_cbranch_scc1 {L}
    v_min_u32 v50, 31, v1
    v_lshlrev_b32 v50, 4, v50
    v_add_u32 v50, {P1_CSP}, v50
    """)
    for w in range(8): k.e(f"ds_read_b128 v[{104+4*w}:{107+4*w}], v50 offset:{512*w}")
    srd(k, 8, S_WS, 1<<20, add=WS_CS)
    k.e(f"""
    s_lshl_b32 s24, s72, 4
    s_lshl_b32 s29, s73, 3
    s_add_u32 s29, s29, s63
    s_add_u32 s24, s24, s29
    s_lshl_b32 s24, s24, 9
    v_lshlrev_b32 v51, 4, v1
    v_add_u32 v51, s24, v51
    v_mov_b32 v9, 0x80000000
    v_cmp_gt_u32 vcc, 28, v1
    v_cndmask_b32 v51, v9, v51, vcc
    s_waitcnt lgkmcnt(0)
    """)
    for w in range(1,8):
        for i in range(4): k.e(f"v_add_f32 v{104+i}, v{104+i}, v{104+4*w+i}")
    k.e("buffer_store_dwordx4 v[104:107], v51, s[8:11], 0 offen sc1")
    k.e(f"{L}:")
def czero(k, addr):
    k.e(f"v_mov_b32 v2, {addr}"); k.e("v_mov_b32 v5, 0"); k.e("ds_write_b32 v2, v5")
def sync(k, cnt, pubs, polls, first=False):
    L = k.lab("sync"); LC_ = k.lab("cw")
    k.e(f"""
    v_mov_b32 v2, {cnt}
    v_mov_b32 v5, 1
    """)
    if FINE == 8: stamp(k)
    k.e("s_waitcnt vmcnt(0)")
    if FINE == 8: stamp(k)
    k.e(f"""
    s_mov_b64 s[60:61], exec
    s_mov_b64 exec, 1
    ds_add_u32 v2, v5
    s_mov_b64 exec, s[60:61]
    """)
    k.e(f"s_cmp_lg_u32 s{S_W}, 0"); k.e(f"s_cbranch_scc1 {L}")
    if first:
        LQ_ = k.lab("getn")
        k.e(f"""
        v_mov_b32 v2, 0
        s_mov_b32 s59, 0
        {LQ_}:
        buffer_load_dword v3, v2, s[68:71], 0 offen sc1
        s_waitcnt vmcnt(0)
        v_readfirstlane_b32 s{S_NONCE}, v3
        s_add_u32 s59, s59, 1
        s_cmp_lg_u32 s{S_NONCE}, 0
        s_cbranch_scc1 {LQ_}_d
        s_cmp_lt_u32 s59, 400000
        s_cbranch_scc1 {LQ_}
        {LQ_}_d:
        """)
    k.e(f"""
    v_mov_b32 v2, {cnt}
    {LC_}:
    ds_read_b32 v5, v2
    s_waitcnt lgkmcnt(0)
    v_readfirstlane_b32 s59, v5
    s_cmp_lt_u32 s59, 8
    s_cbranch_scc1 {LC_}
    """)
    if FINE == 8: stamp(k)
    k.e(f"v_mov_b32 v3, s{S_NONCE}")
    for code in pubs:
        k.e(code)
        k.e("s_lshl_b32 s59, s59, 5")
        k.e("v_mov_b32 v2, s59")
        k.e("buffer_store_dword v3, v2, s[64:67], 0 offen sc1")
    (code, nwords) = polls[0]
    k.e(code)
    k.e(f"""
    v_and_b32 v2, {nwords-1}, v1
    v_lshlrev_b32 v2, 7, v2
    s_lshl_b32 s58, s58, 5
    v_add_u32 v2, s58, v2
    """)
    if len(polls) > 1:
        k.e(polls[1][0])
        k.e(f"""
        v_and_b32 v5, 15, v1
        v_lshlrev_b32 v5, 7, v5
        s_lshl_b32 s58, s58, 5
        v_add_u32 v5, s58, v5
        v_cmp_gt_u32 vcc, 32, v1
        v_cndmask_b32 v2, v5, v2, vcc
        """)
    Lp = k.lab("poll"); D = k.lab("polld")
    k.e(f"""
    s_mov_b32 s59, 0
    {Lp}:
    s_sleep {PSLEEP}
    buffer_load_dword v3, v2, s[64:67], 0 offen sc1
    s_waitcnt vmcnt(0)
    v_cmp_ne_u32 vcc, s{S_NONCE}, v3
    s_add_u32 s59, s59, 1
    s_cmp_eq_u64 vcc, 0
    s_cbranch_scc1 {D}
    s_cmp_lt_u32 s59, 400000
    s_cbranch_scc1 {Lp}
    {D}:
    """)
    if FINE == 8: stamp(k)
    k.e(f"{L}:")
    k.e("s_barrier")
    if FINE == 8: stamp(k)

def interleave(k, mfmas, fillers):
    n = len(mfmas); m = len(fillers); fi = 0
    for i, mf in enumerate(mfmas):
        mf()
        upto = (m*(i+1))//n
        while fi < upto:
            fillers[fi](); fi += 1

def xstats1(k):
    srd(k, 8, S_X, 2<<20); srd(k, 12, S_WS, 32768, add=WS_XS)
    k.e(f"""
    s_lshl_b32 s62, s2, 3
    s_add_u32 s62, s62, s{S_W}
    s_lshl_b32 s29, s62, 10
    v_lshlrev_b32 v5, 4, v1
    v_mov_b32 v152, 0
    """)
    if not os.environ.get("NOWARM"):
        srd(k, 4, S_WQKV, 512*3072)
        k.e(f"s_lshl_b32 s24, s62, 10")
        k.e("buffer_load_dwordx4 v[160:163], v5, s[4:7], s24 offen")
    k.e("buffer_load_dwordx4 v[148:151], v5, s[8:11], s29 offen")

def xstats2(k):
    LQ_ = k.lab("getn0")
    k.e(f"""
    v_mov_b32 v154, {P1_SC+712}
    ds_read_b32 v153, v154
    v_mov_b32 v156, 0
    v_mov_b32 v157, 0
    s_waitcnt vmcnt(0)
    """)
    for d in range(4):
        k.e(f"""
        v_lshlrev_b32 v154, 16, v{148+d}
        v_and_b32 v155, 0xffff0000, v{148+d}
        v_add_f32 v156, v156, v154
        v_fmac_f32 v157, v154, v154
        v_add_f32 v156, v156, v155
        v_fmac_f32 v157, v155, v155
        """)
    for perm in ("quad_perm:[1,0,3,2]", "quad_perm:[2,3,0,1]", "row_half_mirror", "row_mirror"):
        for r in (156,157): k.e(f"v_add_f32_dpp v{r}, v{r}, v{r} {perm} row_mask:0xf bank_mask:0xf")
    for r in (156,157): red16(k, r, 154); red32(k, r, 154)
    k.e(f"""
    s_waitcnt lgkmcnt(0)
    v_readfirstlane_b32 s{S_NONCE}, v153
    v_mov_b32 v158, s{S_NONCE}
    v_mov_b32 v159, 0
    s_lshl_b32 s62, s62, 4
    v_mov_b32 v152, s62
    s_mov_b64 s[60:61], exec
    s_mov_b64 exec, 1
    buffer_store_dwordx4 v[156:159], v152, s[12:15], 0 offen sc1
    s_mov_b64 exec, s[60:61]
    s_lshl_b32 s62, s62, 6
    v_lshlrev_b32 v152, 4, v1
    """)
    if not os.environ.get("NOWARM2"):
        for (ptr, size) in ((S_WO, 512*1024), (S_WG, 512*3584), (S_WU, 512*3584), (S_WD, 1792*1024)):
            srd(k, 4, ptr, size)
            k.e("buffer_load_dwordx4 v[160:163], v152, s[4:7], s62 offen")

def p1(k):
    NS, SLOT, WOFF, nst = P1_NS, P1_SLOT, P1_WOFF, 8
    xstats1(k)
    k.e(f"""
    s_and_b32 s27, s{S_W}, 3
    s_lshr_b32 s28, s{S_W}, 2
    v_and_b32 v3, 15, v1
    v_lshrrev_b32 v4, 4, v1
    v_lshrrev_b32 v5, 1, v3
    v_xor_b32 v5, v5, v4
    v_lshlrev_b32 v5, 4, v5
    v_lshlrev_b32 v6, 7, v3
    v_add_u32 v9, v5, v6
    v_lshrrev_b32 v5, 2, v3
    v_and_b32 v6, 3, v3
    v_lshlrev_b32 v7, 3, v4
    v_add_u32 v7, v5, v7
    v_mul_u32_u24 v7, 384, v7
    v_lshrrev_b32 v5, 1, v5
    v_and_b32 v8, 1, v4
    v_lshlrev_b32 v8, 1, v8
    v_or_b32 v5, v5, v8
    v_xor_b32 v5, s27, v5
    v_lshlrev_b32 v5, 5, v5
    v_add_u32 v7, v7, v5
    v_lshlrev_b32 v6, 3, v6
    v_add_u32 v7, v7, v6
    v_add_u32 v18, {WOFF}, v7
    s_mov_b32 s55, 0x3f803f80
    """)
    k.e(f"""
    s_cmp_eq_u32 s27, 3
    s_cselect_b32 s50, 0, s27
    s_add_u32 s51, s50, 1
    s_cmp_ge_u32 s51, 3
    s_cselect_b32 s54, 3, 0
    s_sub_u32 s51, s51, s54
    s_add_u32 s52, s50, 2
    s_cmp_ge_u32 s52, 3
    s_cselect_b32 s54, 3, 0
    s_sub_u32 s52, s52, s54
    s_and_b32 s53, s27, 1
    s_add_u32 s54, s53, 3
    s_xor_b32 s53, s53, 1
    s_add_u32 s53, s53, 3
    s_cmp_eq_u32 s28, 0
    s_cselect_b32 s50, s50, s54
    s_cselect_b32 s51, s51, s53
    """)
    for t in range(3):
        k.e(f"s_lshl_b32 s24, s{50+t}, 11")
        k.e(f"v_add_u32 v{10+2*t}, s24, v9")
        k.e(f"v_xor_b32 v{11+2*t}, 64, v{10+2*t}")
    for i in range(22, 31): k.e(f"v_mov_b32 v{i}, 0")
    for i in range(36): k.e(f"v_mov_b32 v{64+i}, 0")
    for i in range(124, 148): k.e(f"v_mov_b32 v{i}, 0")
    srd(k, 16, S_WS, 2<<20, add=WS_O)
    k.e(f"""
    s_mov_b32 s49, {(-(NS-1)*SLOT) & 0xffffffff}
    s_mov_b32 s56, {SLOT}
    s_mov_b32 s38, 0
    s_mov_b32 s39, 0
    v_lshrrev_b32 v5, 3, v1
    v_and_b32 v5, 3, v5
    v_mul_u32_u24 v5, {SLOT}, v5
    v_and_b32 v6, 7, v1
    v_lshlrev_b32 v6, 4, v6
    v_add_u32 v5, v5, v6
    v_mov_b32 v32, s55
    v_mov_b32 v33, s55
    v_mov_b32 v34, s55
    v_mov_b32 v35, s55
    ds_write_b128 v5, v[32:35]
    """)
    WB = [100, 124]; XB = [112, 136]
    def body(NT, th):
        q = LQ(k)
        def read_list(jj):
            out = []
            def w(u, h):
                return lambda: q.rd(("W",jj,u), f"ds_read_b64_tr_b16 v[{WB[jj]+4*u+2*h}:{WB[jj]+4*u+2*h+1}], v18 offset:{128*u+(32*jj+4*h)*384}")
            def x(t):
                return lambda: q.rd(("X",jj,t), f"ds_read_b128 v[{XB[jj]+4*t}:{XB[jj]+4*t+3}], v{10+2*t+jj}")
            out += [x(0), w(0,0), w(0,1), w(1,0), w(1,1), w(2,0), w(2,1)]
            for t in range(1, NT): out.append(x(t))
            return out
        def dots(jj):
            out = []
            x = XB[jj]
            for d in range(4):
                t0 = 32 + 2*(d&1)
                out.append(lambda d=d,t0=t0: k.e(f"v_lshlrev_b32 v{t0}, 16, v{x+d}"))
                out.append(lambda d=d,t0=t0: k.e(f"v_and_b32 v{t0+1}, 0xffff0000, v{x+d}"))
                out.append(lambda d=d,t0=t0: k.e(f"v_add_f32 v22, v22, v{t0}"))
                out.append(lambda d=d,t0=t0: k.e(f"v_add_f32 v26, v26, v{t0+1}"))
                out.append(lambda d=d,t0=t0: k.e(f"v_fmac_f32 v23, v{t0}, v{t0}"))
                out.append(lambda d=d,t0=t0: k.e(f"v_fmac_f32 v27, v{t0+1}, v{t0+1}"))
            return out
        def step(jj, nxt, waits):
            mf = []
            for t in range(NT):
                for u in range(3):
                    def f(t=t, u=u):
                        if waits: q.wait([("W",jj,u), ("X",jj,t)])
                        a = 64+12*t+4*u; x = XB[jj]+4*t
                        k.e(f"v_mfma_f32_16x16x32_bf16 v[{a}:{a+3}], v[{WB[jj]+4*u}:{WB[jj]+4*u+3}], v[{x}:{x+3}], v[{a}:{a+3}]")
                    mf.append(f)
            rl = read_list(nxt) if nxt is not None else []
            dl = []
            fill = []
            n = len(mf)
            interleave(k, mf[:3], rl[:4])
            interleave(k, mf[3:], rl[4:] + dl)
        LOOP = k.lab("loop")
        k.e(".p2align 6")
        k.e(f"{LOOP}:")
        k.e(f"s_waitcnt lgkmcnt(0)")
        q.q = []
        if FINE == 1: stamp(k)
        k.e("s_barrier")
        if FINE == 1: stamp(k)
        k.e(f"""
        s_add_u32 s39, s39, 1
        s_cmp_ge_u32 s39, {NS}
        s_cselect_b32 s48, s49, s56
        s_cselect_b32 s39, 0, s39
        s_add_u32 s38, s38, 1
        """)
        step(1, 0, False)
        step(0, 1, True)
        for r in list(range(10, 10+2*NT)) + [18]: k.e(f"v_add_u32 v{r}, s48, v{r}")
        LXS = k.lab("xs2"); LXB = k.lab("xsb"); LXD = k.lab("xsd")
        LXN = k.lab("xsn")
        k.e(f"""
        s_cmp_le_u32 s38, 3
        s_cbranch_scc1 {LXN}
        {LXB}:
        s_cmp_lt_u32 s38, {nst}
        s_cbranch_scc1 {LOOP}
        s_branch {LXD}
        {LXN}:
        s_cmp_eq_u32 s38, 3
        s_cbranch_scc1 {LXS}
        s_cmp_lg_u32 s{S_W}, 0
        s_cbranch_scc1 {LXB}
        s_cmp_eq_u32 s38, 2
        s_cbranch_scc1 {LXN}_2
        buffer_load_dword v153, v152, s[68:71], 0 offen sc1
        s_branch {LXB}
        {LXN}_2:
        s_mov_b32 s59, 0
        {LXN}_3:
        s_waitcnt vmcnt(0)
        v_readfirstlane_b32 s{S_NONCE}, v153
        s_add_u32 s59, s59, 1
        s_cmp_lg_u32 s{S_NONCE}, 0
        s_cbranch_scc1 {LXN}_4
        buffer_load_dword v153, v152, s[68:71], 0 offen sc1
        s_cmp_lt_u32 s59, 400000
        s_cbranch_scc1 {LXN}_3
        {LXN}_4:
        v_mov_b32 v154, {P1_SC+712}
        ds_write_b32 v154, v153
        s_branch {LXB}
        {LXS}:
        """)
        xstats2(k)
        k.e(f"""
        s_branch {LXB}
        {LXD}:
        s_waitcnt lgkmcnt(0)
        """)
        q.q = []
        step(1, None, False)
        if th == 0:
            k.e(f"""
            s_lshl_b32 s57, s27, 6
            s_add_u32 s57, s57, {P1_SC2}
            v_lshlrev_b32 v32, 4, v4
            v_add_u32 v32, s57, v32
            v_mov_b32 v33, {P1_SC2 + 2304}
            v_cmp_eq_u32 vcc, 0, v3
            v_cndmask_b32 v32, v33, v32, vcc
            """)
            for t in range(3):
                k.e(f"s_mul_i32 s57, s{50+t}, 768")
                k.e(f"v_add_u32 v33, s57, v32")
                for u in range(3):
                    a = 64+12*t+4*u
                    k.e(f"ds_write_b128 v33, v[{a}:{a+3}] offset:{256*u}")
        k.e("s_waitcnt lgkmcnt(0)")
        if FINE == 4: stamp(k)
        k.e("s_barrier")
        if FINE == 4: stamp(k)
        k.e(f"""
        v_lshlrev_b32 v31, 3, v3
        v_add_u32 v31, {P1_SC}, v31
        s_lshl_b32 s57, s27, 6
        s_add_u32 s57, s57, {P1_SC2}
        v_lshlrev_b32 v32, 4, v4
        v_add_u32 v32, s57, v32
        v_mul_u32_u24 v40, {RS}, v3
        v_lshlrev_b32 v41, 3, v4
        v_add_u32 v40, v40, v41
        s_lshl_b32 s57, s27, 5
        v_add_u32 v40, s57, v40
        """)
        for t in range(NT):
            k.e(f"s_lshl_b32 s57, s{50+t}, 7")
            k.e(f"v_add_u32 v33, s57, v31")
            k.e(f"ds_read_b64 v[{34+2*t}:{35+2*t}], v33")
            k.e(f"s_mul_i32 s57, s{50+t}, {16*RS}")
            k.e(f"v_add_u32 v{42+t}, s57, v40")
        for u4 in range(3): k.e(f"ds_read_b128 v[{124+4*u4}:{127+4*u4}], v32 offset:{256*u4}")
        k.e("s_waitcnt lgkmcnt(0)")
        for u in range(3):
            for t in range(NT):
                a = 64+12*t+4*u
                for i in range(4): k.e(f"v_mul_f32 v{a+i}, v{35+2*t}, v{a+i}")
                for i in range(4): k.e(f"v_fmac_f32 v{a+i}, v{34+2*t}, v{124+4*u+i}")
                k.e(f"v_cvt_pk_bf16_f32 v{a}, v{a}, v{a+1}")
                k.e(f"v_cvt_pk_bf16_f32 v{a+1}, v{a+2}, v{a+3}")
                k.e(f"ds_write_b64 v{42+t}, v[{a}:{a+1}] offset:{128*u}")
    L1 = k.lab("th1"); LA = k.lab("attn")
    k.e("s_cmp_eq_u32 s28, 0"); k.e(f"s_cbranch_scc0 {L1}")
    body(3, 0)
    k.e(f"s_branch {LA}")
    k.e(f"{L1}:")
    body(2, 1)
    k.e(f"{LA}:")
    czero(k, 32256)
    k.e("s_waitcnt lgkmcnt(0)")
    k.e("s_barrier")

def attention(k):
    LG = 96
    k.e(f"""
    v_lshrrev_b32 v2, 3, v0
    v_lshrrev_b32 v3, 1, v0
    v_and_b32 v3, 3, v3
    v_and_b32 v4, 1, v0
    v_add_u32 v5, 16, v2
    v_mul_u32_u24 v5, {RS}, v5
    v_lshlrev_b32 v6, 5, v3
    v_add_u32 v5, v5, v6
    v_mul_u32_u24 v6, {8*RS}, v4
    v_sub_u32 v7, v5, v6
    v_subrev_u32 v7, {6*RS}, v7
    v_lshlrev_b32 v8, 4, v4
    v_add_u32 v9, v7, v8
    v_xor_b32 v10, 1, v4
    v_mul_u32_u24 v10, {8*RS}, v10
    v_sub_u32 v10, v5, v10
    v_subrev_u32 v10, {6*RS}, v10
    v_add_u32 v10, v10, v8
    ds_read_b128 v[16:19], v5
    ds_read_b128 v[20:23], v5 offset:16
    """)
    for i in range(4):
        k.e(f"ds_read_b128 v[{24+8*i}:{27+8*i}], v7 offset:{(6-2*i)*RS+128}")
        k.e(f"ds_read_b128 v[{28+8*i}:{31+8*i}], v7 offset:{(6-2*i)*RS+144}")
    for i in range(4): k.e(f"ds_read_b128 v[{64+4*i}:{67+4*i}], v9 offset:{(6-2*i)*RS+256}")
    k.e("s_waitcnt lgkmcnt(4)")
    for i in range(4): k.e(f"ds_read_b128 v[{80+4*i}:{83+4*i}], v10 offset:{(6-2*i)*RS+256}")
    for i in range(4): k.e(f"v_mov_b32 v{LG+i}, 0")
    for d in range(8):
        for i in range(4): k.e(f"v_dot2_f32_bf16 v{LG+i}, v{16+d}, v{24+8*i+d}, v{LG+i}")
    k.e(f"""
    s_lshl_b32 s24, s{S_RB64}, 6
    v_add_u32 v11, s24, v2
    v_lshlrev_b32 v12, 3, v4
    v_sub_u32 v11, v11, v12
    s_mov_b32 s57, {f2u(-4e9)}
    v_mov_b32 v13, s57
    v_cvt_pk_bf16_f32 v{LG+4}, v{LG}, v{LG+1}
    v_cvt_pk_bf16_f32 v{LG+5}, v{LG+2}, v{LG+3}
    v_lshlrev_b32 v{LG}, 16, v{LG+4}
    v_and_b32 v{LG+1}, 0xffff0000, v{LG+4}
    v_lshlrev_b32 v{LG+2}, 16, v{LG+5}
    v_and_b32 v{LG+3}, 0xffff0000, v{LG+5}
    """)
    for i in range(4):
        k.e(f"v_cmp_gt_i32 vcc, {2*i}, v11")
        k.e(f"v_cndmask_b32 v{LG+i}, v{LG+i}, v13, vcc")
    for i in range(4): k.e(f"v_mov_b32_dpp v{LG+4+i}, v{LG+i} quad_perm:[1,0,3,2] row_mask:0xf bank_mask:0xf")
    c = 0.25*1.4426950408889634
    k.e(f"""
    v_max3_f32 v12, v{LG}, v{LG+1}, v{LG+2}
    v_max3_f32 v12, v12, v{LG+3}, v{LG+4}
    v_max3_f32 v12, v12, v{LG+5}, v{LG+6}
    v_max_f32 v12, v12, v{LG+7}
    s_mov_b32 s57, {f2u(c)}
    v_mul_f32 v12, s57, v12
    """)
    for i in range(8): k.e(f"v_fma_f32 v{LG+i}, v{LG+i}, s57, -v12")
    for i in range(8): k.e(f"v_exp_f32 v{LG+i}, v{LG+i}")
    k.e(f"""
    v_add_f32 v12, v{LG}, v{LG+1}
    v_add_f32 v13, v{LG+2}, v{LG+3}
    v_add_f32 v14, v{LG+4}, v{LG+5}
    v_add_f32 v15, v{LG+6}, v{LG+7}
    v_add_f32 v12, v12, v13
    v_add_f32 v14, v14, v15
    v_add_f32 v12, v12, v14
    v_rcp_f32 v12, v12
    """)
    for i in range(8): k.e(f"v_mul_f32 v{LG+i}, v{LG+i}, v12")
    for i in range(8):
        k.e(f"v_cvt_pk_bf16_f32 v{24+i}, v{LG+i}, 0")
        k.e(f"v_lshlrev_b32 v{32+i}, 16, v{24+i}")
    for i in range(8): k.e(f"v_mov_b32 v{40+i}, 0")
    k.e("s_waitcnt lgkmcnt(0)")
    for i in range(8):
        for d in range(4):
            k.e(f"v_dot2_f32_bf16 v{40+2*d}, v{64+4*i+d}, v{24+i}, v{40+2*d}")
            k.e(f"v_dot2_f32_bf16 v{41+2*d}, v{64+4*i+d}, v{32+i}, v{41+2*d}")
    for d in range(4): k.e(f"v_cvt_pk_bf16_f32 v{48+d}, v{40+2*d}, v{41+2*d}")
    k.e(f"""
    v_add_u32 v11, s24, v2
    v_lshlrev_b32 v11, 10, v11
    v_and_b32 v12, 7, v0
    v_lshlrev_b32 v12, 4, v12
    v_add_u32 v11, v11, v12
    s_lshl_b32 s26, s{S_CB}, 7
    v_add_u32 v11, s26, v11
    buffer_store_dwordx4 v[48:51], v11, s[16:19], 0 offen{SC1}
    """)


def g_common(k):
    k.e(f"""
    s_and_b32 s27, s{S_W}, 1
    s_lshr_b32 s28, s{S_W}, 1
    s_and_b32 s28, s28, 1
    s_lshr_b32 s29, s{S_W}, 2
    v_and_b32 v3, 31, v1
    s_lshl_b32 s24, s27, 5
    v_add_u32 v3, s24, v3
    v_lshrrev_b32 v4, 5, v1
    v_lshrrev_b32 v5, 4, v1
    v_and_b32 v6, 1, v5
    v_lshrrev_b32 v5, 1, v5
    v_and_b32 v7, 15, v1
    v_lshrrev_b32 v8, 2, v7
    v_and_b32 v7, 3, v7
    v_lshl_add_u32 v5, v5, 3, v8
    v_lshlrev_b32 v5, 7, v5
    v_lshrrev_b32 v8, 1, v8
    v_xor_b32 v8, s28, v8
    v_lshl_add_u32 v5, v8, 6, v5
    v_lshl_add_u32 v5, v6, 5, v5
    v_lshl_add_u32 v9, v7, 3, v5
    """)
    for i in range(16): k.e(f"v_mov_b32 v{32+i}, 0")
    for i in range(16): k.e(f"v_mov_b32 v{96+i}, 0")
def g_mfma(k, b): k.e(f"v_mfma_f32_32x32x16_bf16 v[32:47], v[{b+4}:{b+7}], v[{b}:{b+3}], v[32:47]")
def p2_main(k):
    g_common(k)
    k.e(f"""
    v_and_b32 v5, 15, v3
    v_xor_b32 v5, v5, v4
    v_lshlrev_b32 v5, 4, v5
    v_lshl_add_u32 v5, v3, 8, v5
    s_lshl_b32 s24, s29, 7
    v_xor_b32 v5, s24, v5
    v_add_u32 v10, {P2_X}, v5
    v_xor_b32 v11, 32, v10
    v_xor_b32 v12, 64, v10
    v_xor_b32 v13, 0x60, v10
    s_lshl_b32 s24, s29, 13
    s_add_u32 s24, s24, {P2_W}
    v_add_u32 v14, s24, v9
    v_lshrrev_b32 v5, 3, v0
    s_lshl_b32 s25, s{S_RB64}, 6
    v_add_u32 v5, s25, v5
    v_and_b32 v6, 7, v0
    v_lshlrev_b32 v6, 4, v6
    v_lshl_add_u32 v5, v5, 10, v6
    s_lshl_b32 s26, s{S_CB}, 7
    v_add_u32 v57, s26, v5
    """)
    srd(k, 12, S_X, 2<<20)
    k.e(f"buffer_load_dwordx4 v[{VRES}:{VRES+3}], v57, s[12:15], 0 offen")
    BUF = [80, 96]
    def reads(st, hf):
        for j2 in range(2):
            j = 2*hf + j2; b = BUF[hf] + 8*j2
            k.e(f"ds_read_b128 v[{b}:{b+3}], v{10+j} offset:{16384*st}")
            k.e(f"ds_read_b64_tr_b16 v[{b+4}:{b+5}], v14 offset:{16384*st+2048*j}")
            k.e(f"ds_read_b64_tr_b16 v[{b+6}:{b+7}], v14 offset:{16384*st+2048*j+512}")
    for st in range(4):
        k.e("s_waitcnt lgkmcnt(0)"); k.e("s_barrier")
        reads(st, 0)
        if st: g_mfma(k, 96); g_mfma(k, 104)
        reads(st, 1)
        k.e("s_waitcnt lgkmcnt(6)")
        g_mfma(k, 80); g_mfma(k, 88)
    k.e("s_waitcnt lgkmcnt(0)")
    g_mfma(k, 96); g_mfma(k, 104)
def p4_main(k):
    g_common(k)
    k.e(f"""
    v_bfe_u32 v5, v3, 3, 1
    v_xor_b32 v5, v5, v4
    v_lshlrev_b32 v5, 4, v5
    v_mul_u32_u24 v6, 224, v3
    v_add_u32 v5, v5, v6
    s_lshl_b32 s24, s29, 7
    s_add_u32 s24, s24, {P4_X}
    v_add_u32 v10, s24, v5
    s_lshl_b32 s24, s29, 13
    s_add_u32 s24, s24, {P4_W}
    v_add_u32 v14, s24, v9
    s_mov_b32 s49, {(-(P4_NS-1)*P4_SL) & 0xffffffff}
    s_mov_b32 s56, {P4_SL}
    s_mov_b32 s38, 0
    s_mov_b32 s39, 0
    """)
    BUF = [80, 96]
    def body(NK):
        nb = NK - 2
        def reads(hf):
            for j2 in range(2 if hf == 0 else nb):
                j = 2*hf + j2; b = BUF[hf] + 8*j2
                k.e(f"ds_read_b128 v[{b}:{b+3}], v10 offset:{32*j}")
                k.e(f"ds_read_b64_tr_b16 v[{b+4}:{b+5}], v14 offset:{2048*j}")
                k.e(f"ds_read_b64_tr_b16 v[{b+6}:{b+7}], v14 offset:{2048*j+512}")
        LOOP = k.lab("gloop")
        k.e(".p2align 6")
        k.e(f"""
        {LOOP}:
        s_waitcnt lgkmcnt(0)
        s_barrier
        """)
        reads(0)
        k.e(f"""
        s_add_u32 s39, s39, 1
        s_cmp_ge_u32 s39, {P4_NS}
        s_cselect_b32 s48, s49, s56
        s_cselect_b32 s39, 0, s39
        s_add_u32 s38, s38, 1
        """)
        for j2 in range(nb): g_mfma(k, 96+8*j2)
        reads(1)
        k.e(f"s_waitcnt lgkmcnt({3*nb})")
        g_mfma(k, 80); g_mfma(k, 88)
        k.e(f"""
        v_add_u32 v10, s48, v10
        v_add_u32 v14, s48, v14
        s_cmp_lt_u32 s38, 16
        s_cbranch_scc1 {LOOP}
        s_waitcnt lgkmcnt(0)
        """)
        for j2 in range(nb): g_mfma(k, 96+8*j2)
    L3 = k.lab("p4b"); LE = k.lab("p4e")
    k.e("s_cmp_eq_u32 s29, 0"); k.e(f"s_cbranch_scc0 {L3}")
    body(4)
    k.e(f"s_branch {LE}")
    k.e(f"{L3}:")
    body(3)
    k.e(f"{LE}:")
def g_epi(k, osrd_fn, sc, hstats=False, GB=0):
    osrd_fn()
    k.e(f"""
    v_mul_u32_u24 v5, {GS_RS}, v3
    v_lshl_add_u32 v5, v4, 4, v5
    s_mul_i32 s24, s29, {64*GS_RS}
    s_lshl_b32 s30, s28, 7
    s_add_u32 s24, s24, s30
    s_add_u32 s24, s24, {GB}
    v_add_u32 v5, s24, v5
    v_lshrrev_b32 v6, 3, v0
    v_mul_u32_u24 v6, {GS_RS}, v6
    v_and_b32 v7, 7, v0
    v_lshl_add_u32 v6, v7, 5, v6
    v_add_u32 v6, {GB}, v6
    """)
    for q in range(4): k.e(f"ds_write_b128 v5, v[{32+4*q}:{35+4*q}] offset:{32*q}")
    if hstats: czero(k, 40960)
    k.e("s_waitcnt vmcnt(0) lgkmcnt(0)")
    k.e("s_barrier")
    k.e(f"""
    ds_read_b128 v[32:35], v6
    ds_read_b128 v[36:39], v6 offset:16
    ds_read_b128 v[40:43], v6 offset:{64*GS_RS}
    ds_read_b128 v[44:47], v6 offset:{64*GS_RS+16}
    s_waitcnt lgkmcnt(0)
    """)
    for i in range(8): k.e(f"v_add_f32 v{32+i}, v{32+i}, v{40+i}")
    for p in range(4):
        a = 32+2*p; r = VRES+p
        k.e(f"""
        v_cvt_pk_bf16_f32 v48, v{a}, v{a+1}
        v_lshlrev_b32 v49, 16, v48
        v_and_b32 v50, 0xffff0000, v48
        v_lshlrev_b32 v51, 16, v{r}
        v_and_b32 v52, 0xffff0000, v{r}
        v_add_f32 v49, v49, v51
        v_add_f32 v50, v50, v52
        v_cvt_pk_bf16_f32 v{r}, v49, v50
        """)
    k.e(f"buffer_store_dwordx4 v[{VRES}:{VRES+3}], v57, s[16:19], 0 offen{sc}")
    if hstats:
        srd(k, 12, S_WS, 131072, add=WS_HS)
        k.e("v_mov_b32 v44, 0"); k.e("v_mov_b32 v45, 0")
        for d in range(4):
            k.e(f"""
            v_lshlrev_b32 v48, 16, v{VRES+d}
            v_and_b32 v49, 0xffff0000, v{VRES+d}
            v_add_f32 v44, v44, v48
            v_fmac_f32 v45, v48, v48
            v_add_f32 v44, v44, v49
            v_fmac_f32 v45, v49, v49
            """)
        for perm in ("quad_perm:[1,0,3,2]", "quad_perm:[2,3,0,1]", "row_half_mirror"):
            for r in (44,45): k.e(f"v_add_f32_dpp v{r}, v{r}, v{r} {perm} row_mask:0xf bank_mask:0xf")
        k.e(f"""
        v_lshrrev_b32 v5, 3, v0
        s_lshl_b32 s24, s{S_RB64}, 6
        v_add_u32 v5, s24, v5
        v_lshlrev_b32 v5, 6, v5
        s_lshl_b32 s24, s{S_CB}, 3
        v_add_u32 v5, s24, v5
        v_and_b32 v6, 7, v0
        v_cmp_eq_u32 vcc, 0, v6
        s_and_saveexec_b64 s[60:61], vcc
        buffer_store_dwordx2 v[44:45], v5, s[12:15], 0 offen sc1
        s_mov_b64 exec, s[60:61]
        """)

def p3_main(k):
    nst = 8
    czero(k, 7168)
    srd(k, 16, S_WS, 7<<20, add=WS_HH)
    k.e(f"""
    s_lshl_b32 s25, s{S_RB128}, 7
    s_and_b32 s27, s{S_W}, 3
    s_lshr_b32 s28, s{S_W}, 2
    v_and_b32 v3, 31, v1
    s_lshl_b32 s29, s27, 5
    v_add_u32 v3, s29, v3
    v_lshrrev_b32 v4, 5, v1
    v_lshrrev_b32 v5, 1, v3
    v_and_b32 v5, 7, v5
    v_xor_b32 v5, v5, v4
    v_lshlrev_b32 v5, 4, v5
    v_lshlrev_b32 v6, 7, v3
    v_add_u32 v5, v6, v5
    v_add_u32 v16, {P3_X}, v5
    v_xor_b32 v17, 32, v16
    v_xor_b32 v18, 64, v16
    v_xor_b32 v19, 0x60, v16
    v_lshrrev_b32 v5, 4, v1
    v_and_b32 v6, 1, v5
    v_lshrrev_b32 v5, 1, v5
    v_and_b32 v7, 15, v1
    v_lshrrev_b32 v8, 2, v7
    v_and_b32 v7, 3, v7
    v_lshlrev_b32 v5, 3, v5
    v_add_u32 v5, v5, v8
    v_mul_u32_u24 v5, 224, v5
    v_mul_u32_u24 v6, {P3_UOFF}, v6
    v_add_u32 v5, v5, v6
    v_lshlrev_b32 v7, 3, v7
    v_add_u32 v5, v5, v7
    v_add_u32 v9, {P3_W}, v5
    v_mul_u32_u24 v5, {RSO}, v3
    v_lshl_add_u32 v5, v4, 4, v5
    v_add_u32 v24, {P3_OUT}, v5
    s_mov_b32 s55, 0x3f803f80
    """)
    k.e("""
    s_cmp_eq_u32 s27, 3
    s_cselect_b32 s60, 0, s27
    s_add_u32 s61, s60, 1
    s_cmp_ge_u32 s61, 3
    s_cselect_b32 s54, 3, 0
    s_sub_u32 s61, s61, s54
    s_add_u32 s62, s60, 2
    s_cmp_ge_u32 s62, 3
    s_cselect_b32 s54, 3, 0
    s_sub_u32 s62, s62, s54
    s_add_u32 s60, s60, 4
    s_add_u32 s61, s61, 4
    s_add_u32 s62, s62, 4
    s_add_u32 s51, s27, 1
    s_and_b32 s51, s51, 3
    s_add_u32 s52, s27, 2
    s_and_b32 s52, s52, 3
    s_add_u32 s53, s27, 3
    s_and_b32 s53, s53, 3
    s_cmp_eq_u32 s28, 0
    s_cselect_b32 s50, s27, s60
    s_cselect_b32 s51, s51, s61
    s_cselect_b32 s52, s52, s62
    """)
    for q in range(4):
        k.e(f"s_lshl_b32 s24, s{50+q}, 5"); k.e(f"v_add_u32 v{20+q}, s24, v9")
    for i in range(26, 32): k.e(f"v_mov_b32 v{i}, 0")
    for i in range(64): k.e(f"v_mov_b32 v{64+i}, 0")
    for i in range(132,136): k.e(f"v_mov_b32 v{i}, 0")
    for i in range(152,168): k.e(f"v_mov_b32 v{i}, 0")
    k.e(f"""
    s_mov_b32 s49, {(-2*P3_XS) & 0xffffffff}
    s_mov_b32 s46, {(-2*P3_WS) & 0xffffffff}
    s_mov_b32 s56, {P3_XS}
    s_mov_b32 s45, {P3_WS}
    s_mov_b32 s38, 0
    s_mov_b32 s39, 0
    """)
    XB = [128, 132]; WBB = [136, 152]
    def body(NQ, nh):
        def rdX(j): k.e(f"ds_read_b128 v[{XB[j&1]}:{XB[j&1]+3}], v{16+j}")
        def rdW(j,q):
            WB = WBB[j&1]
            k.e(f"ds_read_b64_tr_b16 v[{WB+4*q}:{WB+4*q+1}], v{20+q} offset:{3584*j}")
            k.e(f"ds_read_b64_tr_b16 v[{WB+4*q+2}:{WB+4*q+3}], v{20+q} offset:{3584*j+896}")
        def step(j, nxt, waits):
            x = XB[j&1]; WB = WBB[j&1]
            for q in range(NQ):
                if waits: k.e(f"s_waitcnt lgkmcnt({2*(NQ-1) + (1 if q>=1 else 0)})")
                k.e(f"v_mfma_f32_32x32x16_bf16 v[{64+16*q}:{79+16*q}], v[{WB+4*q}:{WB+4*q+3}], v[{x}:{x+3}], v[{64+16*q}:{79+16*q}]")
                if nxt is not None:
                    if q == 0: rdX(nxt)
                    rdW(nxt, q)
        LOOP = k.lab("loop3")
        k.e(".p2align 6")
        k.e(f"""
        {LOOP}:
        s_waitcnt lgkmcnt(0)
        """)
        if FINE == 3: stamp(k)
        k.e("s_barrier")
        if FINE == 3: stamp(k)
        k.e(f"""
        s_add_u32 s39, s39, 1
        s_cmp_ge_u32 s39, 3
        s_cselect_b32 s48, s49, s56
        s_cselect_b32 s47, s46, s45
        s_cselect_b32 s39, 0, s39
        s_add_u32 s38, s38, 1
        """)
        step(3, 0, False)
        step(0, 1, True); step(1, 2, True); step(2, 3, True)
        for r in range(16, 20): k.e(f"v_add_u32 v{r}, s48, v{r}")
        for q in range(NQ): k.e(f"v_add_u32 v{20+q}, s47, v{20+q}")
        k.e(f"""
        s_cmp_lt_u32 s38, {nst}
        s_cbranch_scc1 {LOOP}
        s_waitcnt lgkmcnt(0)
        """)
        step(3, None, False)
    L3 = k.lab("p3b"); LE = k.lab("p3e")
    k.e("s_cmp_eq_u32 s28, 0"); k.e(f"s_cbranch_scc0 {L3}")
    body(4, 0)
    k.e(f"s_branch {LE}")
    k.e(f"{L3}:")
    body(3, 1)
    k.e(f"{LE}:")
    k.e("s_barrier")
def p3_epi(k):
    k.e(f"""
    v_lshlrev_b32 v33, 3, v3
    v_add_u32 v33, {P3_ST}, v33
    ds_read_b64 v[30:31], v33
    """)
    for q in range(4):
        k.e(f"s_lshl_b32 s24, s{50+q}, 5"); k.e(f"s_add_u32 s24, s24, {40960 - P3_W}"); k.e(f"v_add_u32 v{20+q}, s24, v9")
    for q in range(4):
        k.e(f"ds_read_b64_tr_b16 v[{136+4*q}:{137+4*q}], v{20+q}")
        k.e(f"ds_read_b64_tr_b16 v[{138+4*q}:{139+4*q}], v{20+q} offset:896")
    k.e(f"""
    s_waitcnt lgkmcnt(8)
    v_xor_b32 v30, 0x80000000, v30
    v_lshrrev_b32 v129, 16, v30
    v_or_b32 v128, v129, v30
    v_cmp_eq_u32 vcc, 0, v4
    v_cndmask_b32 v128, 0, v128, vcc
    v_cndmask_b32 v129, 0, v129, vcc
    v_mov_b32 v130, 0
    v_mov_b32 v131, 0
    v_mul_f32 v32, v31, v31
    v_mul_f32 v34, {f2u(-2.302208198)}, v31
    v_mul_f32 v35, v32, v31
    v_mul_f32 v35, {f2u(-0.1029432397)}, v35
    v_rcp_f32 v36, v32
    s_waitcnt lgkmcnt(0)
    """)
    for q in range(4):
        k.e(f"v_mfma_f32_32x32x16_bf16 v[{64+16*q}:{79+16*q}], v[{136+4*q}:{139+4*q}], v[128:131], v[{64+16*q}:{79+16*q}]")
    for q in range(4):
        LS = k.lab("skq")
        if q == 3:
            k.e("s_cmp_eq_u32 s28, 1"); k.e(f"s_cbranch_scc1 {LS}")
        A = 64+16*q
        for i in range(8): k.e(f"v_mul_f32 v{144+i}, v{A+i}, v{A+i}")
        for i in range(8): k.e(f"v_fma_f32 v{144+i}, v{144+i}, v35, v34")
        for i in range(8): k.e(f"v_mul_f32 v{144+i}, v{A+i}, v{144+i}")
        for i in range(8): k.e(f"v_exp_f32 v{144+i}, v{144+i}")
        for i in range(8): k.e(f"v_mul_f32 v{A+i}, v{A+i}, v{A+8+i}")
        for i in range(8): k.e(f"v_fma_f32 v{144+i}, v{144+i}, v36, v36")
        for i in range(8): k.e(f"v_rcp_f32 v{144+i}, v{144+i}")
        k.e(f"s_lshl_b32 s57, s{50+q}, 5")
        k.e(f"v_add_u32 v32, s57, v24")
        for i in range(8): k.e(f"v_mul_f32 v{A+i}, v{A+i}, v{144+i}")
        for i in range(0,8,2): k.e(f"v_cvt_pk_bf16_f32 v{160+i//2}, v{A+i}, v{A+i+1}")
        k.e("v_permlane32_swap_b32 v160, v162")
        k.e("v_permlane32_swap_b32 v161, v163")
        k.e(f"ds_write_b128 v32, v[160:163]")
        if q == 3: k.e(f"{LS}:")
    k.e("s_waitcnt lgkmcnt(0)")
    k.e("s_barrier")
    k.e(f"""
    s_lshl_b32 s24, s{S_RB128}, 4
    s_add_u32 s24, s24, s{S_FB}
    s_mul_i32 s24, s24, 28672
    v_lshlrev_b32 v33, 4, v0
    v_add_u32 v33, s24, v33
    v_mov_b32 v5, v0
    """)
    for i in range(4):
        if i: k.e("v_add_u32 v5, 512, v5")
        k.e(f"""
        v_mul_u32_u24 v6, 4682, v5
        v_lshrrev_b32 v6, 16, v6
        v_mul_u32_u24 v7, 14, v6
        v_sub_u32 v7, v5, v7
        v_mul_u32_u24 v6, {RSO}, v6
        v_lshl_add_u32 v6, v7, 4, v6
        ds_read_b128 v[{128+4*i}:{131+4*i}], v6 offset:{P3_OUT}
        """)
    for i in range(3):
        k.e(f"s_waitcnt lgkmcnt({3-i})")
        k.e(f"s_movk_i32 s57, {8192*i}")
        k.e(f"buffer_store_dwordx4 v[{128+4*i}:{131+4*i}], v33, s[16:19], s57 offen{SC1}")
    LS4 = k.lab("sk4")
    k.e(f"""
    s_cmp_ge_u32 s{S_W}, 4
    s_cbranch_scc1 {LS4}
    s_waitcnt lgkmcnt(0)
    s_movk_i32 s57, 24576
    buffer_store_dwordx4 v[140:143], v33, s[16:19], s57 offen{SC1}
    {LS4}:
    """)
    k.e("s_waitcnt lgkmcnt(0)")

def build():
    k = Kern(NAME + "_kernel")
    END = "L_end"
    k.e(f"""
    s_cmp_ge_u32 s2, 256
    s_cbranch_scc1 {END}
    s_load_dwordx8 s[84:91], s[0:1], 0
    s_load_dwordx8 s[92:99], s[0:1], 32
    s_load_dwordx4 s[80:83], s[0:1], 64
    s_memrealtime s[100:101]
    v_and_b32 v1, 63, v0
    v_lshrrev_b32 v2, 6, v0
    s_nop 0
    v_readfirstlane_b32 s{S_W}, v2
    s_and_b32 s3, s2, 7
    s_lshr_b32 s23, s2, 3
    s_and_b32 s21, s3, 3
    s_lshr_b32 s22, s3, 2
    s_lshl_b32 s{S_RB128}, s21, 2
    s_lshr_b32 s24, s23, 3
    s_add_u32 s{S_RB128}, s{S_RB128}, s24
    s_and_b32 s24, s23, 7
    s_lshl_b32 s{S_RB64}, s{S_RB128}, 1
    s_and_b32 s25, s24, 1
    s_add_u32 s{S_RB64}, s{S_RB64}, s25
    s_lshl_b32 s{S_CB}, s22, 2
    s_lshr_b32 s25, s24, 1
    s_add_u32 s{S_CB}, s{S_CB}, s25
    s_lshl_b32 s{S_FB}, s22, 3
    s_add_u32 s{S_FB}, s{S_FB}, s24
    s_sub_u32 s{S_J}, s{S_W}, 8
    s_mov_b32 s78, 0
    s_waitcnt lgkmcnt(0)
    """)
    srd(k, 64, S_WS, 1<<20, add=WS_F)
    srd(k, 68, S_DBG, 256)
    LN = k.lab("nonce")
    k.e(f"""
    s_or_b32 s24, s2, s{S_W}
    s_cmp_lg_u32 s24, 0
    s_cbranch_scc1 {LN}
    s_or_b32 s100, s100, 1
    v_mov_b32 v2, 0
    v_mov_b32 v3, s100
    buffer_store_dword v3, v2, s[68:71], 0 offen sc1
    {LN}:
    """)
    stamp(k, True)
    LC = k.lab("compute"); LD = k.lab("done")
    k.e(f"s_cmp_lt_u32 s{S_W}, 8"); k.e(f"s_cbranch_scc1 {LC}")
    loader(k)
    k.e(f"s_branch {LD}")
    k.e(f"{LC}:")
    p1(k); stamp(k)
    attention(k); stamp(k)
    sync(k, 32256, [f"s_lshl_b32 s59, s{S_RB64}, 7\ns_lshl_b32 s58, s{S_CB}, 2\ns_add_u32 s59, s59, s58"],
            [(f"s_lshl_b32 s58, s{S_RB64}, 7", 8)])
    p2_main(k); stamp(k)
    g_epi(k, lambda: srd(k, 16, S_WS, 2<<20, add=WS_H), SC1, True)
    sync(k, 40960, [f"s_lshr_b32 s59, s{S_RB64}, 1\ns_lshl_b32 s59, s59, 7\ns_add_u32 s59, s59, 8192\ns_and_b32 s58, s{S_RB64}, 1\ns_lshl_b32 s58, s58, 3\ns_add_u32 s58, s58, s{S_CB}\ns_lshl_b32 s58, s58, 2\ns_add_u32 s59, s59, s58"],
            [(f"s_lshl_b32 s58, s{S_RB128}, 7\ns_add_u32 s58, s58, 8192", 16), (f"s_lshl_b32 s58, s{S_FB}, 7\ns_add_u32 s58, s58, 24576", 16)])
    stamp(k)
    p3_main(k); stamp(k)
    p3_epi(k); stamp(k)
    sync(k, 7168, [f"s_lshl_b32 s59, s{S_RB128}, 7\ns_add_u32 s59, s59, 16384\ns_lshl_b32 s58, s{S_FB}, 2\ns_add_u32 s59, s59, s58"],
            [(f"s_lshr_b32 s58, s{S_RB64}, 1\ns_lshl_b32 s58, s58, 7\ns_add_u32 s58, s58, 16384", 16)])
    p4_main(k); stamp(k)
    g_epi(k, lambda: srd(k, 16, S_OUT, 2<<20), "", False, 22528)
    k.e(f"{LD}:")
    if STAMP:
        k.e("s_waitcnt vmcnt(0)")
        stamp(k, True)
        srd(k, 4, S_WS, 1<<20, add=32<<20)
        k.e(f"""
        s_lshl_b32 s24, s2, 4
        s_add_u32 s24, s24, s{S_W}
        s_lshl_b32 s24, s24, 8
        v_lshlrev_b32 v2, 2, v1
        v_add_u32 v2, s24, v2
        buffer_store_dword v63, v2, s[4:7], 0 offen
        """)
    k.e(f"{END}:")
    k.e("s_endpgm")
    return k

if __name__ == "__main__":
    k = build()
    if FINE == 9:
        out_l = []
        for ln in k.lines:
            out_l.append(ln)
            if ln == "s_barrier":
                out_l += ["s_memrealtime s[100:101]" if os.environ.get("RT") else "s_memtime s[100:101]", "s_waitcnt lgkmcnt(0)", "v_cmp_eq_u32 vcc, s78, v1", "v_mov_b32 v62, s100", "v_cndmask_b32 v63, v63, v62, vcc", "s_add_u32 s78, s78, 1"]
        k.lines = out_l
    hdr = open("cdna_kernels/"+NAME+".s.ref").read().split("; Override launch")[0]
    out = hdr + "; @launch grid=(256,1,1) block=(768,1,1) lds=163840\n"
    out += '.amdgcn_target "amdgcn-amd-amdhsa--gfx950"\n'
    out += kernel_text(k, 168)
    open(sys.argv[1], "w").write(out)
```

```python
import sys, os, struct
from asmlib import *
NAME = "sequential_preLN__sliding_local_dilated__glu_gated_geglu__prompt"
WS_O, WS_H, WS_HH, WS_F = 0, 2<<20, 4<<20, 16<<20
def f2u(f): return struct.unpack("<I", struct.pack("<f", f))[0]
S_X, S_WQKV, S_WO, S_WG, S_WU, S_WD, S_OUT, S_DBG, S_WS = 84, 86, 88, 92, 94, 96, 98, 80, 82
S_W, S_RB64, S_CB, S_RB128, S_FB, S_NONCE, S_J = 20, 76, 77, 74, 75, 79, 21
STAMP = bool(os.environ.get("STAMP"))
FINE = int(os.environ.get("FINE","0"))
SC1 = " sc1"
PSLEEP = int(os.environ.get("PSLEEP","2"))
VRES = 58

def srd(k, sd, ptr, size, add=0):
    if add:
        k.e(f"s_add_u32 s{sd}, s{ptr}, {add}")
        k.e(f"s_addc_u32 s{sd+1}, s{ptr+1}, 0")
    else:
        k.e(f"s_mov_b32 s{sd}, s{ptr}")
        k.e(f"s_mov_b32 s{sd+1}, s{ptr+1}")
    k.e(f"s_mov_b32 s{sd+2}, {size}")
    k.e(f"s_mov_b32 s{sd+3}, 0x00020000")
def round_bf16(k, v, tmp):
    k.e(f"v_cvt_pk_bf16_f32 v{tmp}, v{v}, v{v}")
    k.e(f"v_lshlrev_b32 v{v}, 16, v{tmp}")
def ln_stats(k, vs, vq, vm, vr, tmp):
    k.e(f"""
    v_mul_f32 v{vm}, {f2u(1/512)}, v{vs}
    v_mul_f32 v{vr}, {f2u(1/512)}, v{vq}
    v_fma_f32 v{vr}, -v{vm}, v{vm}, v{vr}
    v_max_f32 v{vr}, 0, v{vr}
    """)
    round_bf16(k, vm, tmp); round_bf16(k, vr, tmp)
    k.e(f"v_add_f32 v{vr}, {f2u(1e-5)}, v{vr}")
    round_bf16(k, vr, tmp)
    k.e(f"v_sqrt_f32 v{vr}, v{vr}")
    round_bf16(k, vr, tmp)
    k.e(f"v_rcp_f32 v{vr}, v{vr}")
def red32(k, v, tmp):
    k.e(f"v_mov_b32 v{tmp}, v{v}"); k.e(f"v_permlane32_swap_b32 v{v}, v{tmp}"); k.e(f"v_add_f32 v{v}, v{v}, v{tmp}")
def red16(k, v, tmp):
    k.e(f"v_mov_b32 v{tmp}, v{v}"); k.e(f"v_permlane16_swap_b32 v{v}, v{tmp}"); k.e(f"v_add_f32 v{v}, v{v}, v{tmp}")
def stamp(k, force=False):
    if not STAMP: return
    if FINE == 9 and not force: return
    k.e("s_memrealtime s[100:101]" if os.environ.get("RT") else "s_memtime s[100:101]")
    k.e("s_waitcnt lgkmcnt(0)")
    k.e("v_cmp_eq_u32 vcc, s78, v1")
    k.e("v_mov_b32 v62, s100")
    k.e("v_cndmask_b32 v63, v63, v62, vcc")
    k.e("s_add_u32 s78, s78, 1")

P1_NS, P1_SLOT, P1_WOFF = 4, 34816, 10240
P1_SC = P1_NS*P1_SLOT
P1_SC2 = P1_SC + 2560
RS = 400
P2_X, P2_W = 98304, 32768
P4_X, P4_W, P4_NS, P4_SL = 8192, 81920, 5, 14336
P3_OUT, RSO = 8192, 240
GS_RS = 272
P3_X, P3_XS, P3_W, P3_WS, P3_UOFF = 8192, 16384, 57344, 28800, 14464
P3_CS, P3_ST, P3_CS2 = 0, 4096, 6144

def dma(k, v, srdn, soff, m0expr, sc=""):
    k.e(m0expr)
    k.e(f"buffer_load_dwordx4 v{v}, s[{srdn}:{srdn+3}], {soff} offen{sc} lds")


WS_XS, WS_HS = 18<<20, 19<<20
WS_CS = 17<<20
def merge(k, groups, fill):
    if not fill:
        for g in groups: g()
        return
    fill = [x.strip() for x in fill if x.strip()]
    f2 = []; i = 0
    while i < len(fill):
        if fill[i].startswith("s_cmp"):
            j = i
            for t in range(i+1, min(i+8, len(fill))):
                if fill[t].startswith("s_cselect"): j = t
            f2.append("\n".join(fill[i:j+1])); i = j+1
        else:
            f2.append(fill[i]); i += 1
    fill = f2
    n = len(groups); m = len(fill); fi = 0
    for i, g in enumerate(groups):
        g()
        upto = (m*(i+1))//n
        while fi < upto:
            k.e(fill[fi]); fi += 1
def lstats_reads(k, base_sreg, ne):
    k.e(f"v_add_u32 v50, s{base_sreg}, v51")
    for e_ in range(ne): k.e(f"ds_read_b128 v[{64+4*e_}:{67+4*e_}], v50 offset:{1024*e_}")
def lstats_valu(ne, acc0):
    out = []
    for e_ in range(ne):
        out.append(f"s_waitcnt lgkmcnt({ne-1-e_})")
        a = acc0 + 4*e_
        for d in range(4):
            t0 = 52 + 2*(d&1)
            out += [f"v_lshlrev_b32 v{t0}, 16, v{64+4*e_+d}", f"v_and_b32 v{t0+1}, 0xffff0000, v{64+4*e_+d}",
                    f"v_pk_add_f32 v[{a}:{a+1}], v[{a}:{a+1}], v[{t0}:{t0+1}]",
                    f"v_pk_fma_f32 v[{a+2}:{a+3}], v[{t0}:{t0+1}], v[{t0}:{t0+1}], v[{a+2}:{a+3}]"]
    return out
def lstats_fin(k, ne, acc0, row0_sreg, stbase):
    k.e(f"""
    v_lshrrev_b32 v50, 3, v1
    v_add_u32 v50, s{row0_sreg}, v50
    v_lshlrev_b32 v50, 3, v50
    v_add_u32 v50, {stbase}, v50
    """)
    for e_ in range(ne):
        a = acc0 + 4*e_
        k.e(f"v_add_f32 v{a}, v{a}, v{a+1}")
        k.e(f"v_add_f32 v{a+2}, v{a+2}, v{a+3}")
    for perm in ("quad_perm:[1,0,3,2]", "quad_perm:[2,3,0,1]", "row_half_mirror"):
        for e_ in range(ne):
            a = acc0 + 4*e_
            for r in (a, a+2): k.e(f"v_add_f32_dpp v{r}, v{r}, v{r} {perm} row_mask:0xf bank_mask:0xf")
    for e_ in range(ne):
        a = acc0 + 4*e_
        k.e(f"v_mov_b32 v{a+1}, v{a+2}")
        k.e(f"ds_write_b64 v50, v[{a}:{a+1}] offset:{64*e_}")

def loader(k):
    J = S_J
    k.e("s_setprio 3")
    k.e(f"""
    s_lshl_b32 s25, s{S_RB64}, 6
    s_sub_u32 s25, s25, 16
    s_lshl_b32 s26, s{S_CB}, 7
    v_lshrrev_b32 v3, 3, v1
    v_and_b32 v4, 7, v1
    s_mul_i32 s24, s{J}, 20
    v_add_u32 v5, s24, v3
    s_lshl_b32 s30, s24, 7
    s_cmp_eq_u32 s{J}, 0
    s_cselect_b32 s31, 0xffffff00, -1
    """)
    for e_ in range(3):
        if e_: k.e("v_add_u32 v5, 8, v5")
        k.e(f"""
        v_bfe_u32 v6, v5, 1, 3
        v_xor_b32 v6, v6, v4
        v_add_u32 v7, s25, v5
        v_max_i32 v7, 0, v7
        v_lshlrev_b32 v7, 10, v7
        v_lshl_add_u32 v{10+e_}, v6, 4, v7
        """)
    srd(k, 4, S_X, 2<<20); srd(k, 8, S_WQKV, 512*3072)
    def x1(base, soff):
        return [lambda: (k.e(f"s_mov_b32 m0, {base}"), k.e("s_mov_b32 exec_lo, s31"), k.e(f"buffer_load_dwordx4 v10, s[4:7], {soff} offen lds"), k.e("s_mov_b32 exec_lo, -1")),
                lambda: dma(k, 11, 4, soff, f"s_add_u32 m0, {base}, 1024"),
                lambda: (k.e(f"s_add_u32 m0, {base}, 2048"), k.e("s_mov_b32 exec_hi, 0"), k.e(f"buffer_load_dwordx4 v12, s[4:7], {soff} offen lds"), k.e("s_mov_b32 exec_hi, -1"))]
    def w1(base, soff):
        return [(lambda e_=e_: dma(k, 13+e_, 8, soff, f"s_add_u32 m0, {base}, {1024*e_}")) for e_ in range(6)]
    wmath = [f"s_mul_i32 s24, s{J}, 384", "v_add_u32 v5, s24, v1", f"s_mul_i32 s32, s{J}, 6144", f"s_add_u32 s32, s32, {P1_WOFF}"]
    for e_ in range(3):
        if e_: wmath.append("v_add_u32 v5, 64, v5")
        wmath += f"""v_mul_u32_u24 v6, 2731, v5
        v_lshrrev_b32 v6, 16, v6
        v_mul_u32_u24 v7, 24, v6
        v_sub_u32 v7, v5, v7
        v_lshrrev_b32 v8, 1, v7
        v_and_b32 v7, 1, v7
        v_bfe_u32 v9, v6, 1, 1
        v_lshrrev_b32 v2, 2, v6
        v_and_b32 v2, 2, v2
        v_or_b32 v9, v9, v2
        v_xor_b32 v9, v8, v9
        v_and_b32 v9, 3, v9
        v_lshrrev_b32 v8, 2, v8
        v_mul_u32_u24 v6, 3072, v6
        v_lshl_add_u32 v6, v8, 10, v6
        v_lshl_add_u32 v6, v9, 5, v6
        v_lshl_add_u32 v6, v7, 4, v6
        v_add_u32 v{13+e_}, s26, v6
        v_xor_b32 v6, 64, v{13+e_}
        v_add_u32 v{16+e_}, 24576, v6""".split("\n")
    g = []
    for st in range(3):
        g.append(lambda st=st: (k.e(f"s_add_u32 s46, s30, {st*P1_SLOT}"), k.e(f"s_movk_i32 s36, {128*st}")))
        g += x1("s46", "s36")
    merge(k, g, wmath)
    misc = f"""v_lshrrev_b32 v3, 3, v1
    v_and_b32 v4, 7, v1
    s_lshl_b32 s24, s{J}, 5
    v_add_u32 v5, s24, v3
    v_bfe_u32 v6, v1, 4, 1
    v_lshlrev_b32 v6, 2, v6
    v_xor_b32 v6, v6, v4
    v_lshlrev_b32 v7, 10, v5
    v_lshl_add_u32 v7, v6, 4, v7
    v_add_u32 v20, s26, v7
    v_add_u32 v21, 0x2000, v20
    v_add_u32 v22, 0x4000, v20
    v_add_u32 v23, 0x6000, v20
    s_lshl_b32 s40, s{J}, 12
    v_lshlrev_b32 v51, 4, v1
    s_mov_b32 s12, s{S_WO}
    s_mov_b32 s13, s{S_WO+1}
    s_mov_b32 s14, {512*1024}
    s_mov_b32 s15, 0x00020000""".split("\n")
    misc += [f"v_mov_b32 v{i}, 0" for i in range(80, 92)]
    g = []
    for st in range(3):
        g.append(lambda st=st: (k.e(f"s_add_u32 s47, s32, {st*P1_SLOT}"), k.e(f"s_mov_b32 s37, {64*3072*st}")))
        g += w1("s47", "s37")
    merge(k, g, misc)
    def gW(srdn, soff, base):
        return [(lambda e_=e_: dma(k, 20+e_, srdn, soff, f"s_add_u32 m0, {base}, {1024*e_}")) for e_ in range(4)]
    def gX(soff, base):
        return [(lambda e_=e_: dma(k, 24+e_, 4, soff, f"s_add_u32 m0, {base}, {1024*e_}", SC1)) for e_ in range(4)]
    def run(lst):
        for f in lst: f()
    k.e(f"""
    s_movk_i32 s36, 384
    s_mov_b32 s37, {64*3072*3}
    s_mov_b32 s33, {3*P1_SLOT}
    s_mov_b32 s38, 0
    s_mov_b32 s45, s30
    s_waitcnt vmcnt(12)
    """)
    adv1 = f"""
    s_add_u32 s45, s45, {P1_SLOT}
    s_sub_u32 s46, s45, {P1_NS*P1_SLOT}
    s_cmp_ge_u32 s45, {P1_NS*P1_SLOT}
    s_cselect_b32 s45, s46, s45
    """
    L = k.lab("l1"); L15 = k.lab("l15")
    k.e(".p2align 6")
    k.e(f"""
    {L}:
    s_waitcnt vmcnt(15)
    s_barrier
    """)
    k.e("s_add_u32 s46, s33, s30"); k.e("s_add_u32 s47, s33, s32")
    run(x1("s46","s36") + w1("s47","s37"))
    k.e(f"""
    s_add_u32 s36, s36, 128
    s_add_u32 s37, s37, {64*3072}
    s_add_u32 s33, s33, {P1_SLOT}
    s_cmp_ge_u32 s33, {P1_NS*P1_SLOT}
    s_cselect_b32 s33, 0, s33
    """)
    k.e(f"""
    s_add_u32 s38, s38, 1
    s_cmp_lt_u32 s38, 5
    s_cbranch_scc1 {L}
    """)
    k.e("s_waitcnt vmcnt(18)"); k.e("s_barrier")
    LQ_ = k.lab("lgetn"); LXS = k.lab("lxs")
    srd(k, 8, S_WS, 32768, add=WS_XS)
    k.e(f"""
    v_mov_b32 v2, 0
    s_mov_b32 s59, 0
    s_mul_i32 s24, s{J}, 20
    v_min_u32 v6, 19, v1
    v_add_u32 v6, s24, v6
    v_add_u32 v7, s25, v6
    v_max_i32 v7, 0, v7
    v_lshlrev_b32 v7, 4, v7
    v_lshlrev_b32 v6, 3, v6
    v_add_u32 v6, {P1_SC}, v6
    v_mov_b32 v44, v6
    v_mov_b32 v45, v7
    v_mov_b32 v2, {P1_SC+712}
    ds_read_b32 v3, v2
    buffer_load_dwordx4 v[64:67], v45, s[8:11], 0 offen sc1
    s_waitcnt lgkmcnt(0)
    v_readfirstlane_b32 s{S_NONCE}, v3
    """)
    k.e(f"""
    s_cmp_ge_u32 s{J}, 2
    s_cselect_b32 s16, s{S_WU}, s{S_WG}
    s_cselect_b32 s17, s{S_WU+1}, s{S_WG+1}
    s_mov_b32 s18, {512*3584}
    s_mov_b32 s19, 0x00020000
    s_lshr_b32 s24, s2, 3
    s_mul_i32 s24, s24, 6
    s_and_b32 s29, s{J}, 1
    s_mul_i32 s29, s29, 3
    s_add_u32 s24, s24, s29
    s_mul_i32 s24, s24, 3584
    s_bfe_u32 s29, s2, 0x10002
    s_mul_i32 s29, s29, 1792
    s_add_u32 s28, s24, s29
    v_add_u32 v8, 1024, v51
    v_mov_b32 v9, 0x80000000
    v_cmp_gt_u32 vcc, 48, v1
    v_cndmask_b32 v46, v9, v8, vcc
    """)
    for st2 in range(2):
        k.e(f"s_waitcnt vmcnt({10-st2})")
        k.e("s_barrier")
        k.e(f"s_mov_b32 s41, {st2*0x40000}"); k.e(f"s_add_u32 s46, s40, {P2_W+st2*32768}")
        k.e(f"s_mov_b32 s42, {st2*0x40000+0x20000}"); k.e(f"s_add_u32 s47, s40, {P2_W+st2*32768+16384}")
        run(gW(12,"s41","s46") + gW(12,"s42","s47"))
    k.e(f"""
    s_waitcnt vmcnt(16)
    {LQ_}:
    s_add_u32 s59, s59, 1
    s_cmp_ge_u32 s59, 400000
    s_cbranch_scc1 {LXS}
    v_cmp_ne_u32 vcc, s{S_NONCE}, v66
    s_cmp_eq_u64 vcc, 0
    s_cbranch_scc1 {LXS}
    buffer_load_dwordx4 v[64:67], v45, s[8:11], 0 offen sc1
    s_waitcnt vmcnt(0)
    s_branch {LQ_}
    {LXS}:
    """)
    ln_stats(k, 64, 65, 52, 53, 54)
    k.e("v_mul_f32 v52, v52, v53"); k.e("v_sub_f32 v52, 0, v52")
    k.e("ds_write_b64 v44, v[52:53]")
    k.e("s_waitcnt lgkmcnt(0)")
    k.e("s_barrier")
    k.e("s_barrier")
    k.e("s_setprio 0")
    if FINE == 8: stamp(k)
    for r in range(3):
        k.e(f"buffer_load_dwordx4 v[{128+8*r}:{131+8*r}], v51, s[16:19], s28 offen")
        k.e(f"buffer_load_dwordx4 v[{132+8*r}:{135+8*r}], v46, s[16:19], s28 offen")
        k.e("s_add_u32 s28, s28, 3584")
    def gx_setup(xstride):
        k.e(f"""
        v_lshrrev_b32 v3, 4, v1
        v_and_b32 v4, 15, v1
        s_lshl_b32 s24, s{J}, 4
        v_add_u32 v5, s24, v3
        s_lshl_b32 s25, s{S_RB64}, 6
        s_movk_i32 s42, {xstride}
        """)
        for e_ in range(4):
            if e_: k.e("v_add_u32 v5, 4, v5")
            k.e(f"""
            v_and_b32 v6, 15, v5
            v_xor_b32 v6, v6, v4
            v_add_u32 v7, s25, v5
            v_mul_lo_u32 v7, v7, s42
            v_lshl_add_u32 v{24+e_}, v6, 4, v7
            """)
    gx_setup(1024)
    srd(k, 4, S_WS, 2<<20, add=WS_O)
    k.e(f"""
    s_and_b32 s53, s2, 1
    s_lshr_b32 s52, s2, 1
    s_and_b32 s52, s52, 15
    s_lshr_b32 s54, s2, 5
    s_cmp_eq_u32 s53, 1
    s_cselect_b32 s16, s{S_WU}, s{S_WG}
    s_cselect_b32 s17, s{S_WU+1}, s{S_WG+1}
    v_mul_u32_u24 v6, 4682, v1
    v_lshrrev_b32 v6, 16, v6
    v_mul_u32_u24 v7, 14, v6
    v_sub_u32 v7, v1, v7
    v_mul_u32_u24 v8, 3584, v6
    v_lshl_add_u32 v8, v7, 4, v8
    s_mul_i32 s24, s52, 224
    s_lshl_b32 s29, s54, 2
    s_add_u32 s29, s29, s{J}
    s_mul_i32 s29, s29, {16*3584}
    s_add_u32 s24, s24, s29
    v_add_u32 v8, s24, v8
    v_mov_b32 v9, 0x80000000
    v_cmp_gt_u32 vcc, 56, v1
    v_cndmask_b32 v48, v9, v8, vcc
    s_mov_b32 s29, 0
    """)
    for e_ in range(4):
        k.e(f"buffer_load_dwordx4 v[{96+4*e_}:{99+4*e_}], v48, s[16:19], s29 offen"); k.e(f"s_add_u32 s29, s29, {4*3584}")
    for i in range(8): k.e(f"v_mov_b32 v{112+i}, 0")
    for e_ in range(4):
        k.e(f"s_waitcnt vmcnt({3-e_})")
        for d in range(4):
            t0 = 52 + 2*(d&1)
            k.e(f"v_lshlrev_b32 v{t0}, 16, v{96+4*e_+d}")
            k.e(f"v_and_b32 v{t0+1}, 0xffff0000, v{96+4*e_+d}")
            k.e(f"v_add_f32 v{112+2*d}, v{112+2*d}, v{t0}")
            k.e(f"v_add_f32 v{113+2*d}, v{113+2*d}, v{t0+1}")
    k.e(f"""
    v_add_u32 v50, 14, v1
    v_lshlrev_b32 v50, 2, v50
    v_add_u32 v49, 28, v1
    v_lshlrev_b32 v49, 2, v49
    """)
    for i in range(8): k.e(f"ds_bpermute_b32 v{64+i}, v50, v{112+i}")
    k.e("s_waitcnt lgkmcnt(0)")
    for i in range(8): k.e(f"v_add_f32 v{112+i}, v{112+i}, v{64+i}")
    for i in range(8): k.e(f"ds_bpermute_b32 v{64+i}, v49, v{112+i}")
    k.e("s_waitcnt lgkmcnt(0)")
    for i in range(8): k.e(f"v_add_f32 v{112+i}, v{112+i}, v{64+i}")
    srd(k, 16, S_WS, 1<<20, add=WS_CS)
    if FINE == 8: stamp(k)
    k.e("s_barrier")
    k.e("s_setprio 3")
    if FINE == 8: stamp(k)
    m3 = [f"s_mul_i32 s26, s{S_FB}, 224", "v_mov_b32 v5, v1"]
    for e_ in range(7):
        if e_: m3.append("v_add_u32 v5, 64, v5")
        m3 += f"""v_mul_u32_u24 v6, 4682, v5
        v_lshrrev_b32 v6, 16, v6
        v_mul_u32_u24 v7, 14, v6
        v_sub_u32 v7, v5, v7
        v_mul_u32_u24 v6, 3584, v6
        v_lshl_add_u32 v6, v7, 4, v6
        v_add_u32 v{30+e_}, s26, v6""".split("\n")
    m3 += f"""s_cmp_ge_u32 s{J}, 2
    s_cselect_b32 s8, s{S_WU}, s{S_WG}
    s_cselect_b32 s9, s{S_WU+1}, s{S_WG+1}
    s_mov_b32 s10, {512*3584}
    s_mov_b32 s11, 0x00020000
    s_cselect_b32 s44, {P3_UOFF}, 0
    s_and_b32 s24, s{J}, 1
    s_mul_i32 s45, s24, 7168
    s_add_u32 s44, s44, s45
    s_add_u32 s44, s44, {P3_W}
    s_mul_i32 s41, s24, {32*3584}
    v_lshrrev_b32 v3, 3, v1
    v_and_b32 v4, 7, v1
    s_lshl_b32 s24, s{J}, 5
    v_add_u32 v5, s24, v3
    s_lshl_b32 s25, s{S_RB128}, 7""".split("\n")
    for e_ in range(4):
        if e_: m3.append("v_add_u32 v5, 8, v5")
        m3 += f"""v_bfe_u32 v6, v5, 1, 3
        v_xor_b32 v6, v6, v4
        v_add_u32 v7, s25, v5
        v_lshlrev_b32 v7, 10, v7
        v_lshl_add_u32 v{40+e_}, v6, 4, v7""".split("\n")
    m3 += [f"v_mov_b32 v{i}, 0" for i in range(80, 96)]
    g = []
    for st in range(4):
        g.append(lambda st=st: (k.e(f"s_movk_i32 s43, {st*256}"), k.e(f"s_add_u32 s46, s40, {P2_X+st*16384}")))
        g += gX("s43", "s46")
    merge(k, g, m3)
    k.e(f"""
    v_min_u32 v50, 15, v1
    v_lshlrev_b32 v50, 5, v50
    s_lshl_b32 s24, s{J}, 9
    s_add_u32 s24, s24, 1024
    v_add_u32 v50, s24, v50
    v_cmp_gt_u32 vcc, 14, v1
    s_and_saveexec_b64 s[60:61], vcc
    ds_write_b128 v50, v[112:115]
    ds_write_b128 v50, v[116:119] offset:16
    s_mov_b64 exec, s[60:61]
    s_waitcnt vmcnt(12) lgkmcnt(0)
    s_barrier
    """)
    LJ0 = k.lab("csj0")
    k.e(f"""
    s_cmp_lg_u32 s{J}, 0
    s_cbranch_scc1 {LJ0}
    v_min_u32 v50, 31, v1
    v_lshlrev_b32 v50, 4, v50
    ds_read_b128 v[96:99], v50 offset:1024
    ds_read_b128 v[100:103], v50 offset:1536
    ds_read_b128 v[104:107], v50 offset:2048
    ds_read_b128 v[108:111], v50 offset:2560
    s_lshl_b32 s48, s52, 4
    s_lshl_b32 s49, s53, 3
    s_add_u32 s49, s49, s54
    s_add_u32 s48, s48, s49
    s_lshl_b32 s48, s48, 9
    v_add_u32 v8, s48, v51
    v_mov_b32 v9, 0x80000000
    v_cmp_gt_u32 vcc, 28, v1
    v_cndmask_b32 v8, v9, v8, vcc
    s_waitcnt lgkmcnt(0)
    """)
    for w in range(1,4):
        for i in range(4): k.e(f"v_add_f32 v{96+i}, v{96+i}, v{96+4*w+i}")
    k.e("buffer_store_dwordx4 v[96:99], v8, s[16:19], 0 offen sc1")
    k.e(f"{LJ0}:")
    for st in range(1,4):
        k.e(f"s_waitcnt vmcnt({12-4*st})"); k.e("s_barrier")
    LJ1 = k.lab("csj1")
    k.e(f"""
    s_cmp_lg_u32 s{J}, 0
    s_cbranch_scc1 {LJ1}
    s_lshl_b32 s47, s52, 7
    s_add_u32 s47, s47, 24576
    s_lshl_b32 s49, s49, 2
    s_add_u32 s47, s47, s49
    s_lshl_b32 s47, s47, 5
    v_mov_b32 v2, s47
    v_mov_b32 v3, s{S_NONCE}
    buffer_store_dword v3, v2, s[64:67], 0 offen sc1
    {LJ1}:
    """)
    def p3W(sbase):
        return [(lambda e_=e_: dma(k, 30+e_, 8, "s41", f"s_add_u32 m0, {sbase}, {1024*e_}")) for e_ in range(7)] + [lambda: k.e(f"s_add_u32 s41, s41, {64*3584}")]
    def p3X(sbase):
        return [(lambda e_=e_: dma(k, 40+e_, 4, "s43", f"s_add_u32 m0, {sbase}, {1024*e_}", SC1)) for e_ in range(4)] + [lambda: k.e("s_add_u32 s43, s43, 128")]
    k.e("s_barrier")
    if FINE == 8: stamp(k)
    LWC = k.lab("waitc2")
    k.e(f"""
    s_setprio 0
    v_mov_b32 v2, 40960
    {LWC}:
    ds_read_b32 v3, v2
    s_waitcnt lgkmcnt(0)
    v_readfirstlane_b32 s59, v3
    s_cmp_lt_u32 s59, {os.environ.get("C2W","8")}
    s_cbranch_scc1 {LWC}
    """)
    for st in range(2):
        k.e(f"s_add_u32 s46, s44, {st*P3_WS}"); run(p3W("s46"))
    srd(k, 4, S_WS, 2<<20, add=WS_H)
    if FINE == 8: stamp(k)
    k.e("s_barrier")
    k.e("s_setprio 3")
    k.e("s_mov_b32 s43, 0")
    k.e(f"s_add_u32 s45, s40, {P3_X}")
    for st in range(3):
        k.e(f"s_add_u32 s46, s45, {st*P3_XS}"); run(p3X("s46"))
    k.e(f"s_add_u32 s46, s44, {2*P3_WS}"); run(p3W("s46"))
    adv3 = f"""
    s_add_u32 s48, s48, {P3_XS}
    s_sub_u32 s46, s48, {3*P3_XS}
    s_add_u32 s47, s45, {3*P3_XS}
    s_cmp_ge_u32 s48, s47
    s_cselect_b32 s48, s46, s48
    """
    k.e("s_mov_b32 s48, s45")
    k.e(f"""
    s_mov_b32 s12, s{S_WD}
    s_mov_b32 s13, s{S_WD+1}
    s_mov_b32 s14, {1792*1024}
    s_mov_b32 s15, 0x00020000
    v_lshrrev_b32 v6, 5, v1
    v_and_b32 v7, 31, v1
    v_lshlrev_b32 v7, 4, v7
    v_lshl_add_u32 v47, v6, 10, v7
    s_lshr_b32 s24, s2, 3
    s_mul_i32 s24, s24, 56
    s_mul_i32 s29, s{J}, 14
    s_add_u32 s24, s24, s29
    s_lshl_b32 s24, s24, 10
    s_bfe_u32 s29, s2, 0x10002
    s_lshl_b32 s29, s29, 9
    s_add_u32 s50, s24, s29
    """)
    k.e("s_waitcnt vmcnt(15)"); k.e("s_barrier")
    for _ in range(2):
        k.e("buffer_load_dwordx4 v[160:163], v47, s[12:15], s50 offen"); k.e("s_add_u32 s50, s50, 2048")
    k.e("s_mov_b32 s38, 1"); k.e("s_mov_b32 s39, 0")
    L = k.lab("l3")
    k.e(".p2align 6")
    k.e(f"""
    {L}:
    s_waitcnt vmcnt(12)
    s_barrier
    """)
    k.e(f"""
    s_mul_i32 s46, s39, {P3_XS}
    s_add_u32 s46, s46, s45
    s_mul_i32 s47, s39, {P3_WS}
    s_add_u32 s47, s47, s44
    """)
    merge(k, p3X("s46") + p3W("s47") + [lambda: (k.e("buffer_load_dwordx4 v[160:163], v47, s[12:15], s50 offen"), k.e("s_add_u32 s50, s50, 2048"))], [])
    k.e(f"""
    s_add_u32 s39, s39, 1
    s_cmp_ge_u32 s39, 3
    s_cselect_b32 s39, 0, s39
    """)
    k.e(f"""
    s_add_u32 s38, s38, 1
    s_cmp_lt_u32 s38, 6
    s_cbranch_scc1 {L}
    s_waitcnt vmcnt(12)
    s_barrier
    """)
    srd(k, 12, S_WS, 131072, add=WS_HS)
    k.e(f"""
    s_lshl_b32 s24, s{S_RB128}, 7
    s_lshl_b32 s29, s{J}, 5
    s_add_u32 s24, s24, s29
    s_lshl_b32 s24, s24, 6
    v_add_u32 v6, s24, v51
    buffer_load_dwordx4 v[64:67], v6, s[12:15], 0 offen sc1
    buffer_load_dwordx4 v[68:71], v6, s[12:15], 0 offen offset:1024 sc1
    """)
    Lp4 = k.lab("pollf4"); D4 = k.lab("pollf4d")
    k.e(f"""
    s_lshl_b32 s58, s{S_FB}, 7
    s_add_u32 s58, s58, 24576
    s_lshl_b32 s58, s58, 5
    v_and_b32 v2, 15, v1
    v_lshlrev_b32 v2, 7, v2
    v_add_u32 v2, s58, v2
    s_mov_b32 s59, 0
    {Lp4}:
    buffer_load_dword v3, v2, s[64:67], 0 offen sc1
    s_waitcnt vmcnt(0)
    v_cmp_ne_u32 vcc, s{S_NONCE}, v3
    s_add_u32 s59, s59, 1
    s_cmp_eq_u64 vcc, 0
    s_cbranch_scc1 {D4}
    s_cmp_lt_u32 s59, 400000
    s_cbranch_scc1 {Lp4}
    {D4}:
    """)
    k.e(f"""
    s_lshl_b32 s46, s{S_FB}, 4
    s_and_b32 s49, s{J}, 1
    s_lshl_b32 s49, s49, 3
    s_add_u32 s46, s46, s49
    s_lshl_b32 s46, s46, 9
    v_lshlrev_b32 v8, 4, v1
    v_add_u32 v8, s46, v8
    v_mov_b32 v9, 0x80000000
    v_cmp_gt_u32 vcc, 28, v1
    v_cndmask_b32 v8, v9, v8, vcc
    """)
    for kp in range(8): k.e(f"buffer_load_dwordx4 v[{96+4*kp}:{99+4*kp}], v8, s[16:19], 0 offen offset:{512*kp} sc1")
    k.e("s_waitcnt vmcnt(11)"); k.e("s_barrier")
    k.e("s_waitcnt vmcnt(0)")
    for b0 in (64, 68):
        k.e(f"v_add_f32 v{b0}, v{b0}, v{b0+2}"); k.e(f"v_add_f32 v{b0+1}, v{b0+1}, v{b0+3}")
    for perm in ("quad_perm:[1,0,3,2]", "quad_perm:[2,3,0,1]"):
        for r in (64,65,68,69): k.e(f"v_add_f32_dpp v{r}, v{r}, v{r} {perm} row_mask:0xf bank_mask:0xf")
    k.e(f"""
    v_lshrrev_b32 v6, 2, v1
    s_lshl_b32 s24, s{J}, 5
    v_add_u32 v6, s24, v6
    v_lshlrev_b32 v6, 3, v6
    v_add_u32 v6, {P3_ST}, v6
    """)
    for (b0, off) in ((64,0),(68,128)):
        ln_stats(k, b0, b0+1, 52, 53, 54)
        k.e(f"ds_write_b64 v6, v[52:53] offset:{off}")
    for kp in range(1,8):
        for i in range(4): k.e(f"v_add_f32 v{96+i}, v{96+i}, v{96+4*kp+i}")
    k.e(f"""
    v_min_u32 v8, 27, v1
    v_lshlrev_b32 v8, 3, v8
    s_and_b32 s46, s{J}, 1
    s_mul_i32 s46, s46, {P3_UOFF}
    s_add_u32 s46, s46, 40960
    v_add_u32 v8, s46, v8
    v_cmp_gt_u32 vcc, 28, v1
    s_and_saveexec_b64 s[60:61], vcc
    """)
    for part in range(3):
        k.e("v_cvt_pk_bf16_f32 v100, v96, v97"); k.e("v_cvt_pk_bf16_f32 v101, v98, v99")
        k.e(f"ds_write_b64 v8, v[100:101] offset:{224*part}")
        if part < 2:
            k.e("""
            v_lshlrev_b32 v102, 16, v100
            v_and_b32 v103, 0xffff0000, v100
            v_lshlrev_b32 v104, 16, v101
            v_and_b32 v105, 0xffff0000, v101
            v_sub_f32 v96, v96, v102
            v_sub_f32 v97, v97, v103
            v_sub_f32 v98, v98, v104
            v_sub_f32 v99, v99, v105
            """)
    k.e("s_mov_b64 exec, s[60:61]")
    k.e(f"""
    s_and_b32 s24, s{J}, 1
    s_mul_i32 s24, s24, 448
    v_add_u32 v5, s24, v1
    s_and_b32 s25, s{S_RB64}, 1
    s_mul_i32 s25, s25, {64*224}
    s_lshr_b32 s29, s{S_RB64}, 1
    s_mul_i32 s29, s29, {16*28672}
    s_add_u32 s25, s25, s29
    s_lshl_b32 s26, s{S_CB}, 7
    """)
    LWS = k.lab("p4ws"); LWD = k.lab("p4wd")
    k.e(f"s_cmp_ge_u32 s{J}, 2"); k.e(f"s_cbranch_scc1 {LWS}")
    for e_ in range(7):
        if e_: k.e("v_add_u32 v5, 64, v5")
        k.e(f"""
        v_mul_u32_u24 v6, 4682, v5
        v_lshrrev_b32 v6, 16, v6
        v_mul_u32_u24 v7, 14, v6
        v_sub_u32 v7, v5, v7
        v_bfe_u32 v8, v6, 3, 1
        v_xor_b32 v7, v7, v8
        v_mul_u32_u24 v6, 224, v6
        v_lshl_add_u32 v6, v7, 4, v6
        v_add_u32 v{24+e_}, s25, v6
        """)
    srd(k, 4, S_WS, 7<<20, add=WS_HH)
    k.e(f"""
    s_mov_b32 s42, 28672
    s_mul_i32 s44, s{J}, 7168
    s_add_u32 s44, s44, {P4_X}
    s_branch {LWD}
    {LWS}:
    v_lshrrev_b32 v6, 3, v5
    v_and_b32 v7, 7, v5
    v_bfe_u32 v8, v6, 1, 1
    v_lshlrev_b32 v8, 2, v8
    v_xor_b32 v7, v7, v8
    v_lshlrev_b32 v6, 10, v6
    v_lshl_add_u32 v6, v7, 4, v6
    v_add_u32 v24, s26, v6
    """)
    for e_ in range(1,7): k.e(f"v_add_u32 v{24+e_}, {8192*e_}, v24")
    srd(k, 4, S_WD, 1792*1024)
    k.e(f"""
    s_mov_b32 s42, {112*1024}
    s_and_b32 s44, s{J}, 1
    s_mul_i32 s44, s44, 7168
    s_add_u32 s44, s44, {P4_W}
    {LWD}:
    s_mov_b32 s43, 0
    """)
    def p4(sbase):
        for e_ in range(7): dma(k, 24+e_, 4, "s43", f"s_add_u32 m0, {sbase}, {1024*e_}", SC1)
        k.e("s_add_u32 s43, s43, s42")
    def prefill4():
        Lf = k.lab("p4f")
        k.e("s_mov_b32 s46, s44"); k.e("s_mov_b32 s38, 0")
        k.e(f"{Lf}:")
        p4("s46")
        k.e(f"""
        s_add_u32 s46, s46, {P4_SL}
        s_add_u32 s38, s38, 1
        s_cmp_lt_u32 s38, {P4_NS}
        s_cbranch_scc1 {Lf}
        """)
    k.e("s_waitcnt lgkmcnt(0)")
    k.e("s_barrier")
    LX = k.lab("p4x"); LJ = k.lab("p4j")
    k.e(f"s_cmp_lt_u32 s{J}, 2"); k.e(f"s_cbranch_scc1 {LX}")
    prefill4()
    k.e("s_barrier"); k.e("s_barrier")
    k.e(f"s_branch {LJ}")
    k.e(f"{LX}:")
    k.e("s_barrier"); k.e("s_barrier")
    prefill4()
    k.e(f"{LJ}:")
    k.e("s_waitcnt vmcnt(28)"); k.e("s_barrier")
    k.e(f"""
    s_mov_b32 s38, 1
    s_mov_b32 s46, s44
    s_add_u32 s48, s44, {P4_NS*P4_SL}
    """)
    L = k.lab("l4")
    k.e(".p2align 6")
    k.e(f"""
    {L}:
    s_waitcnt vmcnt(21)
    s_barrier
    """)
    p4("s46")
    k.e(f"""
    s_add_u32 s46, s46, {P4_SL}
    s_cmp_ge_u32 s46, s48
    s_cselect_b32 s46, s44, s46
    s_add_u32 s38, s38, 1
    s_cmp_lt_u32 s38, 12
    s_cbranch_scc1 {L}
    s_waitcnt vmcnt(21)
    s_barrier
    s_waitcnt vmcnt(14)
    s_barrier
    s_waitcnt vmcnt(7)
    s_barrier
    s_waitcnt vmcnt(0)
    s_barrier
    s_barrier
    """)
    stamp(k)


P1_CSP = P1_SC2 + 4608
def cs_job(k):
    k.e(f"""
    s_and_b32 s73, s2, 1
    s_lshr_b32 s72, s2, 1
    s_and_b32 s72, s72, 15
    s_lshr_b32 s63, s2, 5
    s_cmp_eq_u32 s73, 1
    s_cselect_b32 s8, s{S_WU}, s{S_WG}
    s_cselect_b32 s9, s{S_WU+1}, s{S_WG+1}
    s_mov_b32 s10, {512*3584}
    s_mov_b32 s11, 0x00020000
    v_mul_u32_u24 v6, 4682, v1
    v_lshrrev_b32 v6, 16, v6
    v_mul_u32_u24 v7, 14, v6
    v_sub_u32 v7, v1, v7
    v_mul_u32_u24 v8, 3584, v6
    v_lshl_add_u32 v8, v7, 4, v8
    s_mul_i32 s24, s72, 224
    s_lshl_b32 s29, s63, 3
    s_add_u32 s29, s29, s{S_W}
    s_mul_i32 s29, s29, {8*3584}
    s_add_u32 s24, s24, s29
    v_add_u32 v8, s24, v8
    v_mov_b32 v9, 0x80000000
    v_cmp_gt_u32 vcc, 56, v1
    v_cndmask_b32 v8, v9, v8, vcc
    s_movk_i32 s29, {4*3584}
    buffer_load_dwordx4 v[148:151], v8, s[8:11], 0 offen
    buffer_load_dwordx4 v[152:155], v8, s[8:11], s29 offen
    """)
def cs_job2(k):
    for i in range(8): k.e(f"v_mov_b32 v{40+i}, 0")
    for e_ in range(2):
        k.e(f"s_waitcnt vmcnt({1-e_})")
        for d in range(4):
            t0 = 52 + 2*(d&1)
            k.e(f"v_lshlrev_b32 v{t0}, 16, v{148+4*e_+d}")
            k.e(f"v_and_b32 v{t0+1}, 0xffff0000, v{148+4*e_+d}")
            k.e(f"v_add_f32 v{40+2*d}, v{40+2*d}, v{t0}")
            k.e(f"v_add_f32 v{41+2*d}, v{41+2*d}, v{t0+1}")
    k.e("v_add_u32 v50, 14, v1"); k.e("v_lshlrev_b32 v50, 2, v50")
    k.e("v_add_u32 v49, 28, v1"); k.e("v_lshlrev_b32 v49, 2, v49")
    for i in range(8): k.e(f"ds_bpermute_b32 v{148+i}, v50, v{40+i}")
    k.e("s_waitcnt lgkmcnt(0)")
    for i in range(8): k.e(f"v_add_f32 v{40+i}, v{40+i}, v{148+i}")
    for i in range(8): k.e(f"ds_bpermute_b32 v{148+i}, v49, v{40+i}")
    k.e("s_waitcnt lgkmcnt(0)")
    for i in range(8): k.e(f"v_add_f32 v{40+i}, v{40+i}, v{148+i}")
    k.e(f"""
    v_min_u32 v50, 15, v1
    v_lshlrev_b32 v50, 5, v50
    s_lshl_b32 s24, s{S_W}, 9
    s_add_u32 s24, s24, {P1_CSP}
    v_add_u32 v50, s24, v50
    v_cmp_gt_u32 vcc, 14, v1
    s_and_saveexec_b64 s[60:61], vcc
    ds_write_b128 v50, v[40:43]
    ds_write_b128 v50, v[44:47] offset:16
    s_mov_b64 exec, s[60:61]
    """)
def cs_job3(k):
    L = k.lab("csj3")
    k.e(f"""
    s_cmp_lg_u32 s{S_W}, 0
    s_cbranch_scc1 {L}
    v_min_u32 v50, 31, v1
    v_lshlrev_b32 v50, 4, v50
    v_add_u32 v50, {P1_CSP}, v50
    """)
    for w in range(8): k.e(f"ds_read_b128 v[{104+4*w}:{107+4*w}], v50 offset:{512*w}")
    srd(k, 8, S_WS, 1<<20, add=WS_CS)
    k.e(f"""
    s_lshl_b32 s24, s72, 4
    s_lshl_b32 s29, s73, 3
    s_add_u32 s29, s29, s63
    s_add_u32 s24, s24, s29
    s_lshl_b32 s24, s24, 9
    v_lshlrev_b32 v51, 4, v1
    v_add_u32 v51, s24, v51
    v_mov_b32 v9, 0x80000000
    v_cmp_gt_u32 vcc, 28, v1
    v_cndmask_b32 v51, v9, v51, vcc
    s_waitcnt lgkmcnt(0)
    """)
    for w in range(1,8):
        for i in range(4): k.e(f"v_add_f32 v{104+i}, v{104+i}, v{104+4*w+i}")
    k.e("buffer_store_dwordx4 v[104:107], v51, s[8:11], 0 offen sc1")
    k.e(f"{L}:")
def czero(k, addr):
    k.e(f"v_mov_b32 v2, {addr}"); k.e("v_mov_b32 v5, 0"); k.e("ds_write_b32 v2, v5")
def sync(k, cnt, pubs, polls, first=False):
    L = k.lab("sync"); LNP = k.lab("nopub")
    k.e(f"""
    v_mov_b32 v2, {cnt}
    v_mov_b32 v5, 1
    """)
    for code in pubs[:1]:
        k.e(code)
        k.e("s_lshl_b32 s59, s59, 5")
        k.e("v_mov_b32 v6, s59")
    k.e(f"v_mov_b32 v7, s{S_NONCE}")
    (code, nwords) = polls[0]
    k.e(code)
    k.e(f"""
    v_and_b32 v8, {nwords-1}, v1
    v_lshlrev_b32 v8, 7, v8
    s_lshl_b32 s58, s58, 5
    v_add_u32 v8, s58, v8
    """)
    if len(polls) > 1:
        k.e(polls[1][0])
        k.e(f"""
        v_and_b32 v9, 15, v1
        v_lshlrev_b32 v9, 7, v9
        s_lshl_b32 s58, s58, 5
        v_add_u32 v9, s58, v9
        v_cmp_gt_u32 vcc, 32, v1
        v_cndmask_b32 v8, v9, v8, vcc
        """)
    if FINE == 8: stamp(k)
    k.e("s_waitcnt vmcnt(0)")
    if FINE == 8: stamp(k)
    k.e(f"""
    s_mov_b64 s[60:61], exec
    s_mov_b64 exec, 1
    ds_add_rtn_u32 v5, v2, v5
    s_waitcnt lgkmcnt(0)
    v_readfirstlane_b32 s59, v5
    s_cmp_lg_u32 s59, 7
    s_cbranch_scc1 {LNP}
    buffer_store_dword v7, v6, s[64:67], 0 offen sc1
    {LNP}:
    s_mov_b64 exec, s[60:61]
    """)
    k.e(f"s_cmp_lg_u32 s{S_W}, 0"); k.e(f"s_cbranch_scc1 {L}")
    Lp = k.lab("poll"); D = k.lab("polld")
    k.e(f"""
    s_mov_b32 s59, 0
    buffer_load_dword v55, v8, s[64:67], 0 offen sc1
    {Lp}:
    s_sleep {PSLEEP}
    buffer_load_dword v56, v8, s[64:67], 0 offen sc1
    s_waitcnt vmcnt(1)
    v_cmp_ne_u32 vcc, s{S_NONCE}, v55
    s_cmp_eq_u64 vcc, 0
    s_cbranch_scc1 {D}
    s_sleep {PSLEEP}
    buffer_load_dword v55, v8, s[64:67], 0 offen sc1
    s_waitcnt vmcnt(1)
    v_cmp_ne_u32 vcc, s{S_NONCE}, v56
    s_add_u32 s59, s59, 1
    s_cmp_eq_u64 vcc, 0
    s_cbranch_scc1 {D}
    s_cmp_lt_u32 s59, 200000
    s_cbranch_scc1 {Lp}
    {D}:
    """)
    if FINE == 8: stamp(k)
    k.e(f"{L}:")
    k.e("s_barrier")
    if FINE == 8: stamp(k)

def interleave(k, mfmas, fillers):
    n = len(mfmas); m = len(fillers); fi = 0
    for i, mf in enumerate(mfmas):
        mf()
        upto = (m*(i+1))//n
        while fi < upto:
            fillers[fi](); fi += 1

def xstats1(k):
    srd(k, 8, S_X, 2<<20); srd(k, 12, S_WS, 32768, add=WS_XS)
    k.e(f"""
    s_lshl_b32 s62, s2, 3
    s_add_u32 s62, s62, s{S_W}
    s_lshl_b32 s29, s62, 10
    v_lshlrev_b32 v5, 4, v1
    v_mov_b32 v152, 0
    """)
    if not os.environ.get("NOWARM"):
        srd(k, 4, S_WQKV, 512*3072)
        k.e(f"s_lshl_b32 s24, s62, 10")
        k.e("buffer_load_dwordx4 v[160:163], v5, s[4:7], s24 offen")
    k.e("buffer_load_dwordx4 v[148:151], v5, s[8:11], s29 offen")

def xstats2(k):
    LQ_ = k.lab("getn0")
    k.e(f"""
    v_mov_b32 v154, {P1_SC+712}
    ds_read_b32 v153, v154
    v_mov_b32 v156, 0
    v_mov_b32 v157, 0
    s_waitcnt vmcnt(0)
    """)
    for d in range(4):
        k.e(f"""
        v_lshlrev_b32 v154, 16, v{148+d}
        v_and_b32 v155, 0xffff0000, v{148+d}
        v_add_f32 v156, v156, v154
        v_fmac_f32 v157, v154, v154
        v_add_f32 v156, v156, v155
        v_fmac_f32 v157, v155, v155
        """)
    for perm in ("quad_perm:[1,0,3,2]", "quad_perm:[2,3,0,1]", "row_half_mirror", "row_mirror"):
        for r in (156,157): k.e(f"v_add_f32_dpp v{r}, v{r}, v{r} {perm} row_mask:0xf bank_mask:0xf")
    for r in (156,157): red16(k, r, 154); red32(k, r, 154)
    k.e(f"""
    s_waitcnt lgkmcnt(0)
    v_readfirstlane_b32 s{S_NONCE}, v153
    v_mov_b32 v158, s{S_NONCE}
    v_mov_b32 v159, 0
    s_lshl_b32 s62, s62, 4
    v_mov_b32 v152, s62
    s_mov_b64 s[60:61], exec
    s_mov_b64 exec, 1
    buffer_store_dwordx4 v[156:159], v152, s[12:15], 0 offen sc1
    s_mov_b64 exec, s[60:61]
    s_lshl_b32 s62, s62, 6
    v_lshlrev_b32 v152, 4, v1
    """)
    if not os.environ.get("NOWARM2"):
        for (ptr, size) in ((S_WO, 512*1024),) + (() if os.environ.get("WARMLATE") else ((S_WG, 512*3584), (S_WU, 512*3584), (S_WD, 1792*1024))):
            srd(k, 4, ptr, size)
            k.e("buffer_load_dwordx4 v[160:163], v152, s[4:7], s62 offen")

def p1(k):
    NS, SLOT, WOFF, nst = P1_NS, P1_SLOT, P1_WOFF, 8
    xstats1(k)
    k.e(f"""
    s_and_b32 s27, s{S_W}, 3
    s_lshr_b32 s28, s{S_W}, 2
    v_and_b32 v3, 15, v1
    v_lshrrev_b32 v4, 4, v1
    v_lshrrev_b32 v5, 1, v3
    v_xor_b32 v5, v5, v4
    v_lshlrev_b32 v5, 4, v5
    v_lshlrev_b32 v6, 7, v3
    v_add_u32 v9, v5, v6
    v_lshrrev_b32 v5, 2, v3
    v_and_b32 v6, 3, v3
    v_lshlrev_b32 v7, 3, v4
    v_add_u32 v7, v5, v7
    v_mul_u32_u24 v7, 384, v7
    v_lshrrev_b32 v5, 1, v5
    v_and_b32 v8, 1, v4
    v_lshlrev_b32 v8, 1, v8
    v_or_b32 v5, v5, v8
    v_xor_b32 v5, s27, v5
    v_lshlrev_b32 v5, 5, v5
    v_add_u32 v7, v7, v5
    v_lshlrev_b32 v6, 3, v6
    v_add_u32 v7, v7, v6
    v_add_u32 v18, {WOFF}, v7
    s_mov_b32 s55, 0x3f803f80
    """)
    k.e(f"""
    s_cmp_eq_u32 s27, 3
    s_cselect_b32 s50, 0, s27
    s_add_u32 s51, s50, 1
    s_cmp_ge_u32 s51, 3
    s_cselect_b32 s54, 3, 0
    s_sub_u32 s51, s51, s54
    s_add_u32 s52, s50, 2
    s_cmp_ge_u32 s52, 3
    s_cselect_b32 s54, 3, 0
    s_sub_u32 s52, s52, s54
    s_and_b32 s53, s27, 1
    s_add_u32 s54, s53, 3
    s_xor_b32 s53, s53, 1
    s_add_u32 s53, s53, 3
    s_cmp_eq_u32 s28, 0
    s_cselect_b32 s50, s50, s54
    s_cselect_b32 s51, s51, s53
    """)
    for t in range(3):
        k.e(f"s_lshl_b32 s24, s{50+t}, 11")
        k.e(f"v_add_u32 v{10+2*t}, s24, v9")
        k.e(f"v_xor_b32 v{11+2*t}, 64, v{10+2*t}")
    for i in range(22, 31): k.e(f"v_mov_b32 v{i}, 0")
    for i in range(36): k.e(f"v_mov_b32 v{64+i}, 0")
    for i in range(124, 148): k.e(f"v_mov_b32 v{i}, 0")
    srd(k, 16, S_WS, 2<<20, add=WS_O)
    k.e(f"""
    s_mov_b32 s49, {(-(NS-1)*SLOT) & 0xffffffff}
    s_mov_b32 s56, {SLOT}
    s_mov_b32 s38, 0
    s_mov_b32 s39, 0
    v_lshrrev_b32 v5, 3, v1
    v_and_b32 v5, 3, v5
    v_mul_u32_u24 v5, {SLOT}, v5
    v_and_b32 v6, 7, v1
    v_lshlrev_b32 v6, 4, v6
    v_add_u32 v5, v5, v6
    v_mov_b32 v32, s55
    v_mov_b32 v33, s55
    v_mov_b32 v34, s55
    v_mov_b32 v35, s55
    ds_write_b128 v5, v[32:35]
    """)
    WB = [100, 124]; XB = [112, 136]
    def body(NT, th):
        q = LQ(k)
        def read_list(jj):
            out = []
            def w(u, h):
                return lambda: q.rd(("W",jj,u), f"ds_read_b64_tr_b16 v[{WB[jj]+4*u+2*h}:{WB[jj]+4*u+2*h+1}], v18 offset:{128*u+(32*jj+4*h)*384}")
            def x(t):
                return lambda: q.rd(("X",jj,t), f"ds_read_b128 v[{XB[jj]+4*t}:{XB[jj]+4*t+3}], v{10+2*t+jj}")
            out += [x(0), w(0,0), w(0,1), w(1,0), w(1,1), w(2,0), w(2,1)]
            for t in range(1, NT): out.append(x(t))
            return out
        def dots(jj):
            out = []
            x = XB[jj]
            for d in range(4):
                t0 = 32 + 2*(d&1)
                out.append(lambda d=d,t0=t0: k.e(f"v_lshlrev_b32 v{t0}, 16, v{x+d}"))
                out.append(lambda d=d,t0=t0: k.e(f"v_and_b32 v{t0+1}, 0xffff0000, v{x+d}"))
                out.append(lambda d=d,t0=t0: k.e(f"v_add_f32 v22, v22, v{t0}"))
                out.append(lambda d=d,t0=t0: k.e(f"v_add_f32 v26, v26, v{t0+1}"))
                out.append(lambda d=d,t0=t0: k.e(f"v_fmac_f32 v23, v{t0}, v{t0}"))
                out.append(lambda d=d,t0=t0: k.e(f"v_fmac_f32 v27, v{t0+1}, v{t0+1}"))
            return out
        def step(jj, nxt, waits):
            mf = []
            for t in range(NT):
                for u in range(3):
                    def f(t=t, u=u):
                        if waits: q.wait([("W",jj,u), ("X",jj,t)])
                        a = 64+12*t+4*u; x = XB[jj]+4*t
                        k.e(f"v_mfma_f32_16x16x32_bf16 v[{a}:{a+3}], v[{WB[jj]+4*u}:{WB[jj]+4*u+3}], v[{x}:{x+3}], v[{a}:{a+3}]")
                    mf.append(f)
            rl = read_list(nxt) if nxt is not None else []
            dl = []
            fill = []
            n = len(mf)
            interleave(k, mf[:3], rl[:4])
            interleave(k, mf[3:], rl[4:] + dl)
        LOOP = k.lab("loop")
        k.e(".p2align 6")
        k.e(f"{LOOP}:")
        k.e(f"s_waitcnt lgkmcnt(0)")
        q.q = []
        if FINE == 1: stamp(k)
        k.e("s_barrier")
        if FINE == 1: stamp(k)
        k.e(f"""
        s_add_u32 s39, s39, 1
        s_cmp_ge_u32 s39, {NS}
        s_cselect_b32 s48, s49, s56
        s_cselect_b32 s39, 0, s39
        s_add_u32 s38, s38, 1
        """)
        step(1, 0, False)
        step(0, 1, True)
        for r in list(range(10, 10+2*NT)) + [18]: k.e(f"v_add_u32 v{r}, s48, v{r}")
        LXS = k.lab("xs2"); LXB = k.lab("xsb"); LXD = k.lab("xsd")
        LXN = k.lab("xsn")
        k.e(f"""
        s_cmp_le_u32 s38, 3
        s_cbranch_scc1 {LXN}
        {LXB}:
        s_cmp_lt_u32 s38, {nst}
        s_cbranch_scc1 {LOOP}
        s_branch {LXD}
        {LXN}:
        s_cmp_eq_u32 s38, 3
        s_cbranch_scc1 {LXS}
        s_cmp_lg_u32 s{S_W}, 0
        s_cbranch_scc1 {LXB}
        s_cmp_eq_u32 s38, 2
        s_cbranch_scc1 {LXN}_2
        buffer_load_dword v153, v152, s[68:71], 0 offen sc1
        s_branch {LXB}
        {LXN}_2:
        s_mov_b32 s59, 0
        {LXN}_3:
        s_waitcnt vmcnt(0)
        v_readfirstlane_b32 s{S_NONCE}, v153
        s_add_u32 s59, s59, 1
        s_cmp_lg_u32 s{S_NONCE}, 0
        s_cbranch_scc1 {LXN}_4
        buffer_load_dword v153, v152, s[68:71], 0 offen sc1
        s_cmp_lt_u32 s59, 400000
        s_cbranch_scc1 {LXN}_3
        {LXN}_4:
        v_mov_b32 v154, {P1_SC+712}
        ds_write_b32 v154, v153
        s_branch {LXB}
        {LXS}:
        """)
        xstats2(k)
        k.e(f"""
        s_branch {LXB}
        {LXD}:
        s_waitcnt lgkmcnt(0)
        """)
        q.q = []
        step(1, None, False)
        if th == 0:
            k.e(f"""
            s_lshl_b32 s57, s27, 6
            s_add_u32 s57, s57, {P1_SC2}
            v_lshlrev_b32 v32, 4, v4
            v_add_u32 v32, s57, v32
            v_mov_b32 v33, {P1_SC2 + 2304}
            v_cmp_eq_u32 vcc, 0, v3
            v_cndmask_b32 v32, v33, v32, vcc
            """)
            for t in range(3):
                k.e(f"s_mul_i32 s57, s{50+t}, 768")
                k.e(f"v_add_u32 v33, s57, v32")
                for u in range(3):
                    a = 64+12*t+4*u
                    k.e(f"ds_write_b128 v33, v[{a}:{a+3}] offset:{256*u}")
        k.e("s_waitcnt lgkmcnt(0)")
        if FINE == 4: stamp(k)
        k.e("s_barrier")
        if FINE == 4: stamp(k)
        k.e(f"""
        v_lshlrev_b32 v31, 3, v3
        v_add_u32 v31, {P1_SC}, v31
        s_lshl_b32 s57, s27, 6
        s_add_u32 s57, s57, {P1_SC2}
        v_lshlrev_b32 v32, 4, v4
        v_add_u32 v32, s57, v32
        v_mul_u32_u24 v40, {RS}, v3
        v_lshlrev_b32 v41, 3, v4
        v_add_u32 v40, v40, v41
        s_lshl_b32 s57, s27, 5
        v_add_u32 v40, s57, v40
        """)
        for t in range(NT):
            k.e(f"s_lshl_b32 s57, s{50+t}, 7")
            k.e(f"v_add_u32 v33, s57, v31")
            k.e(f"ds_read_b64 v[{34+2*t}:{35+2*t}], v33")
            k.e(f"s_mul_i32 s57, s{50+t}, {16*RS}")
            k.e(f"v_add_u32 v{42+t}, s57, v40")
        for u4 in range(3): k.e(f"ds_read_b128 v[{124+4*u4}:{127+4*u4}], v32 offset:{256*u4}")
        k.e("s_waitcnt lgkmcnt(0)")
        for u in range(3):
            for t in range(NT):
                a = 64+12*t+4*u
                for i in range(4): k.e(f"v_mul_f32 v{a+i}, v{35+2*t}, v{a+i}")
                for i in range(4): k.e(f"v_fmac_f32 v{a+i}, v{34+2*t}, v{124+4*u+i}")
                k.e(f"v_cvt_pk_bf16_f32 v{a}, v{a}, v{a+1}")
                k.e(f"v_cvt_pk_bf16_f32 v{a+1}, v{a+2}, v{a+3}")
                k.e(f"ds_write_b64 v{42+t}, v[{a}:{a+1}] offset:{128*u}")
    L1 = k.lab("th1"); LA = k.lab("attn")
    k.e("s_cmp_eq_u32 s28, 0"); k.e(f"s_cbranch_scc0 {L1}")
    body(3, 0)
    k.e(f"s_branch {LA}")
    k.e(f"{L1}:")
    body(2, 1)
    k.e(f"{LA}:")
    czero(k, 32256)
    k.e("s_waitcnt lgkmcnt(0)")
    k.e("s_barrier")

def attention(k):
    LG = 96
    if os.environ.get("WARMLATE"):
        for (ptr, size) in ((S_WG, 512*3584), (S_WU, 512*3584), (S_WD, 1792*1024)):
            srd(k, 4, ptr, size)
            k.e("buffer_load_dwordx4 v[160:163], v152, s[4:7], s62 offen")
    k.e(f"""
    v_lshrrev_b32 v2, 3, v0
    v_lshrrev_b32 v3, 1, v0
    v_and_b32 v3, 3, v3
    v_and_b32 v4, 1, v0
    v_add_u32 v5, 16, v2
    v_mul_u32_u24 v5, {RS}, v5
    v_lshlrev_b32 v6, 5, v3
    v_add_u32 v5, v5, v6
    v_mul_u32_u24 v6, {8*RS}, v4
    v_sub_u32 v7, v5, v6
    v_subrev_u32 v7, {6*RS}, v7
    v_lshlrev_b32 v8, 4, v4
    v_add_u32 v9, v7, v8
    v_xor_b32 v10, 1, v4
    v_mul_u32_u24 v10, {8*RS}, v10
    v_sub_u32 v10, v5, v10
    v_subrev_u32 v10, {6*RS}, v10
    v_add_u32 v10, v10, v8
    ds_read_b128 v[16:19], v5
    ds_read_b128 v[20:23], v5 offset:16
    """)
    for i in range(4):
        k.e(f"ds_read_b128 v[{24+8*i}:{27+8*i}], v7 offset:{(6-2*i)*RS+128}")
        k.e(f"ds_read_b128 v[{28+8*i}:{31+8*i}], v7 offset:{(6-2*i)*RS+144}")
    for i in range(4): k.e(f"ds_read_b128 v[{64+4*i}:{67+4*i}], v9 offset:{(6-2*i)*RS+256}")
    k.e("s_waitcnt lgkmcnt(4)")
    for i in range(4): k.e(f"ds_read_b128 v[{80+4*i}:{83+4*i}], v10 offset:{(6-2*i)*RS+256}")
    for i in range(4): k.e(f"v_mov_b32 v{LG+i}, 0")
    for d in range(8):
        for i in range(4): k.e(f"v_dot2_f32_bf16 v{LG+i}, v{16+d}, v{24+8*i+d}, v{LG+i}")
    k.e(f"""
    s_lshl_b32 s24, s{S_RB64}, 6
    v_add_u32 v11, s24, v2
    v_lshlrev_b32 v12, 3, v4
    v_sub_u32 v11, v11, v12
    s_mov_b32 s57, {f2u(-4e9)}
    v_mov_b32 v13, s57
    v_cvt_pk_bf16_f32 v{LG+4}, v{LG}, v{LG+1}
    v_cvt_pk_bf16_f32 v{LG+5}, v{LG+2}, v{LG+3}
    v_lshlrev_b32 v{LG}, 16, v{LG+4}
    v_and_b32 v{LG+1}, 0xffff0000, v{LG+4}
    v_lshlrev_b32 v{LG+2}, 16, v{LG+5}
    v_and_b32 v{LG+3}, 0xffff0000, v{LG+5}
    """)
    for i in range(4):
        k.e(f"v_cmp_gt_i32 vcc, {2*i}, v11")
        k.e(f"v_cndmask_b32 v{LG+i}, v{LG+i}, v13, vcc")
    for i in range(4): k.e(f"v_mov_b32_dpp v{LG+4+i}, v{LG+i} quad_perm:[1,0,3,2] row_mask:0xf bank_mask:0xf")
    c = 0.25*1.4426950408889634
    k.e(f"""
    v_max3_f32 v12, v{LG}, v{LG+1}, v{LG+2}
    v_max3_f32 v12, v12, v{LG+3}, v{LG+4}
    v_max3_f32 v12, v12, v{LG+5}, v{LG+6}
    v_max_f32 v12, v12, v{LG+7}
    s_mov_b32 s57, {f2u(c)}
    v_mul_f32 v12, s57, v12
    """)
    for i in range(8): k.e(f"v_fma_f32 v{LG+i}, v{LG+i}, s57, -v12")
    for i in range(8): k.e(f"v_exp_f32 v{LG+i}, v{LG+i}")
    k.e(f"""
    v_add_f32 v12, v{LG}, v{LG+1}
    v_add_f32 v13, v{LG+2}, v{LG+3}
    v_add_f32 v14, v{LG+4}, v{LG+5}
    v_add_f32 v15, v{LG+6}, v{LG+7}
    v_add_f32 v12, v12, v13
    v_add_f32 v14, v14, v15
    v_add_f32 v12, v12, v14
    v_rcp_f32 v12, v12
    """)
    for i in range(8): k.e(f"v_mul_f32 v{LG+i}, v{LG+i}, v12")
    for i in range(8):
        k.e(f"v_cvt_pk_bf16_f32 v{24+i}, v{LG+i}, 0")
        k.e(f"v_lshlrev_b32 v{32+i}, 16, v{24+i}")
    for i in range(8): k.e(f"v_mov_b32 v{40+i}, 0")
    k.e("s_waitcnt lgkmcnt(0)")
    for i in range(8):
        for d in range(4):
            k.e(f"v_dot2_f32_bf16 v{40+2*d}, v{64+4*i+d}, v{24+i}, v{40+2*d}")
            k.e(f"v_dot2_f32_bf16 v{41+2*d}, v{64+4*i+d}, v{32+i}, v{41+2*d}")
    for d in range(4): k.e(f"v_cvt_pk_bf16_f32 v{48+d}, v{40+2*d}, v{41+2*d}")
    k.e(f"""
    v_add_u32 v11, s24, v2
    v_lshlrev_b32 v11, 10, v11
    v_and_b32 v12, 7, v0
    v_lshlrev_b32 v12, 4, v12
    v_add_u32 v11, v11, v12
    s_lshl_b32 s26, s{S_CB}, 7
    v_add_u32 v11, s26, v11
    buffer_store_dwordx4 v[48:51], v11, s[16:19], 0 offen{SC1}
    """)


def g_common(k):
    k.e(f"""
    s_and_b32 s27, s{S_W}, 1
    s_lshr_b32 s28, s{S_W}, 1
    s_and_b32 s28, s28, 1
    s_lshr_b32 s29, s{S_W}, 2
    v_and_b32 v3, 31, v1
    s_lshl_b32 s24, s27, 5
    v_add_u32 v3, s24, v3
    v_lshrrev_b32 v4, 5, v1
    v_lshrrev_b32 v5, 4, v1
    v_and_b32 v6, 1, v5
    v_lshrrev_b32 v5, 1, v5
    v_and_b32 v7, 15, v1
    v_lshrrev_b32 v8, 2, v7
    v_and_b32 v7, 3, v7
    v_lshl_add_u32 v5, v5, 3, v8
    v_lshlrev_b32 v5, 7, v5
    v_lshrrev_b32 v8, 1, v8
    v_xor_b32 v8, s28, v8
    v_lshl_add_u32 v5, v8, 6, v5
    v_lshl_add_u32 v5, v6, 5, v5
    v_lshl_add_u32 v9, v7, 3, v5
    """)
    for i in range(16): k.e(f"v_mov_b32 v{32+i}, 0")
    for i in range(16): k.e(f"v_mov_b32 v{96+i}, 0")
def g_mfma(k, b): k.e(f"v_mfma_f32_32x32x16_bf16 v[32:47], v[{b+4}:{b+7}], v[{b}:{b+3}], v[32:47]")
def p2_main(k):
    g_common(k)
    k.e(f"""
    v_and_b32 v5, 15, v3
    v_xor_b32 v5, v5, v4
    v_lshlrev_b32 v5, 4, v5
    v_lshl_add_u32 v5, v3, 8, v5
    s_lshl_b32 s24, s29, 7
    v_xor_b32 v5, s24, v5
    v_add_u32 v10, {P2_X}, v5
    v_xor_b32 v11, 32, v10
    v_xor_b32 v12, 64, v10
    v_xor_b32 v13, 0x60, v10
    s_lshl_b32 s24, s29, 13
    s_add_u32 s24, s24, {P2_W}
    v_add_u32 v14, s24, v9
    v_lshrrev_b32 v5, 3, v0
    s_lshl_b32 s25, s{S_RB64}, 6
    v_add_u32 v5, s25, v5
    v_and_b32 v6, 7, v0
    v_lshlrev_b32 v6, 4, v6
    v_lshl_add_u32 v5, v5, 10, v6
    s_lshl_b32 s26, s{S_CB}, 7
    v_add_u32 v57, s26, v5
    """)
    srd(k, 12, S_X, 2<<20)
    k.e(f"buffer_load_dwordx4 v[{VRES}:{VRES+3}], v57, s[12:15], 0 offen")
    g_pre(k, lambda: srd(k, 16, S_WS, 2<<20, add=WS_H), True, 0)
    BUF = [80, 96]
    def reads(st, hf):
        for j2 in range(2):
            j = 2*hf + j2; b = BUF[hf] + 8*j2
            k.e(f"ds_read_b128 v[{b}:{b+3}], v{10+j} offset:{16384*st}")
            k.e(f"ds_read_b64_tr_b16 v[{b+4}:{b+5}], v14 offset:{16384*st+2048*j}")
            k.e(f"ds_read_b64_tr_b16 v[{b+6}:{b+7}], v14 offset:{16384*st+2048*j+512}")
    for st in range(4):
        k.e("s_waitcnt lgkmcnt(0)"); k.e("s_barrier")
        reads(st, 0)
        if st: g_mfma(k, 96); g_mfma(k, 104)
        reads(st, 1)
        k.e("s_waitcnt lgkmcnt(6)")
        g_mfma(k, 80); g_mfma(k, 88)
    k.e("s_waitcnt lgkmcnt(0)")
    g_mfma(k, 96); g_mfma(k, 104)
def p4_main(k):
    g_common(k)
    k.e(f"""
    v_bfe_u32 v5, v3, 3, 1
    v_xor_b32 v5, v5, v4
    v_lshlrev_b32 v5, 4, v5
    v_mul_u32_u24 v6, 224, v3
    v_add_u32 v5, v5, v6
    s_lshl_b32 s24, s29, 7
    s_add_u32 s24, s24, {P4_X}
    v_add_u32 v10, s24, v5
    s_lshl_b32 s24, s29, 13
    s_add_u32 s24, s24, {P4_W}
    v_add_u32 v14, s24, v9
    s_mov_b32 s49, {(-(P4_NS-1)*P4_SL) & 0xffffffff}
    s_mov_b32 s56, {P4_SL}
    s_mov_b32 s38, 0
    s_mov_b32 s39, 0
    """)
    g_pre(k, lambda: srd(k, 16, S_OUT, 2<<20), False, 22528)
    BUF = [80, 96]
    def body(NK):
        nb = NK - 2
        def reads(hf):
            for j2 in range(2 if hf == 0 else nb):
                j = 2*hf + j2; b = BUF[hf] + 8*j2
                k.e(f"ds_read_b128 v[{b}:{b+3}], v10 offset:{32*j}")
                k.e(f"ds_read_b64_tr_b16 v[{b+4}:{b+5}], v14 offset:{2048*j}")
                k.e(f"ds_read_b64_tr_b16 v[{b+6}:{b+7}], v14 offset:{2048*j+512}")
        LOOP = k.lab("gloop")
        k.e(".p2align 6")
        k.e(f"""
        {LOOP}:
        s_waitcnt lgkmcnt(0)
        s_barrier
        """)
        reads(0)
        k.e(f"""
        s_add_u32 s39, s39, 1
        s_cmp_ge_u32 s39, {P4_NS}
        s_cselect_b32 s48, s49, s56
        s_cselect_b32 s39, 0, s39
        s_add_u32 s38, s38, 1
        """)
        for j2 in range(nb): g_mfma(k, 96+8*j2)
        reads(1)
        k.e(f"s_waitcnt lgkmcnt({3*nb})")
        g_mfma(k, 80); g_mfma(k, 88)
        k.e(f"""
        v_add_u32 v10, s48, v10
        v_add_u32 v14, s48, v14
        s_cmp_lt_u32 s38, 16
        s_cbranch_scc1 {LOOP}
        s_waitcnt lgkmcnt(0)
        """)
        for j2 in range(nb): g_mfma(k, 96+8*j2)
    L3 = k.lab("p4b"); LE = k.lab("p4e")
    k.e("s_cmp_eq_u32 s29, 0"); k.e(f"s_cbranch_scc0 {L3}")
    body(4)
    k.e(f"s_branch {LE}")
    k.e(f"{L3}:")
    body(3)
    k.e(f"{LE}:")
def g_pre(k, osrd_fn, hstats=False, GB=0):
    osrd_fn()
    k.e(f"""
    v_mul_u32_u24 v5, {GS_RS}, v3
    v_lshl_add_u32 v5, v4, 4, v5
    s_mul_i32 s24, s29, {64*GS_RS}
    s_lshl_b32 s30, s28, 7
    s_add_u32 s24, s24, s30
    s_add_u32 s24, s24, {GB}
    v_add_u32 v16, s24, v5
    v_lshrrev_b32 v6, 3, v0
    v_mul_u32_u24 v5, {GS_RS}, v6
    v_and_b32 v7, 7, v0
    v_lshl_add_u32 v5, v7, 5, v5
    v_add_u32 v17, {GB}, v5
    """)
    if hstats:
        k.e(f"""
        s_lshl_b32 s24, s{S_RB64}, 6
        v_add_u32 v6, s24, v6
        v_lshlrev_b32 v6, 6, v6
        s_lshl_b32 s24, s{S_CB}, 3
        v_add_u32 v6, s24, v6
        v_mov_b32 v5, 0x80000000
        v_cmp_eq_u32 vcc, 0, v7
        v_cndmask_b32 v18, v5, v6, vcc
        """)
def g_epi(k, sc, hstats=False):
    for q in range(4): k.e(f"ds_write_b128 v16, v[{32+4*q}:{35+4*q}] offset:{32*q}")
    if hstats:
        czero(k, 40960)
        srd(k, 12, S_WS, 131072, add=WS_HS)
    k.e("s_waitcnt vmcnt(0)")
    for p in range(4):
        k.e(f"v_lshlrev_b32 v{64+2*p}, 16, v{VRES+p}")
        k.e(f"v_and_b32 v{65+2*p}, 0xffff0000, v{VRES+p}")
    k.e("s_waitcnt lgkmcnt(0)")
    k.e("s_barrier")
    k.e(f"""
    ds_read_b128 v[32:35], v17
    ds_read_b128 v[40:43], v17 offset:{64*GS_RS}
    ds_read_b128 v[36:39], v17 offset:16
    ds_read_b128 v[44:47], v17 offset:{64*GS_RS+16}
    s_waitcnt lgkmcnt(2)
    """)
    for i in range(4): k.e(f"v_add_f32 v{32+i}, v{32+i}, v{40+i}")
    for i in range(4): k.e(f"v_add_f32 v{32+i}, v{32+i}, v{64+i}")
    k.e("s_waitcnt lgkmcnt(0)")
    for i in range(4,8): k.e(f"v_add_f32 v{32+i}, v{32+i}, v{40+i}")
    for i in range(4,8): k.e(f"v_add_f32 v{32+i}, v{32+i}, v{64+i}")
    for p in range(4): k.e(f"v_cvt_pk_bf16_f32 v{VRES+p}, v{32+2*p}, v{33+2*p}")
    k.e(f"buffer_store_dwordx4 v[{VRES}:{VRES+3}], v57, s[16:19], 0 offen{sc}")
    if hstats:
        k.e("""
        v_add_f32 v44, v32, v33
        v_mul_f32 v45, v32, v32
        v_add_f32 v46, v34, v35
        v_mul_f32 v47, v33, v33
        v_add_f32 v44, v44, v36
        v_fmac_f32 v45, v34, v34
        v_add_f32 v46, v46, v37
        v_fmac_f32 v47, v35, v35
        v_add_f32 v44, v44, v38
        v_fmac_f32 v45, v36, v36
        v_add_f32 v46, v46, v39
        v_fmac_f32 v47, v37, v37
        v_add_f32 v44, v44, v46
        v_fmac_f32 v45, v38, v38
        v_fmac_f32 v47, v39, v39
        v_add_f32 v45, v45, v47
        """)
        for perm in ("quad_perm:[1,0,3,2]", "quad_perm:[2,3,0,1]", "row_half_mirror"):
            for r in (44,45): k.e(f"v_add_f32_dpp v{r}, v{r}, v{r} {perm} row_mask:0xf bank_mask:0xf")
        k.e("buffer_store_dwordx2 v[44:45], v18, s[12:15], 0 offen sc1")

def p3_main(k):
    nst = 8
    czero(k, 7168)
    srd(k, 16, S_WS, 7<<20, add=WS_HH)
    k.e(f"""
    s_lshl_b32 s25, s{S_RB128}, 7
    s_and_b32 s27, s{S_W}, 3
    s_lshr_b32 s28, s{S_W}, 2
    v_and_b32 v3, 31, v1
    s_lshl_b32 s29, s27, 5
    v_add_u32 v3, s29, v3
    v_lshrrev_b32 v4, 5, v1
    v_lshrrev_b32 v5, 1, v3
    v_and_b32 v5, 7, v5
    v_xor_b32 v5, v5, v4
    v_lshlrev_b32 v5, 4, v5
    v_lshlrev_b32 v6, 7, v3
    v_add_u32 v5, v6, v5
    v_add_u32 v16, {P3_X}, v5
    v_xor_b32 v17, 32, v16
    v_xor_b32 v18, 64, v16
    v_xor_b32 v19, 0x60, v16
    v_lshrrev_b32 v5, 4, v1
    v_and_b32 v6, 1, v5
    v_lshrrev_b32 v5, 1, v5
    v_and_b32 v7, 15, v1
    v_lshrrev_b32 v8, 2, v7
    v_and_b32 v7, 3, v7
    v_lshlrev_b32 v5, 3, v5
    v_add_u32 v5, v5, v8
    v_mul_u32_u24 v5, 224, v5
    v_mul_u32_u24 v6, {P3_UOFF}, v6
    v_add_u32 v5, v5, v6
    v_lshlrev_b32 v7, 3, v7
    v_add_u32 v5, v5, v7
    v_add_u32 v9, {P3_W}, v5
    v_mul_u32_u24 v5, {RSO}, v3
    v_lshl_add_u32 v5, v4, 4, v5
    v_add_u32 v24, {P3_OUT}, v5
    s_mov_b32 s55, 0x3f803f80
    """)
    k.e("""
    s_cmp_eq_u32 s27, 3
    s_cselect_b32 s60, 0, s27
    s_add_u32 s61, s60, 1
    s_cmp_ge_u32 s61, 3
    s_cselect_b32 s54, 3, 0
    s_sub_u32 s61, s61, s54
    s_add_u32 s62, s60, 2
    s_cmp_ge_u32 s62, 3
    s_cselect_b32 s54, 3, 0
    s_sub_u32 s62, s62, s54
    s_add_u32 s60, s60, 4
    s_add_u32 s61, s61, 4
    s_add_u32 s62, s62, 4
    s_add_u32 s51, s27, 1
    s_and_b32 s51, s51, 3
    s_add_u32 s52, s27, 2
    s_and_b32 s52, s52, 3
    s_add_u32 s53, s27, 3
    s_and_b32 s53, s53, 3
    s_cmp_eq_u32 s28, 0
    s_cselect_b32 s50, s27, s60
    s_cselect_b32 s51, s51, s61
    s_cselect_b32 s52, s52, s62
    """)
    for q in range(4):
        k.e(f"s_lshl_b32 s24, s{50+q}, 5"); k.e(f"v_add_u32 v{20+q}, s24, v9")
    for i in range(26, 32): k.e(f"v_mov_b32 v{i}, 0")
    for i in range(64): k.e(f"v_mov_b32 v{64+i}, 0")
    for i in range(132,136): k.e(f"v_mov_b32 v{i}, 0")
    for i in range(152,168): k.e(f"v_mov_b32 v{i}, 0")
    k.e(f"""
    s_mov_b32 s49, {(-2*P3_XS) & 0xffffffff}
    s_mov_b32 s46, {(-2*P3_WS) & 0xffffffff}
    s_mov_b32 s56, {P3_XS}
    s_mov_b32 s45, {P3_WS}
    s_mov_b32 s38, 0
    s_mov_b32 s39, 0
    """)
    XB = [128, 132]; WBB = [136, 152]
    def body(NQ, nh):
        def rdX(j): k.e(f"ds_read_b128 v[{XB[j&1]}:{XB[j&1]+3}], v{16+j}")
        def rdW(j,q):
            WB = WBB[j&1]
            k.e(f"ds_read_b64_tr_b16 v[{WB+4*q}:{WB+4*q+1}], v{20+q} offset:{3584*j}")
            k.e(f"ds_read_b64_tr_b16 v[{WB+4*q+2}:{WB+4*q+3}], v{20+q} offset:{3584*j+896}")
        def step(j, nxt, waits):
            x = XB[j&1]; WB = WBB[j&1]
            for q in range(NQ):
                if waits: k.e(f"s_waitcnt lgkmcnt({2*(NQ-1) + (1 if q>=1 else 0)})")
                k.e(f"v_mfma_f32_32x32x16_bf16 v[{64+16*q}:{79+16*q}], v[{WB+4*q}:{WB+4*q+3}], v[{x}:{x+3}], v[{64+16*q}:{79+16*q}]")
                if nxt is not None:
                    if q == 0: rdX(nxt)
                    rdW(nxt, q)
        LOOP = k.lab("loop3")
        k.e(".p2align 6")
        k.e(f"""
        {LOOP}:
        s_waitcnt lgkmcnt(0)
        """)
        if FINE == 3: stamp(k)
        k.e("s_barrier")
        if FINE == 3: stamp(k)
        k.e(f"""
        s_add_u32 s39, s39, 1
        s_cmp_ge_u32 s39, 3
        s_cselect_b32 s48, s49, s56
        s_cselect_b32 s47, s46, s45
        s_cselect_b32 s39, 0, s39
        s_add_u32 s38, s38, 1
        """)
        step(3, 0, False)
        step(0, 1, True); step(1, 2, True); step(2, 3, True)
        for r in range(16, 20): k.e(f"v_add_u32 v{r}, s48, v{r}")
        for q in range(NQ): k.e(f"v_add_u32 v{20+q}, s47, v{20+q}")
        k.e(f"""
        s_cmp_lt_u32 s38, {nst}
        s_cbranch_scc1 {LOOP}
        s_waitcnt lgkmcnt(0)
        """)
        step(3, None, False)
    L3 = k.lab("p3b"); LE = k.lab("p3e")
    k.e("s_cmp_eq_u32 s28, 0"); k.e(f"s_cbranch_scc0 {L3}")
    body(4, 0)
    k.e(f"s_branch {LE}")
    k.e(f"{L3}:")
    body(3, 1)
    k.e(f"{LE}:")
    k.e("s_barrier")
def p3_epi(k):
    k.e(f"""
    v_lshlrev_b32 v33, 3, v3
    v_add_u32 v33, {P3_ST}, v33
    ds_read_b64 v[30:31], v33
    """)
    for q in range(4):
        k.e(f"s_lshl_b32 s24, s{50+q}, 5"); k.e(f"s_add_u32 s24, s24, {40960 - P3_W}"); k.e(f"v_add_u32 v{20+q}, s24, v9")
    for q in range(4):
        k.e(f"ds_read_b64_tr_b16 v[{136+4*q}:{137+4*q}], v{20+q}")
        k.e(f"ds_read_b64_tr_b16 v[{138+4*q}:{139+4*q}], v{20+q} offset:896")
    k.e(f"""
    s_waitcnt lgkmcnt(8)
    v_xor_b32 v30, 0x80000000, v30
    v_lshrrev_b32 v129, 16, v30
    v_or_b32 v128, v129, v30
    v_cmp_eq_u32 vcc, 0, v4
    v_cndmask_b32 v128, 0, v128, vcc
    v_cndmask_b32 v129, 0, v129, vcc
    v_mov_b32 v130, 0
    v_mov_b32 v131, 0
    v_mul_f32 v32, v31, v31
    v_mul_f32 v34, {f2u(-2.302208198)}, v31
    v_mul_f32 v35, v32, v31
    v_mul_f32 v35, {f2u(-0.1029432397)}, v35
    v_rcp_f32 v36, v32
    s_waitcnt lgkmcnt(0)
    """)
    for q in range(4):
        k.e(f"v_mfma_f32_32x32x16_bf16 v[{64+16*q}:{79+16*q}], v[{136+4*q}:{139+4*q}], v[128:131], v[{64+16*q}:{79+16*q}]")
    for q in range(4):
        LS = k.lab("skq")
        if q == 3:
            k.e("s_cmp_eq_u32 s28, 1"); k.e(f"s_cbranch_scc1 {LS}")
        A = 64+16*q
        for i in range(8): k.e(f"v_mul_f32 v{144+i}, v{A+i}, v{A+i}")
        for i in range(8): k.e(f"v_fma_f32 v{144+i}, v{144+i}, v35, v34")
        for i in range(8): k.e(f"v_mul_f32 v{144+i}, v{A+i}, v{144+i}")
        for i in range(8): k.e(f"v_exp_f32 v{144+i}, v{144+i}")
        for i in range(8): k.e(f"v_mul_f32 v{A+i}, v{A+i}, v{A+8+i}")
        for i in range(8): k.e(f"v_fma_f32 v{144+i}, v{144+i}, v36, v36")
        for i in range(8): k.e(f"v_rcp_f32 v{144+i}, v{144+i}")
        k.e(f"s_lshl_b32 s57, s{50+q}, 5")
        k.e(f"v_add_u32 v32, s57, v24")
        for i in range(8): k.e(f"v_mul_f32 v{A+i}, v{A+i}, v{144+i}")
        for i in range(0,8,2): k.e(f"v_cvt_pk_bf16_f32 v{160+i//2}, v{A+i}, v{A+i+1}")
        k.e("v_permlane32_swap_b32 v160, v162")
        k.e("v_permlane32_swap_b32 v161, v163")
        k.e(f"ds_write_b128 v32, v[160:163]")
        if q == 3: k.e(f"{LS}:")
    k.e("s_waitcnt lgkmcnt(0)")
    k.e("s_barrier")
    k.e(f"""
    s_lshl_b32 s24, s{S_RB128}, 4
    s_add_u32 s24, s24, s{S_FB}
    s_mul_i32 s24, s24, 28672
    v_lshlrev_b32 v33, 4, v0
    v_add_u32 v33, s24, v33
    v_mov_b32 v5, v0
    """)
    for i in range(4):
        if i: k.e("v_add_u32 v5, 512, v5")
        k.e(f"""
        v_mul_u32_u24 v6, 4682, v5
        v_lshrrev_b32 v6, 16, v6
        v_mul_u32_u24 v7, 14, v6
        v_sub_u32 v7, v5, v7
        v_mul_u32_u24 v6, {RSO}, v6
        v_lshl_add_u32 v6, v7, 4, v6
        ds_read_b128 v[{128+4*i}:{131+4*i}], v6 offset:{P3_OUT}
        """)
    for i in range(3):
        k.e(f"s_waitcnt lgkmcnt({3-i})")
        k.e(f"s_movk_i32 s57, {8192*i}")
        k.e(f"buffer_store_dwordx4 v[{128+4*i}:{131+4*i}], v33, s[16:19], s57 offen{SC1}")
    LS4 = k.lab("sk4")
    k.e(f"""
    s_cmp_ge_u32 s{S_W}, 4
    s_cbranch_scc1 {LS4}
    s_waitcnt lgkmcnt(0)
    s_movk_i32 s57, 24576
    buffer_store_dwordx4 v[140:143], v33, s[16:19], s57 offen{SC1}
    {LS4}:
    """)
    k.e("s_waitcnt lgkmcnt(0)")

def build():
    k = Kern(NAME + "_kernel")
    END = "L_end"
    k.e(f"""
    s_cmp_ge_u32 s2, 256
    s_cbranch_scc1 {END}
    s_load_dwordx8 s[84:91], s[0:1], 0
    s_load_dwordx8 s[92:99], s[0:1], 32
    s_load_dwordx4 s[80:83], s[0:1], 64
    s_memrealtime s[100:101]
    v_and_b32 v1, 63, v0
    v_lshrrev_b32 v2, 6, v0
    s_nop 0
    v_readfirstlane_b32 s{S_W}, v2
    """)
    if not os.environ.get("NOCP"):
        LCP = k.lab("nocp")
        k.e(f"""
        s_cmp_lg_u32 s{S_W}, 1
        s_cbranch_scc1 {LCP}
        s_getpc_b64 s[60:61]
        s_and_b32 s60, s60, 0xffffff00
        s_sub_u32 s60, s60, CODEOFF
        s_subb_u32 s61, s61, 0
        s_lshr_b32 s24, s2, 3
        s_min_u32 s24, s24, CODEKB
        s_lshl_b32 s24, s24, 10
        v_lshlrev_b32 v5, 4, v1
        v_add_u32 v5, s24, v5
        global_load_dwordx4 v[164:167], v5, s[60:61]
        {LCP}:
        """)
    k.e(f"""
    s_and_b32 s3, s2, 7
    s_lshr_b32 s23, s2, 3
    s_and_b32 s21, s3, 3
    s_lshr_b32 s22, s3, 2
    s_lshl_b32 s{S_RB128}, s21, 2
    s_lshr_b32 s24, s23, 3
    s_add_u32 s{S_RB128}, s{S_RB128}, s24
    s_and_b32 s24, s23, 7
    s_lshl_b32 s{S_RB64}, s{S_RB128}, 1
    s_and_b32 s25, s24, 1
    s_add_u32 s{S_RB64}, s{S_RB64}, s25
    s_lshl_b32 s{S_CB}, s22, 2
    s_lshr_b32 s25, s24, 1
    s_add_u32 s{S_CB}, s{S_CB}, s25
    s_lshl_b32 s{S_FB}, s22, 3
    s_add_u32 s{S_FB}, s{S_FB}, s24
    s_sub_u32 s{S_J}, s{S_W}, 8
    s_mov_b32 s78, 0
    s_waitcnt lgkmcnt(0)
    """)
    srd(k, 64, S_WS, 1<<20, add=WS_F)
    srd(k, 68, S_DBG, 256)
    LN = k.lab("nonce")
    k.e(f"""
    s_or_b32 s24, s2, s{S_W}
    s_cmp_lg_u32 s24, 0
    s_cbranch_scc1 {LN}
    s_or_b32 s100, s100, 1
    v_mov_b32 v2, 0
    v_mov_b32 v3, s100
    buffer_store_dword v3, v2, s[68:71], 0 offen sc1
    {LN}:
    """)
    stamp(k, True)
    LC = k.lab("compute"); LD = k.lab("done")
    k.e(f"s_cmp_lt_u32 s{S_W}, 8"); k.e(f"s_cbranch_scc1 {LC}")
    loader(k)
    k.e(f"s_branch {LD}")
    k.e(f"{LC}:")
    p1(k); stamp(k)
    attention(k); stamp(k)
    sync(k, 32256, [f"s_lshl_b32 s59, s{S_RB64}, 7\ns_lshl_b32 s58, s{S_CB}, 2\ns_add_u32 s59, s59, s58"],
            [(f"s_lshl_b32 s58, s{S_RB64}, 7", 8)])
    p2_main(k); stamp(k)
    g_epi(k, SC1, True)
    sync(k, 40960, [f"s_lshr_b32 s59, s{S_RB64}, 1\ns_lshl_b32 s59, s59, 7\ns_add_u32 s59, s59, 8192\ns_and_b32 s58, s{S_RB64}, 1\ns_lshl_b32 s58, s58, 3\ns_add_u32 s58, s58, s{S_CB}\ns_lshl_b32 s58, s58, 2\ns_add_u32 s59, s59, s58"],
            [(f"s_lshl_b32 s58, s{S_RB128}, 7\ns_add_u32 s58, s58, 8192", 16)])
    stamp(k)
    p3_main(k); stamp(k)
    p3_epi(k); stamp(k)
    sync(k, 7168, [f"s_lshl_b32 s59, s{S_RB128}, 7\ns_add_u32 s59, s59, 16384\ns_lshl_b32 s58, s{S_FB}, 2\ns_add_u32 s59, s59, s58"],
            [(f"s_lshr_b32 s58, s{S_RB64}, 1\ns_lshl_b32 s58, s58, 7\ns_add_u32 s58, s58, 16384", 16)])
    p4_main(k); stamp(k)
    g_epi(k, "", False)
    k.e(f"{LD}:")
    if STAMP:
        k.e("s_waitcnt vmcnt(0)")
        stamp(k, True)
        srd(k, 4, S_WS, 1<<20, add=32<<20)
        k.e(f"""
        s_lshl_b32 s24, s2, 4
        s_add_u32 s24, s24, s{S_W}
        s_lshl_b32 s24, s24, 8
        v_lshlrev_b32 v2, 2, v1
        v_add_u32 v2, s24, v2
        buffer_store_dword v63, v2, s[4:7], 0 offen
        """)
    k.e(f"{END}:")
    k.e("s_endpgm")
    return k

if __name__ == "__main__":
    k = build()
    if FINE == 9:
        out_l = []
        for ln in k.lines:
            out_l.append(ln)
            if ln == "s_barrier":
                out_l += ["s_memrealtime s[100:101]" if os.environ.get("RT") else "s_memtime s[100:101]", "s_waitcnt lgkmcnt(0)", "v_cmp_eq_u32 vcc, s78, v1", "v_mov_b32 v62, s100", "v_cndmask_b32 v63, v63, v62, vcc", "s_add_u32 s78, s78, 1"]
        k.lines = out_l
    hdr = open("cdna_kernels/"+NAME+".s.ref").read().split("; Override launch")[0]
    out = hdr + "; @launch grid=(256,1,1) block=(768,1,1) lds=163840\n"
    out += '.amdgcn_target "amdgcn-amd-amdhsa--gfx950"\n'
    out += kernel_text(k, 168)
    import subprocess, re
    tmp = out.replace("CODEOFF", "0x100").replace("CODEKB", "1")
    open("_t.s","w").write(tmp)
    subprocess.run(["clang","-x","assembler","-target","amdgcn-amd-amdhsa","-mcpu=gfx950","-c","_t.s","-o","_t.o"], check=True)
    dis = subprocess.run(["llvm-objdump","-d","--mcpu=gfx950","_t.o"], capture_output=True, text=True).stdout
    m = re.search(r"s_getpc_b64.*// ([0-9A-F]+):", dis)
    if m:
        pc = int(m.group(1), 16) + 4
        last = [int(x,16) for x in re.findall(r"// ([0-9A-F]+):", dis)][-1]
        out = out.replace("CODEOFF", hex(pc & ~0xff)).replace("CODEKB", str(max(0, (last - 1024)//1024)))
    open(sys.argv[1], "w").write(out)
```

```python
import sys, os, struct
from asmlib import *
NAME = "sequential_preLN__sliding_local_dilated__glu_gated_geglu__prompt"
WS_O, WS_H, WS_HH, WS_F = 0, 2<<20, 4<<20, 16<<20
def f2u(f): return struct.unpack("<I", struct.pack("<f", f))[0]
S_X, S_WQKV, S_WO, S_WG, S_WU, S_WD, S_OUT, S_DBG, S_WS = 84, 86, 88, 92, 94, 96, 98, 80, 82
S_W, S_RB64, S_CB, S_RB128, S_FB, S_NONCE, S_J = 20, 76, 77, 74, 75, 79, 21
STAMP = bool(os.environ.get("STAMP"))
FINE = int(os.environ.get("FINE","0"))
SC1 = " sc1"
PSLEEP = int(os.environ.get("PSLEEP","2"))
VRES = 58

def srd(k, sd, ptr, size, add=0):
    if add:
        k.e(f"s_add_u32 s{sd}, s{ptr}, {add}")
        k.e(f"s_addc_u32 s{sd+1}, s{ptr+1}, 0")
    else:
        k.e(f"s_mov_b32 s{sd}, s{ptr}")
        k.e(f"s_mov_b32 s{sd+1}, s{ptr+1}")
    k.e(f"s_mov_b32 s{sd+2}, {size}")
    k.e(f"s_mov_b32 s{sd+3}, 0x00020000")
def round_bf16(k, v, tmp):
    k.e(f"v_cvt_pk_bf16_f32 v{tmp}, v{v}, v{v}")
    k.e(f"v_lshlrev_b32 v{v}, 16, v{tmp}")
def ln_stats(k, vs, vq, vm, vr, tmp):
    k.e(f"""
    v_mul_f32 v{vm}, {f2u(1/512)}, v{vs}
    v_mul_f32 v{vr}, {f2u(1/512)}, v{vq}
    v_fma_f32 v{vr}, -v{vm}, v{vm}, v{vr}
    v_max_f32 v{vr}, 0, v{vr}
    """)
    round_bf16(k, vm, tmp); round_bf16(k, vr, tmp)
    k.e(f"v_add_f32 v{vr}, {f2u(1e-5)}, v{vr}")
    round_bf16(k, vr, tmp)
    k.e(f"v_sqrt_f32 v{vr}, v{vr}")
    round_bf16(k, vr, tmp)
    k.e(f"v_rcp_f32 v{vr}, v{vr}")
def red32(k, v, tmp):
    k.e(f"v_mov_b32 v{tmp}, v{v}"); k.e(f"v_permlane32_swap_b32 v{v}, v{tmp}"); k.e(f"v_add_f32 v{v}, v{v}, v{tmp}")
def red16(k, v, tmp):
    k.e(f"v_mov_b32 v{tmp}, v{v}"); k.e(f"v_permlane16_swap_b32 v{v}, v{tmp}"); k.e(f"v_add_f32 v{v}, v{v}, v{tmp}")
def stamp(k, force=False):
    if not STAMP: return
    if FINE == 9 and not force: return
    k.e("s_memrealtime s[100:101]" if os.environ.get("RT") else "s_memtime s[100:101]")
    k.e("s_waitcnt lgkmcnt(0)")
    k.e("v_cmp_eq_u32 vcc, s78, v1")
    k.e("v_mov_b32 v62, s100")
    k.e("v_cndmask_b32 v63, v63, v62, vcc")
    k.e("s_add_u32 s78, s78, 1")

P1_NS, P1_SLOT, P1_WOFF = 4, 34816, 10240
P1_SC = P1_NS*P1_SLOT
P1_SC2 = P1_SC + 2560
RS = 400
P2_X, P2_W = 98304, 32768
P4_X, P4_W, P4_NS, P4_SL = 8192, 81920, 5, 14336
P3_OUT, RSO = 8192, 240
GS_RS = 272
P3_X, P3_XS, P3_W, P3_WS, P3_UOFF = 8192, 16384, 57344, 28800, 14464
P3_CS, P3_ST, P3_CS2 = 0, 4096, 6144

def dma(k, v, srdn, soff, m0expr, sc=""):
    k.e(m0expr)
    k.e(f"buffer_load_dwordx4 v{v}, s[{srdn}:{srdn+3}], {soff} offen{sc} lds")


WS_XS, WS_HS = 18<<20, 19<<20
WS_CS = 17<<20
def merge(k, groups, fill):
    if not fill:
        for g in groups: g()
        return
    fill = [x.strip() for x in fill if x.strip()]
    f2 = []; i = 0
    while i < len(fill):
        if fill[i].startswith("s_cmp"):
            j = i
            for t in range(i+1, min(i+8, len(fill))):
                if fill[t].startswith("s_cselect"): j = t
            f2.append("\n".join(fill[i:j+1])); i = j+1
        else:
            f2.append(fill[i]); i += 1
    fill = f2
    n = len(groups); m = len(fill); fi = 0
    for i, g in enumerate(groups):
        g()
        upto = (m*(i+1))//n
        while fi < upto:
            k.e(fill[fi]); fi += 1
def lstats_reads(k, base_sreg, ne):
    k.e(f"v_add_u32 v50, s{base_sreg}, v51")
    for e_ in range(ne): k.e(f"ds_read_b128 v[{64+4*e_}:{67+4*e_}], v50 offset:{1024*e_}")
def lstats_valu(ne, acc0):
    out = []
    for e_ in range(ne):
        out.append(f"s_waitcnt lgkmcnt({ne-1-e_})")
        a = acc0 + 4*e_
        for d in range(4):
            t0 = 52 + 2*(d&1)
            out += [f"v_lshlrev_b32 v{t0}, 16, v{64+4*e_+d}", f"v_and_b32 v{t0+1}, 0xffff0000, v{64+4*e_+d}",
                    f"v_pk_add_f32 v[{a}:{a+1}], v[{a}:{a+1}], v[{t0}:{t0+1}]",
                    f"v_pk_fma_f32 v[{a+2}:{a+3}], v[{t0}:{t0+1}], v[{t0}:{t0+1}], v[{a+2}:{a+3}]"]
    return out
def lstats_fin(k, ne, acc0, row0_sreg, stbase):
    k.e(f"""
    v_lshrrev_b32 v50, 3, v1
    v_add_u32 v50, s{row0_sreg}, v50
    v_lshlrev_b32 v50, 3, v50
    v_add_u32 v50, {stbase}, v50
    """)
    for e_ in range(ne):
        a = acc0 + 4*e_
        k.e(f"v_add_f32 v{a}, v{a}, v{a+1}")
        k.e(f"v_add_f32 v{a+2}, v{a+2}, v{a+3}")
    for perm in ("quad_perm:[1,0,3,2]", "quad_perm:[2,3,0,1]", "row_half_mirror"):
        for e_ in range(ne):
            a = acc0 + 4*e_
            for r in (a, a+2): k.e(f"v_add_f32_dpp v{r}, v{r}, v{r} {perm} row_mask:0xf bank_mask:0xf")
    for e_ in range(ne):
        a = acc0 + 4*e_
        k.e(f"v_mov_b32 v{a+1}, v{a+2}")
        k.e(f"ds_write_b64 v50, v[{a}:{a+1}] offset:{64*e_}")

def loader(k):
    J = S_J
    k.e("s_setprio 3")
    k.e(f"""
    s_lshl_b32 s25, s{S_RB64}, 6
    s_sub_u32 s25, s25, 16
    s_lshl_b32 s26, s{S_CB}, 7
    v_lshrrev_b32 v3, 3, v1
    v_and_b32 v4, 7, v1
    s_mul_i32 s24, s{J}, 20
    v_add_u32 v5, s24, v3
    s_lshl_b32 s30, s24, 7
    s_cmp_eq_u32 s{J}, 0
    s_cselect_b32 s31, 0xffffff00, -1
    """)
    for e_ in range(3):
        if e_: k.e("v_add_u32 v5, 8, v5")
        k.e(f"""
        v_bfe_u32 v6, v5, 1, 3
        v_xor_b32 v6, v6, v4
        v_add_u32 v7, s25, v5
        v_max_i32 v7, 0, v7
        v_lshlrev_b32 v7, 10, v7
        v_lshl_add_u32 v{10+e_}, v6, 4, v7
        """)
    srd(k, 4, S_X, 2<<20); srd(k, 8, S_WQKV, 512*3072)
    def x1(base, soff):
        return [lambda: (k.e(f"s_mov_b32 m0, {base}"), k.e("s_mov_b32 exec_lo, s31"), k.e(f"buffer_load_dwordx4 v10, s[4:7], {soff} offen lds"), k.e("s_mov_b32 exec_lo, -1")),
                lambda: dma(k, 11, 4, soff, f"s_add_u32 m0, {base}, 1024"),
                lambda: (k.e(f"s_add_u32 m0, {base}, 2048"), k.e("s_mov_b32 exec_hi, 0"), k.e(f"buffer_load_dwordx4 v12, s[4:7], {soff} offen lds"), k.e("s_mov_b32 exec_hi, -1"))]
    def w1(base, soff):
        return [(lambda e_=e_: dma(k, 13+e_, 8, soff, f"s_add_u32 m0, {base}, {1024*e_}")) for e_ in range(6)]
    wmath = [f"s_mul_i32 s24, s{J}, 384", "v_add_u32 v5, s24, v1", f"s_mul_i32 s32, s{J}, 6144", f"s_add_u32 s32, s32, {P1_WOFF}"]
    for e_ in range(3):
        if e_: wmath.append("v_add_u32 v5, 64, v5")
        wmath += f"""v_mul_u32_u24 v6, 2731, v5
        v_lshrrev_b32 v6, 16, v6
        v_mul_u32_u24 v7, 24, v6
        v_sub_u32 v7, v5, v7
        v_lshrrev_b32 v8, 1, v7
        v_and_b32 v7, 1, v7
        v_bfe_u32 v9, v6, 1, 1
        v_lshrrev_b32 v2, 2, v6
        v_and_b32 v2, 2, v2
        v_or_b32 v9, v9, v2
        v_xor_b32 v9, v8, v9
        v_and_b32 v9, 3, v9
        v_lshrrev_b32 v8, 2, v8
        v_mul_u32_u24 v6, 3072, v6
        v_lshl_add_u32 v6, v8, 10, v6
        v_lshl_add_u32 v6, v9, 5, v6
        v_lshl_add_u32 v6, v7, 4, v6
        v_add_u32 v{13+e_}, s26, v6
        v_xor_b32 v6, 64, v{13+e_}
        v_add_u32 v{16+e_}, 24576, v6""".split("\n")
    g = []
    for st in range(3):
        g.append(lambda st=st: (k.e(f"s_add_u32 s46, s30, {st*P1_SLOT}"), k.e(f"s_movk_i32 s36, {128*st}")))
        g += x1("s46", "s36")
    merge(k, g, wmath)
    misc = f"""v_lshrrev_b32 v3, 3, v1
    v_and_b32 v4, 7, v1
    s_lshl_b32 s24, s{J}, 5
    v_add_u32 v5, s24, v3
    v_bfe_u32 v6, v1, 4, 1
    v_lshlrev_b32 v6, 2, v6
    v_xor_b32 v6, v6, v4
    v_lshlrev_b32 v7, 10, v5
    v_lshl_add_u32 v7, v6, 4, v7
    v_add_u32 v20, s26, v7
    v_add_u32 v21, 0x2000, v20
    v_add_u32 v22, 0x4000, v20
    v_add_u32 v23, 0x6000, v20
    s_lshl_b32 s40, s{J}, 12
    v_lshlrev_b32 v51, 4, v1
    s_mov_b32 s12, s{S_WO}
    s_mov_b32 s13, s{S_WO+1}
    s_mov_b32 s14, {512*1024}
    s_mov_b32 s15, 0x00020000""".split("\n")
    misc += [f"v_mov_b32 v{i}, 0" for i in range(80, 92)]
    g = []
    for st in range(3):
        g.append(lambda st=st: (k.e(f"s_add_u32 s47, s32, {st*P1_SLOT}"), k.e(f"s_mov_b32 s37, {64*3072*st}")))
        g += w1("s47", "s37")
    merge(k, g, misc)
    def gW(srdn, soff, base):
        return [(lambda e_=e_: dma(k, 20+e_, srdn, soff, f"s_add_u32 m0, {base}, {1024*e_}")) for e_ in range(4)]
    def gX(soff, base):
        return [(lambda e_=e_: dma(k, 24+e_, 4, soff, f"s_add_u32 m0, {base}, {1024*e_}", SC1)) for e_ in range(4)]
    def run(lst):
        for f in lst: f()
    k.e(f"""
    s_movk_i32 s36, 384
    s_mov_b32 s37, {64*3072*3}
    s_mov_b32 s33, {3*P1_SLOT}
    s_mov_b32 s38, 0
    s_mov_b32 s45, s30
    s_waitcnt vmcnt(12)
    """)
    adv1 = f"""
    s_add_u32 s45, s45, {P1_SLOT}
    s_sub_u32 s46, s45, {P1_NS*P1_SLOT}
    s_cmp_ge_u32 s45, {P1_NS*P1_SLOT}
    s_cselect_b32 s45, s46, s45
    """
    L = k.lab("l1"); L15 = k.lab("l15")
    k.e(".p2align 6")
    k.e(f"""
    {L}:
    s_waitcnt vmcnt(15)
    s_barrier
    """)
    k.e("s_add_u32 s46, s33, s30"); k.e("s_add_u32 s47, s33, s32")
    run(x1("s46","s36") + w1("s47","s37"))
    k.e(f"""
    s_add_u32 s36, s36, 128
    s_add_u32 s37, s37, {64*3072}
    s_add_u32 s33, s33, {P1_SLOT}
    s_cmp_ge_u32 s33, {P1_NS*P1_SLOT}
    s_cselect_b32 s33, 0, s33
    """)
    k.e(f"""
    s_add_u32 s38, s38, 1
    s_cmp_lt_u32 s38, 5
    s_cbranch_scc1 {L}
    """)
    k.e("s_waitcnt vmcnt(18)"); k.e("s_barrier")
    LQ_ = k.lab("lgetn"); LXS = k.lab("lxs")
    srd(k, 8, S_WS, 32768, add=WS_XS)
    k.e(f"""
    v_mov_b32 v2, 0
    s_mov_b32 s59, 0
    s_mul_i32 s24, s{J}, 20
    v_min_u32 v6, 19, v1
    v_add_u32 v6, s24, v6
    v_add_u32 v7, s25, v6
    v_max_i32 v7, 0, v7
    v_lshlrev_b32 v7, 4, v7
    v_lshlrev_b32 v6, 3, v6
    v_add_u32 v6, {P1_SC}, v6
    v_mov_b32 v44, v6
    v_mov_b32 v45, v7
    v_mov_b32 v2, {P1_SC+712}
    ds_read_b32 v3, v2
    buffer_load_dwordx4 v[64:67], v45, s[8:11], 0 offen sc1
    s_waitcnt lgkmcnt(0)
    v_readfirstlane_b32 s{S_NONCE}, v3
    """)
    k.e(f"""
    s_cmp_ge_u32 s{J}, 2
    s_cselect_b32 s16, s{S_WU}, s{S_WG}
    s_cselect_b32 s17, s{S_WU+1}, s{S_WG+1}
    s_mov_b32 s18, {512*3584}
    s_mov_b32 s19, 0x00020000
    s_lshr_b32 s24, s2, 3
    s_mul_i32 s24, s24, 6
    s_and_b32 s29, s{J}, 1
    s_mul_i32 s29, s29, 3
    s_add_u32 s24, s24, s29
    s_mul_i32 s24, s24, 3584
    s_bfe_u32 s29, s2, 0x10002
    s_mul_i32 s29, s29, 1792
    s_add_u32 s28, s24, s29
    v_add_u32 v8, 1024, v51
    v_mov_b32 v9, 0x80000000
    v_cmp_gt_u32 vcc, 48, v1
    v_cndmask_b32 v46, v9, v8, vcc
    """)
    for st2 in range(2):
        k.e(f"s_waitcnt vmcnt({10-st2})")
        if st2 == 1:
            k.e(f"""
            s_waitcnt vmcnt(8)
            {LQ_}:
            s_add_u32 s59, s59, 1
            s_cmp_ge_u32 s59, 400000
            s_cbranch_scc1 {LXS}
            v_cmp_ne_u32 vcc, s{S_NONCE}, v66
            s_cmp_eq_u64 vcc, 0
            s_cbranch_scc1 {LXS}
            buffer_load_dwordx4 v[64:67], v45, s[8:11], 0 offen sc1
            s_waitcnt vmcnt(0)
            s_branch {LQ_}
            {LXS}:
            """)
            ln_stats(k, 64, 65, 52, 53, 54)
            k.e("v_mul_f32 v52, v52, v53"); k.e("v_sub_f32 v52, 0, v52")
            k.e("ds_write_b64 v44, v[52:53]")
            k.e("s_waitcnt lgkmcnt(0)")
        k.e("s_barrier")
        k.e(f"s_mov_b32 s41, {st2*0x40000}"); k.e(f"s_add_u32 s46, s40, {P2_W+st2*32768}")
        k.e(f"s_mov_b32 s42, {st2*0x40000+0x20000}"); k.e(f"s_add_u32 s47, s40, {P2_W+st2*32768+16384}")
        run(gW(12,"s41","s46") + gW(12,"s42","s47"))
    k.e("s_barrier")
    k.e("s_setprio 0")
    if FINE == 8: stamp(k)
    for r in range(3):
        k.e(f"buffer_load_dwordx4 v[{128+8*r}:{131+8*r}], v51, s[16:19], s28 offen")
        k.e(f"buffer_load_dwordx4 v[{132+8*r}:{135+8*r}], v46, s[16:19], s28 offen")
        k.e("s_add_u32 s28, s28, 3584")
    def gx_setup(xstride):
        k.e(f"""
        v_lshrrev_b32 v3, 4, v1
        v_and_b32 v4, 15, v1
        s_lshl_b32 s24, s{J}, 4
        v_add_u32 v5, s24, v3
        s_lshl_b32 s25, s{S_RB64}, 6
        s_movk_i32 s42, {xstride}
        """)
        for e_ in range(4):
            if e_: k.e("v_add_u32 v5, 4, v5")
            k.e(f"""
            v_and_b32 v6, 15, v5
            v_xor_b32 v6, v6, v4
            v_add_u32 v7, s25, v5
            v_mul_lo_u32 v7, v7, s42
            v_lshl_add_u32 v{24+e_}, v6, 4, v7
            """)
    gx_setup(1024)
    srd(k, 4, S_WS, 2<<20, add=WS_O)
    k.e(f"""
    s_and_b32 s53, s2, 1
    s_lshr_b32 s52, s2, 1
    s_and_b32 s52, s52, 15
    s_lshr_b32 s54, s2, 5
    s_cmp_eq_u32 s53, 1
    s_cselect_b32 s16, s{S_WU}, s{S_WG}
    s_cselect_b32 s17, s{S_WU+1}, s{S_WG+1}
    v_mul_u32_u24 v6, 4682, v1
    v_lshrrev_b32 v6, 16, v6
    v_mul_u32_u24 v7, 14, v6
    v_sub_u32 v7, v1, v7
    v_mul_u32_u24 v8, 3584, v6
    v_lshl_add_u32 v8, v7, 4, v8
    s_mul_i32 s24, s52, 224
    s_lshl_b32 s29, s54, 2
    s_add_u32 s29, s29, s{J}
    s_mul_i32 s29, s29, {16*3584}
    s_add_u32 s24, s24, s29
    v_add_u32 v8, s24, v8
    v_mov_b32 v9, 0x80000000
    v_cmp_gt_u32 vcc, 56, v1
    v_cndmask_b32 v48, v9, v8, vcc
    s_mov_b32 s29, 0
    """)
    for e_ in range(4):
        k.e(f"buffer_load_dwordx4 v[{96+4*e_}:{99+4*e_}], v48, s[16:19], s29 offen"); k.e(f"s_add_u32 s29, s29, {4*3584}")
    for i in range(8): k.e(f"v_mov_b32 v{112+i}, 0")
    for e_ in range(4):
        k.e(f"s_waitcnt vmcnt({3-e_})")
        for d in range(4):
            t0 = 52 + 2*(d&1)
            k.e(f"v_lshlrev_b32 v{t0}, 16, v{96+4*e_+d}")
            k.e(f"v_and_b32 v{t0+1}, 0xffff0000, v{96+4*e_+d}")
            k.e(f"v_add_f32 v{112+2*d}, v{112+2*d}, v{t0}")
            k.e(f"v_add_f32 v{113+2*d}, v{113+2*d}, v{t0+1}")
    k.e(f"""
    v_add_u32 v50, 14, v1
    v_lshlrev_b32 v50, 2, v50
    v_add_u32 v49, 28, v1
    v_lshlrev_b32 v49, 2, v49
    """)
    for i in range(8): k.e(f"ds_bpermute_b32 v{64+i}, v50, v{112+i}")
    k.e("s_waitcnt lgkmcnt(0)")
    for i in range(8): k.e(f"v_add_f32 v{112+i}, v{112+i}, v{64+i}")
    for i in range(8): k.e(f"ds_bpermute_b32 v{64+i}, v49, v{112+i}")
    k.e("s_waitcnt lgkmcnt(0)")
    for i in range(8): k.e(f"v_add_f32 v{112+i}, v{112+i}, v{64+i}")
    srd(k, 16, S_WS, 1<<20, add=WS_CS)
    if FINE == 8: stamp(k)
    k.e("s_barrier")
    k.e("s_setprio 3")
    if FINE == 8: stamp(k)
    m3 = [f"s_mul_i32 s26, s{S_FB}, 224", "v_mov_b32 v5, v1"]
    for e_ in range(7):
        if e_: m3.append("v_add_u32 v5, 64, v5")
        m3 += f"""v_mul_u32_u24 v6, 4682, v5
        v_lshrrev_b32 v6, 16, v6
        v_mul_u32_u24 v7, 14, v6
        v_sub_u32 v7, v5, v7
        v_mul_u32_u24 v6, 3584, v6
        v_lshl_add_u32 v6, v7, 4, v6
        v_add_u32 v{30+e_}, s26, v6""".split("\n")
    m3 += f"""s_cmp_ge_u32 s{J}, 2
    s_cselect_b32 s8, s{S_WU}, s{S_WG}
    s_cselect_b32 s9, s{S_WU+1}, s{S_WG+1}
    s_mov_b32 s10, {512*3584}
    s_mov_b32 s11, 0x00020000
    s_cselect_b32 s44, {P3_UOFF}, 0
    s_and_b32 s24, s{J}, 1
    s_mul_i32 s45, s24, 7168
    s_add_u32 s44, s44, s45
    s_add_u32 s44, s44, {P3_W}
    s_mul_i32 s41, s24, {32*3584}
    v_lshrrev_b32 v3, 3, v1
    v_and_b32 v4, 7, v1
    s_lshl_b32 s24, s{J}, 5
    v_add_u32 v5, s24, v3
    s_lshl_b32 s25, s{S_RB128}, 7""".split("\n")
    for e_ in range(4):
        if e_: m3.append("v_add_u32 v5, 8, v5")
        m3 += f"""v_bfe_u32 v6, v5, 1, 3
        v_xor_b32 v6, v6, v4
        v_add_u32 v7, s25, v5
        v_lshlrev_b32 v7, 10, v7
        v_lshl_add_u32 v{40+e_}, v6, 4, v7""".split("\n")
    m3 += [f"v_mov_b32 v{i}, 0" for i in range(80, 96)]
    g = []
    for st in range(4):
        g.append(lambda st=st: (k.e(f"s_movk_i32 s43, {st*256}"), k.e(f"s_add_u32 s46, s40, {P2_X+st*16384}")))
        g += gX("s43", "s46")
    merge(k, g, m3)
    k.e(f"""
    v_min_u32 v50, 15, v1
    v_lshlrev_b32 v50, 5, v50
    s_lshl_b32 s24, s{J}, 9
    s_add_u32 s24, s24, 1024
    v_add_u32 v50, s24, v50
    v_cmp_gt_u32 vcc, 14, v1
    s_and_saveexec_b64 s[60:61], vcc
    ds_write_b128 v50, v[112:115]
    ds_write_b128 v50, v[116:119] offset:16
    s_mov_b64 exec, s[60:61]
    s_waitcnt vmcnt(12) lgkmcnt(0)
    s_barrier
    """)
    LJ0 = k.lab("csj0")
    k.e(f"""
    s_cmp_lg_u32 s{J}, 0
    s_cbranch_scc1 {LJ0}
    v_min_u32 v50, 31, v1
    v_lshlrev_b32 v50, 4, v50
    ds_read_b128 v[96:99], v50 offset:1024
    ds_read_b128 v[100:103], v50 offset:1536
    ds_read_b128 v[104:107], v50 offset:2048
    ds_read_b128 v[108:111], v50 offset:2560
    s_lshl_b32 s48, s52, 4
    s_lshl_b32 s49, s53, 3
    s_add_u32 s49, s49, s54
    s_add_u32 s48, s48, s49
    s_lshl_b32 s48, s48, 9
    v_add_u32 v8, s48, v51
    v_mov_b32 v9, 0x80000000
    v_cmp_gt_u32 vcc, 28, v1
    v_cndmask_b32 v8, v9, v8, vcc
    s_waitcnt lgkmcnt(0)
    """)
    for w in range(1,4):
        for i in range(4): k.e(f"v_add_f32 v{96+i}, v{96+i}, v{96+4*w+i}")
    k.e("buffer_store_dwordx4 v[96:99], v8, s[16:19], 0 offen sc1")
    k.e(f"{LJ0}:")
    for st in range(1,4):
        k.e(f"s_waitcnt vmcnt({12-4*st})"); k.e("s_barrier")
    LJ1 = k.lab("csj1")
    k.e(f"""
    s_cmp_lg_u32 s{J}, 0
    s_cbranch_scc1 {LJ1}
    s_lshl_b32 s47, s52, 7
    s_add_u32 s47, s47, 24576
    s_lshl_b32 s49, s49, 2
    s_add_u32 s47, s47, s49
    s_lshl_b32 s47, s47, 5
    v_mov_b32 v2, s47
    v_mov_b32 v3, s{S_NONCE}
    buffer_store_dword v3, v2, s[64:67], 0 offen sc1
    {LJ1}:
    """)
    def p3W(sbase):
        return [(lambda e_=e_: dma(k, 30+e_, 8, "s41", f"s_add_u32 m0, {sbase}, {1024*e_}")) for e_ in range(7)] + [lambda: k.e(f"s_add_u32 s41, s41, {64*3584}")]
    def p3X(sbase):
        return [(lambda e_=e_: dma(k, 40+e_, 4, "s43", f"s_add_u32 m0, {sbase}, {1024*e_}", SC1)) for e_ in range(4)] + [lambda: k.e("s_add_u32 s43, s43, 128")]
    k.e("s_barrier")
    if FINE == 8: stamp(k)
    LWC = k.lab("waitc2")
    k.e(f"""
    s_setprio 0
    v_mov_b32 v2, 40960
    {LWC}:
    ds_read_b32 v3, v2
    s_waitcnt lgkmcnt(0)
    v_readfirstlane_b32 s59, v3
    s_cmp_lt_u32 s59, {os.environ.get("C2W","8")}
    s_cbranch_scc1 {LWC}
    """)
    for st in range(2):
        k.e(f"s_add_u32 s46, s44, {st*P3_WS}"); run(p3W("s46"))
    srd(k, 4, S_WS, 2<<20, add=WS_H)
    if FINE == 8: stamp(k)
    k.e("s_barrier")
    k.e("s_setprio 3")
    k.e("s_mov_b32 s43, 0")
    k.e(f"s_add_u32 s45, s40, {P3_X}")
    for st in range(3):
        k.e(f"s_add_u32 s46, s45, {st*P3_XS}"); run(p3X("s46"))
    k.e(f"s_add_u32 s46, s44, {2*P3_WS}"); run(p3W("s46"))
    adv3 = f"""
    s_add_u32 s48, s48, {P3_XS}
    s_sub_u32 s46, s48, {3*P3_XS}
    s_add_u32 s47, s45, {3*P3_XS}
    s_cmp_ge_u32 s48, s47
    s_cselect_b32 s48, s46, s48
    """
    k.e("s_mov_b32 s48, s45")
    k.e(f"""
    s_mov_b32 s12, s{S_WD}
    s_mov_b32 s13, s{S_WD+1}
    s_mov_b32 s14, {1792*1024}
    s_mov_b32 s15, 0x00020000
    v_lshrrev_b32 v6, 5, v1
    v_and_b32 v7, 31, v1
    v_lshlrev_b32 v7, 4, v7
    v_lshl_add_u32 v47, v6, 10, v7
    s_lshr_b32 s24, s2, 3
    s_mul_i32 s24, s24, 56
    s_mul_i32 s29, s{J}, 14
    s_add_u32 s24, s24, s29
    s_lshl_b32 s24, s24, 10
    s_bfe_u32 s29, s2, 0x10002
    s_lshl_b32 s29, s29, 9
    s_add_u32 s50, s24, s29
    """)
    k.e("s_waitcnt vmcnt(15)"); k.e("s_barrier")
    srd(k, 52, S_WS, 131072, add=WS_HS)
    k.e(f"""
    s_lshl_b32 s24, s{S_RB128}, 7
    s_lshl_b32 s29, s{J}, 5
    s_add_u32 s24, s24, s29
    s_lshl_b32 s24, s24, 6
    v_add_u32 v6, s24, v51
    buffer_load_dwordx4 v[64:67], v6, s[52:55], 0 offen sc1
    buffer_load_dwordx4 v[68:71], v6, s[52:55], 0 offen offset:1024 sc1
    """)
    k.e(f"""
    s_lshl_b32 s46, s{S_FB}, 4
    s_and_b32 s49, s{J}, 1
    s_lshl_b32 s49, s49, 3
    s_add_u32 s46, s46, s49
    s_lshl_b32 s46, s46, 9
    v_lshlrev_b32 v8, 4, v1
    v_add_u32 v8, s46, v8
    v_mov_b32 v9, 0x80000000
    v_cmp_gt_u32 vcc, 28, v1
    v_cndmask_b32 v8, v9, v8, vcc
    """)
    for kp in range(8): k.e(f"buffer_load_dwordx4 v[{96+4*kp}:{99+4*kp}], v8, s[16:19], 0 offen offset:{512*kp} sc1")
    for _ in range(2):
        k.e("buffer_load_dwordx4 v[160:163], v47, s[12:15], s50 offen"); k.e("s_add_u32 s50, s50, 2048")
    k.e("s_mov_b32 s38, 1"); k.e("s_mov_b32 s39, 0")
    L = k.lab("l3")
    k.e(".p2align 6")
    k.e(f"""
    {L}:
    s_waitcnt vmcnt(12)
    s_barrier
    """)
    k.e(f"""
    s_mul_i32 s46, s39, {P3_XS}
    s_add_u32 s46, s46, s45
    s_mul_i32 s47, s39, {P3_WS}
    s_add_u32 s47, s47, s44
    """)
    merge(k, p3X("s46") + p3W("s47") + [lambda: (k.e("buffer_load_dwordx4 v[160:163], v47, s[12:15], s50 offen"), k.e("s_add_u32 s50, s50, 2048"))], [])
    k.e(f"""
    s_add_u32 s39, s39, 1
    s_cmp_ge_u32 s39, 3
    s_cselect_b32 s39, 0, s39
    """)
    k.e(f"""
    s_add_u32 s38, s38, 1
    s_cmp_lt_u32 s38, 6
    s_cbranch_scc1 {L}
    s_waitcnt vmcnt(12)
    s_barrier
    """)
    for b0 in (64, 68):
        k.e(f"v_add_f32 v{b0}, v{b0}, v{b0+2}"); k.e(f"v_add_f32 v{b0+1}, v{b0+1}, v{b0+3}")
    for perm in ("quad_perm:[1,0,3,2]", "quad_perm:[2,3,0,1]"):
        for r in (64,65,68,69): k.e(f"v_add_f32_dpp v{r}, v{r}, v{r} {perm} row_mask:0xf bank_mask:0xf")
    k.e(f"""
    v_lshrrev_b32 v6, 2, v1
    s_lshl_b32 s24, s{J}, 5
    v_add_u32 v6, s24, v6
    v_lshlrev_b32 v6, 3, v6
    v_add_u32 v6, {P3_ST}, v6
    """)
    for (b0, off) in ((64,0),(68,128)):
        ln_stats(k, b0, b0+1, 52, 53, 54)
        k.e(f"ds_write_b64 v6, v[52:53] offset:{off}")
    for kp in range(1,8):
        for i in range(4): k.e(f"v_add_f32 v{96+i}, v{96+i}, v{96+4*kp+i}")
    k.e(f"""
    v_min_u32 v8, 27, v1
    v_lshlrev_b32 v8, 3, v8
    s_and_b32 s46, s{J}, 1
    s_mul_i32 s46, s46, {P3_UOFF}
    s_add_u32 s46, s46, 40960
    v_add_u32 v8, s46, v8
    v_cmp_gt_u32 vcc, 28, v1
    s_and_saveexec_b64 s[60:61], vcc
    """)
    for part in range(3):
        k.e("v_cvt_pk_bf16_f32 v100, v96, v97"); k.e("v_cvt_pk_bf16_f32 v101, v98, v99")
        k.e(f"ds_write_b64 v8, v[100:101] offset:{224*part}")
        if part < 2:
            k.e("""
            v_lshlrev_b32 v102, 16, v100
            v_and_b32 v103, 0xffff0000, v100
            v_lshlrev_b32 v104, 16, v101
            v_and_b32 v105, 0xffff0000, v101
            v_sub_f32 v96, v96, v102
            v_sub_f32 v97, v97, v103
            v_sub_f32 v98, v98, v104
            v_sub_f32 v99, v99, v105
            """)
    k.e("s_mov_b64 exec, s[60:61]")
    k.e(f"""
    s_and_b32 s24, s{J}, 1
    s_mul_i32 s24, s24, 448
    v_add_u32 v5, s24, v1
    s_and_b32 s25, s{S_RB64}, 1
    s_lshl_b32 s25, s25, 11
    s_lshr_b32 s29, s{S_RB64}, 1
    s_mul_i32 s29, s29, {16*28672}
    s_add_u32 s25, s25, s29
    s_lshl_b32 s26, s{S_CB}, 7
    """)
    LWS = k.lab("p4ws"); LWD = k.lab("p4wd")
    k.e(f"s_cmp_ge_u32 s{J}, 2"); k.e(f"s_cbranch_scc1 {LWS}")
    for e_ in range(7):
        if e_: k.e("v_add_u32 v5, 64, v5")
        k.e(f"""
        v_lshrrev_b32 v6, 7, v5
        v_bfe_u32 v7, v5, 1, 6
        v_bfe_u32 v8, v7, 3, 1
        v_and_b32 v9, 1, v5
        v_xor_b32 v8, v8, v9
        v_lshlrev_b32 v6, 12, v6
        v_lshl_add_u32 v6, v7, 5, v6
        v_lshl_add_u32 v6, v8, 4, v6
        v_add_u32 v{24+e_}, s25, v6
        """)
    srd(k, 4, S_WS, 7<<20, add=WS_HH)
    k.e(f"""
    s_mov_b32 s42, 28672
    s_mul_i32 s44, s{J}, 7168
    s_add_u32 s44, s44, {P4_X}
    s_branch {LWD}
    {LWS}:
    v_lshrrev_b32 v6, 3, v5
    v_and_b32 v7, 7, v5
    v_bfe_u32 v8, v6, 1, 1
    v_lshlrev_b32 v8, 2, v8
    v_xor_b32 v7, v7, v8
    v_lshlrev_b32 v6, 10, v6
    v_lshl_add_u32 v6, v7, 4, v6
    v_add_u32 v24, s26, v6
    """)
    for e_ in range(1,7): k.e(f"v_add_u32 v{24+e_}, {8192*e_}, v24")
    srd(k, 4, S_WD, 1792*1024)
    k.e(f"""
    s_mov_b32 s42, {112*1024}
    s_and_b32 s44, s{J}, 1
    s_mul_i32 s44, s44, 7168
    s_add_u32 s44, s44, {P4_W}
    {LWD}:
    s_mov_b32 s43, 0
    """)
    def p4(sbase):
        for e_ in range(7): dma(k, 24+e_, 4, "s43", f"s_add_u32 m0, {sbase}, {1024*e_}", SC1)
        k.e("s_add_u32 s43, s43, s42")
    def prefill4():
        Lf = k.lab("p4f")
        k.e("s_mov_b32 s46, s44"); k.e("s_mov_b32 s38, 0")
        k.e(f"{Lf}:")
        p4("s46")
        k.e(f"""
        s_add_u32 s46, s46, {P4_SL}
        s_add_u32 s38, s38, 1
        s_cmp_lt_u32 s38, {P4_NS}
        s_cbranch_scc1 {Lf}
        """)
    k.e("s_waitcnt vmcnt(1) lgkmcnt(0)"); k.e("s_barrier")
    k.e("s_barrier")
    k.e("s_setprio 0")
    LX = k.lab("p4x"); LJ = k.lab("p4j")
    k.e(f"s_cmp_lt_u32 s{J}, 2"); k.e(f"s_cbranch_scc1 {LX}")
    prefill4()
    k.e("s_barrier"); k.e("s_setprio 3")
    k.e(f"s_branch {LJ}")
    k.e(f"{LX}:")
    k.e("s_barrier"); k.e("s_setprio 3")
    prefill4()
    k.e(f"{LJ}:")
    k.e("s_waitcnt vmcnt(28)"); k.e("s_barrier")
    k.e(f"""
    s_mov_b32 s38, 1
    s_mov_b32 s46, s44
    s_add_u32 s48, s44, {P4_NS*P4_SL}
    """)
    L = k.lab("l4")
    k.e(".p2align 6")
    k.e(f"""
    {L}:
    s_waitcnt vmcnt(21)
    s_barrier
    """)
    p4("s46")
    k.e(f"""
    s_add_u32 s46, s46, {P4_SL}
    s_cmp_ge_u32 s46, s48
    s_cselect_b32 s46, s44, s46
    s_add_u32 s38, s38, 1
    s_cmp_lt_u32 s38, 12
    s_cbranch_scc1 {L}
    s_waitcnt vmcnt(21)
    s_barrier
    s_waitcnt vmcnt(14)
    s_barrier
    s_waitcnt vmcnt(7)
    s_barrier
    s_waitcnt vmcnt(0)
    s_barrier
    s_barrier
    """)
    stamp(k)


P1_CSP = P1_SC2 + 4608
def cs_job(k):
    k.e(f"""
    s_and_b32 s73, s2, 1
    s_lshr_b32 s72, s2, 1
    s_and_b32 s72, s72, 15
    s_lshr_b32 s63, s2, 5
    s_cmp_eq_u32 s73, 1
    s_cselect_b32 s8, s{S_WU}, s{S_WG}
    s_cselect_b32 s9, s{S_WU+1}, s{S_WG+1}
    s_mov_b32 s10, {512*3584}
    s_mov_b32 s11, 0x00020000
    v_mul_u32_u24 v6, 4682, v1
    v_lshrrev_b32 v6, 16, v6
    v_mul_u32_u24 v7, 14, v6
    v_sub_u32 v7, v1, v7
    v_mul_u32_u24 v8, 3584, v6
    v_lshl_add_u32 v8, v7, 4, v8
    s_mul_i32 s24, s72, 224
    s_lshl_b32 s29, s63, 3
    s_add_u32 s29, s29, s{S_W}
    s_mul_i32 s29, s29, {8*3584}
    s_add_u32 s24, s24, s29
    v_add_u32 v8, s24, v8
    v_mov_b32 v9, 0x80000000
    v_cmp_gt_u32 vcc, 56, v1
    v_cndmask_b32 v8, v9, v8, vcc
    s_movk_i32 s29, {4*3584}
    buffer_load_dwordx4 v[148:151], v8, s[8:11], 0 offen
    buffer_load_dwordx4 v[152:155], v8, s[8:11], s29 offen
    """)
def cs_job2(k):
    for i in range(8): k.e(f"v_mov_b32 v{40+i}, 0")
    for e_ in range(2):
        k.e(f"s_waitcnt vmcnt({1-e_})")
        for d in range(4):
            t0 = 52 + 2*(d&1)
            k.e(f"v_lshlrev_b32 v{t0}, 16, v{148+4*e_+d}")
            k.e(f"v_and_b32 v{t0+1}, 0xffff0000, v{148+4*e_+d}")
            k.e(f"v_add_f32 v{40+2*d}, v{40+2*d}, v{t0}")
            k.e(f"v_add_f32 v{41+2*d}, v{41+2*d}, v{t0+1}")
    k.e("v_add_u32 v50, 14, v1"); k.e("v_lshlrev_b32 v50, 2, v50")
    k.e("v_add_u32 v49, 28, v1"); k.e("v_lshlrev_b32 v49, 2, v49")
    for i in range(8): k.e(f"ds_bpermute_b32 v{148+i}, v50, v{40+i}")
    k.e("s_waitcnt lgkmcnt(0)")
    for i in range(8): k.e(f"v_add_f32 v{40+i}, v{40+i}, v{148+i}")
    for i in range(8): k.e(f"ds_bpermute_b32 v{148+i}, v49, v{40+i}")
    k.e("s_waitcnt lgkmcnt(0)")
    for i in range(8): k.e(f"v_add_f32 v{40+i}, v{40+i}, v{148+i}")
    k.e(f"""
    v_min_u32 v50, 15, v1
    v_lshlrev_b32 v50, 5, v50
    s_lshl_b32 s24, s{S_W}, 9
    s_add_u32 s24, s24, {P1_CSP}
    v_add_u32 v50, s24, v50
    v_cmp_gt_u32 vcc, 14, v1
    s_and_saveexec_b64 s[60:61], vcc
    ds_write_b128 v50, v[40:43]
    ds_write_b128 v50, v[44:47] offset:16
    s_mov_b64 exec, s[60:61]
    """)
def cs_job3(k):
    L = k.lab("csj3")
    k.e(f"""
    s_cmp_lg_u32 s{S_W}, 0
    s_cbranch_scc1 {L}
    v_min_u32 v50, 31, v1
    v_lshlrev_b32 v50, 4, v50
    v_add_u32 v50, {P1_CSP}, v50
    """)
    for w in range(8): k.e(f"ds_read_b128 v[{104+4*w}:{107+4*w}], v50 offset:{512*w}")
    srd(k, 8, S_WS, 1<<20, add=WS_CS)
    k.e(f"""
    s_lshl_b32 s24, s72, 4
    s_lshl_b32 s29, s73, 3
    s_add_u32 s29, s29, s63
    s_add_u32 s24, s24, s29
    s_lshl_b32 s24, s24, 9
    v_lshlrev_b32 v51, 4, v1
    v_add_u32 v51, s24, v51
    v_mov_b32 v9, 0x80000000
    v_cmp_gt_u32 vcc, 28, v1
    v_cndmask_b32 v51, v9, v51, vcc
    s_waitcnt lgkmcnt(0)
    """)
    for w in range(1,8):
        for i in range(4): k.e(f"v_add_f32 v{104+i}, v{104+i}, v{104+4*w+i}")
    k.e("buffer_store_dwordx4 v[104:107], v51, s[8:11], 0 offen sc1")
    k.e(f"{L}:")
def czero(k, addr):
    k.e(f"v_mov_b32 v2, {addr}"); k.e("v_mov_b32 v5, 0"); k.e("ds_write_b32 v2, v5")
def sync(k, cnt, pubs, polls, first=False):
    L = k.lab("sync"); LNP = k.lab("nopub")
    k.e(f"""
    v_mov_b32 v2, {cnt}
    v_mov_b32 v5, 1
    """)
    for code in pubs[:1]:
        k.e(code)
        k.e("s_lshl_b32 s59, s59, 5")
        k.e("v_mov_b32 v6, s59")
    k.e(f"v_mov_b32 v7, s{S_NONCE}")
    (code, nwords) = polls[0]
    k.e(code)
    k.e(f"""
    v_and_b32 v8, {nwords-1}, v1
    v_lshlrev_b32 v8, 7, v8
    s_lshl_b32 s58, s58, 5
    v_add_u32 v8, s58, v8
    """)
    if len(polls) > 1:
        k.e(polls[1][0])
        k.e(f"""
        v_and_b32 v9, 15, v1
        v_lshlrev_b32 v9, 7, v9
        s_lshl_b32 s58, s58, 5
        v_add_u32 v9, s58, v9
        v_cmp_gt_u32 vcc, 32, v1
        v_cndmask_b32 v8, v9, v8, vcc
        """)
    if FINE == 8: stamp(k)
    k.e("s_waitcnt vmcnt(0)")
    if FINE == 8: stamp(k)
    k.e(f"""
    s_mov_b64 s[60:61], exec
    s_mov_b64 exec, 1
    ds_add_rtn_u32 v5, v2, v5
    s_waitcnt lgkmcnt(0)
    v_readfirstlane_b32 s59, v5
    s_cmp_lg_u32 s59, 7
    s_cbranch_scc1 {LNP}
    buffer_store_dword v7, v6, s[64:67], 0 offen sc1
    {LNP}:
    s_mov_b64 exec, s[60:61]
    """)
    k.e(f"s_cmp_lg_u32 s{S_W}, 0"); k.e(f"s_cbranch_scc1 {L}")
    Lp = k.lab("poll"); D = k.lab("polld")
    k.e(f"""
    s_mov_b32 s59, 0
    buffer_load_dword v55, v8, s[64:67], 0 offen sc1
    {Lp}:
    s_sleep {PSLEEP}
    buffer_load_dword v56, v8, s[64:67], 0 offen sc1
    s_waitcnt vmcnt(1)
    v_cmp_ne_u32 vcc, s{S_NONCE}, v55
    s_cmp_eq_u64 vcc, 0
    s_cbranch_scc1 {D}
    s_sleep {PSLEEP}
    buffer_load_dword v55, v8, s[64:67], 0 offen sc1
    s_waitcnt vmcnt(1)
    v_cmp_ne_u32 vcc, s{S_NONCE}, v56
    s_add_u32 s59, s59, 1
    s_cmp_eq_u64 vcc, 0
    s_cbranch_scc1 {D}
    s_cmp_lt_u32 s59, 200000
    s_cbranch_scc1 {Lp}
    {D}:
    """)
    if FINE == 8: stamp(k)
    k.e(f"{L}:")
    k.e("s_barrier")
    if FINE == 8: stamp(k)

def interleave(k, mfmas, fillers):
    n = len(mfmas); m = len(fillers); fi = 0
    for i, mf in enumerate(mfmas):
        mf()
        upto = (m*(i+1))//n
        while fi < upto:
            fillers[fi](); fi += 1

def xstats1(k):
    srd(k, 8, S_X, 2<<20); srd(k, 12, S_WS, 32768, add=WS_XS)
    k.e(f"""
    s_lshl_b32 s62, s2, 3
    s_add_u32 s62, s62, s{S_W}
    s_lshl_b32 s29, s62, 10
    v_lshlrev_b32 v5, 4, v1
    v_mov_b32 v152, 0
    """)
    if not os.environ.get("NOWARM"):
        srd(k, 4, S_WQKV, 512*3072)
        k.e(f"s_lshl_b32 s24, s62, 10")
        k.e("buffer_load_dwordx4 v[160:163], v5, s[4:7], s24 offen")
    k.e("buffer_load_dwordx4 v[148:151], v5, s[8:11], s29 offen")

def xstats2(k):
    LQ_ = k.lab("getn0")
    k.e(f"""
    v_mov_b32 v154, {P1_SC+712}
    ds_read_b32 v153, v154
    v_mov_b32 v156, 0
    v_mov_b32 v157, 0
    s_waitcnt vmcnt(0)
    """)
    for d in range(4):
        k.e(f"""
        v_lshlrev_b32 v154, 16, v{148+d}
        v_and_b32 v155, 0xffff0000, v{148+d}
        v_add_f32 v156, v156, v154
        v_fmac_f32 v157, v154, v154
        v_add_f32 v156, v156, v155
        v_fmac_f32 v157, v155, v155
        """)
    for perm in ("quad_perm:[1,0,3,2]", "quad_perm:[2,3,0,1]", "row_half_mirror", "row_mirror"):
        for r in (156,157): k.e(f"v_add_f32_dpp v{r}, v{r}, v{r} {perm} row_mask:0xf bank_mask:0xf")
    for r in (156,157): red16(k, r, 154); red32(k, r, 154)
    k.e(f"""
    s_waitcnt lgkmcnt(0)
    v_readfirstlane_b32 s{S_NONCE}, v153
    v_mov_b32 v158, s{S_NONCE}
    v_mov_b32 v159, 0
    s_lshl_b32 s62, s62, 4
    v_mov_b32 v152, s62
    s_mov_b64 s[60:61], exec
    s_mov_b64 exec, 1
    buffer_store_dwordx4 v[156:159], v152, s[12:15], 0 offen sc1
    s_mov_b64 exec, s[60:61]
    s_lshl_b32 s62, s62, 6
    v_lshlrev_b32 v152, 4, v1
    """)
    if not os.environ.get("NOWARM2"):
        WL = {"o":(S_WO, 512*1024), "g":(S_WG, 512*3584), "u":(S_WU, 512*3584), "d":(S_WD, 1792*1024)}
        for (ptr, size) in [WL[c] for c in os.environ.get("WARM", "ogud")]:
            srd(k, 4, ptr, size)
            k.e("buffer_load_dwordx4 v[160:163], v152, s[4:7], s62 offen")

def p1(k):
    NS, SLOT, WOFF, nst = P1_NS, P1_SLOT, P1_WOFF, 8
    xstats1(k)
    k.e(f"""
    s_and_b32 s27, s{S_W}, 3
    s_lshr_b32 s28, s{S_W}, 2
    v_and_b32 v3, 15, v1
    v_lshrrev_b32 v4, 4, v1
    v_lshrrev_b32 v5, 1, v3
    v_xor_b32 v5, v5, v4
    v_lshlrev_b32 v5, 4, v5
    v_lshlrev_b32 v6, 7, v3
    v_add_u32 v9, v5, v6
    v_lshrrev_b32 v5, 2, v3
    v_and_b32 v6, 3, v3
    v_lshlrev_b32 v7, 3, v4
    v_add_u32 v7, v5, v7
    v_mul_u32_u24 v7, 384, v7
    v_lshrrev_b32 v5, 1, v5
    v_and_b32 v8, 1, v4
    v_lshlrev_b32 v8, 1, v8
    v_or_b32 v5, v5, v8
    v_xor_b32 v5, s27, v5
    v_lshlrev_b32 v5, 5, v5
    v_add_u32 v7, v7, v5
    v_lshlrev_b32 v6, 3, v6
    v_add_u32 v7, v7, v6
    v_add_u32 v18, {WOFF}, v7
    s_mov_b32 s55, 0x3f803f80
    """)
    k.e(f"""
    s_mul_i32 s50, s28, 3
    s_add_u32 s51, s50, 1
    s_add_u32 s52, s50, 2
    v_mov_b32 v5, {P1_SC2+3072}
    v_lshl_add_u32 v5, v3, 2, v5
    v_mov_b32 v6, 0
    ds_write_b32 v5, v6
    """)
    for t in range(3):
        k.e(f"s_lshl_b32 s24, s{50+t}, 11")
        k.e(f"v_add_u32 v{10+2*t}, s24, v9")
        k.e(f"v_xor_b32 v{11+2*t}, 64, v{10+2*t}")
    for i in range(22, 31): k.e(f"v_mov_b32 v{i}, 0")
    for i in range(36): k.e(f"v_mov_b32 v{64+i}, 0")
    for i in range(124, 148): k.e(f"v_mov_b32 v{i}, 0")
    srd(k, 16, S_WS, 2<<20, add=WS_O)
    k.e(f"""
    s_mov_b32 s49, {(-(NS-1)*SLOT) & 0xffffffff}
    s_mov_b32 s56, {SLOT}
    s_mov_b32 s38, 0
    s_mov_b32 s39, 0
    v_lshrrev_b32 v5, 3, v1
    v_and_b32 v5, 3, v5
    v_mul_u32_u24 v5, {SLOT}, v5
    v_and_b32 v6, 7, v1
    v_lshlrev_b32 v6, 4, v6
    v_add_u32 v5, v5, v6
    v_mov_b32 v32, s55
    v_mov_b32 v33, s55
    v_mov_b32 v34, s55
    v_mov_b32 v35, s55
    ds_write_b128 v5, v[32:35]
    """)
    WB = [100, 124]; XB = [112, 136]
    def body(NT, th):
        q = LQ(k)
        def read_list(jj):
            out = []
            def w(u, h):
                return lambda: q.rd(("W",jj,u), f"ds_read_b64_tr_b16 v[{WB[jj]+4*u+2*h}:{WB[jj]+4*u+2*h+1}], v18 offset:{128*u+(32*jj+4*h)*384}")
            def x(t):
                return lambda: q.rd(("X",jj,t), f"ds_read_b128 v[{XB[jj]+4*t}:{XB[jj]+4*t+3}], v{10+2*t+jj}")
            out += [x(0), w(0,0), w(0,1), w(1,0), w(1,1), w(2,0), w(2,1)]
            for t in range(1, NT): out.append(x(t))
            return out
        def dots(jj):
            out = []
            x = XB[jj]
            for d in range(4):
                t0 = 32 + 2*(d&1)
                out.append(lambda d=d,t0=t0: k.e(f"v_lshlrev_b32 v{t0}, 16, v{x+d}"))
                out.append(lambda d=d,t0=t0: k.e(f"v_and_b32 v{t0+1}, 0xffff0000, v{x+d}"))
                out.append(lambda d=d,t0=t0: k.e(f"v_add_f32 v22, v22, v{t0}"))
                out.append(lambda d=d,t0=t0: k.e(f"v_add_f32 v26, v26, v{t0+1}"))
                out.append(lambda d=d,t0=t0: k.e(f"v_fmac_f32 v23, v{t0}, v{t0}"))
                out.append(lambda d=d,t0=t0: k.e(f"v_fmac_f32 v27, v{t0+1}, v{t0+1}"))
            return out
        def step(jj, nxt, waits):
            mf = []
            for t in range(NT):
                for u in range(3):
                    def f(t=t, u=u):
                        if waits: q.wait([("W",jj,u), ("X",jj,t)])
                        a = 64+12*t+4*u; x = XB[jj]+4*t
                        k.e(f"v_mfma_f32_16x16x32_bf16 v[{a}:{a+3}], v[{WB[jj]+4*u}:{WB[jj]+4*u+3}], v[{x}:{x+3}], v[{a}:{a+3}]")
                    mf.append(f)
            rl = read_list(nxt) if nxt is not None else []
            dl = []
            fill = []
            n = len(mf)
            interleave(k, mf[:3], rl[:4])
            interleave(k, mf[3:], rl[4:] + dl)
        LOOP = k.lab("loop")
        k.e(".p2align 6")
        k.e(f"{LOOP}:")
        k.e(f"s_waitcnt lgkmcnt(0)")
        q.q = []
        if FINE == 1: stamp(k)
        k.e("s_barrier")
        if FINE == 1: stamp(k)
        k.e(f"""
        s_add_u32 s39, s39, 1
        s_cmp_ge_u32 s39, {NS}
        s_cselect_b32 s48, s49, s56
        s_cselect_b32 s39, 0, s39
        s_add_u32 s38, s38, 1
        """)
        step(1, 0, False)
        step(0, 1, True)
        for r in list(range(10, 10+2*NT)) + [18]: k.e(f"v_add_u32 v{r}, s48, v{r}")
        LXS = k.lab("xs2"); LXB = k.lab("xsb"); LXD = k.lab("xsd")
        LXN = k.lab("xsn")
        k.e(f"""
        s_cmp_le_u32 s38, 3
        s_cbranch_scc1 {LXN}
        {LXB}:
        s_cmp_lt_u32 s38, {nst}
        s_cbranch_scc1 {LOOP}
        s_branch {LXD}
        {LXN}:
        s_cmp_eq_u32 s38, 3
        s_cbranch_scc1 {LXS}
        s_cmp_lg_u32 s{S_W}, 0
        s_cbranch_scc1 {LXB}
        s_cmp_eq_u32 s38, 2
        s_cbranch_scc1 {LXN}_2
        buffer_load_dword v153, v152, s[68:71], 0 offen sc1
        s_branch {LXB}
        {LXN}_2:
        s_mov_b32 s59, 0
        {LXN}_3:
        s_waitcnt vmcnt(0)
        v_readfirstlane_b32 s{S_NONCE}, v153
        s_add_u32 s59, s59, 1
        s_cmp_lg_u32 s{S_NONCE}, 0
        s_cbranch_scc1 {LXN}_4
        buffer_load_dword v153, v152, s[68:71], 0 offen sc1
        s_cmp_lt_u32 s59, 400000
        s_cbranch_scc1 {LXN}_3
        {LXN}_4:
        v_mov_b32 v154, {P1_SC+712}
        ds_write_b32 v154, v153
        s_branch {LXB}
        {LXS}:
        """)
        xstats2(k)
        k.e(f"""
        s_branch {LXB}
        {LXD}:
        s_waitcnt lgkmcnt(0)
        """)
        q.q = []
        k.e(f"""
        v_lshlrev_b32 v31, 3, v3
        v_add_u32 v31, {P1_SC}, v31
        v_mul_u32_u24 v40, {RS}, v3
        v_lshl_add_u32 v40, v4, 3, v40
        s_lshl_b32 s57, s27, 5
        v_add_u32 v40, s57, v40
        """)
        for t in range(NT):
            k.e(f"s_lshl_b32 s57, s{50+t}, 7")
            k.e(f"v_add_u32 v33, s57, v31")
            k.e(f"ds_read_b64 v[{34+2*t}:{35+2*t}], v33")
            k.e(f"s_mul_i32 s57, s{50+t}, {16*RS}")
            k.e(f"v_add_u32 v{42+t}, s57, v40")
        step(1, None, False)
        k.e(f"""
        s_lshl_b32 s57, s27, 6
        s_add_u32 s57, s57, {P1_SC2}
        v_lshlrev_b32 v32, 4, v4
        v_add_u32 v32, s57, v32
        s_lshl_b32 s57, s27, 2
        s_add_u32 s57, s57, {P1_SC2+3072}
        v_mov_b32 v30, s57
        """)
        if th == 0:
            for u in range(3):
                for i in range(4): k.e(f"v_mov_b32_dpp v{124+4*u+i}, v{64+4*u+i} row_newbcast:0 row_mask:0xf bank_mask:0xf")
            for u in range(3): k.e(f"ds_write_b128 v32, v[{124+4*u}:{127+4*u}] offset:{256*u}")
            k.e("v_mov_b32 v29, 1"); k.e("ds_write_b32 v30, v29")
            k.e("s_waitcnt lgkmcnt(4)")
        else:
            LW_ = k.lab("csw")
            k.e(f"""
            {LW_}:
            ds_read_b32 v29, v30
            s_waitcnt lgkmcnt(0)
            v_readfirstlane_b32 s57, v29
            s_cmp_eq_u32 s57, 0
            s_cbranch_scc1 {LW_}
            """)
            for u in range(3): k.e(f"ds_read_b128 v[{124+4*u}:{127+4*u}], v32 offset:{256*u}")
            k.e("s_waitcnt lgkmcnt(0)")
        for u in range(3):
            for t in range(NT):
                if u == 0 and t == 0 and th == 0: continue
                a = 64+12*t+4*u
                for i in range(4): k.e(f"v_mul_f32 v{a+i}, v{35+2*t}, v{a+i}")
                for i in range(4): k.e(f"v_fmac_f32 v{a+i}, v{34+2*t}, v{124+4*u+i}")
                k.e(f"v_cvt_pk_bf16_f32 v{a}, v{a}, v{a+1}")
                k.e(f"v_cvt_pk_bf16_f32 v{a+1}, v{a+2}, v{a+3}")
                k.e(f"ds_write_b64 v{42+t}, v[{a}:{a+1}] offset:{128*u}")
    L1 = k.lab("th1"); LA = k.lab("attn")
    k.e("s_cmp_eq_u32 s28, 0"); k.e(f"s_cbranch_scc0 {L1}")
    body(3, 0)
    k.e(f"s_branch {LA}")
    k.e(f"{L1}:")
    body(2, 1)
    k.e(f"{LA}:")
    czero(k, 32256)
    k.e("s_waitcnt lgkmcnt(0)")
    k.e("s_barrier")

def attention(k):
    LG = 96
    if os.environ.get("WARMLATE"):
        for (ptr, size) in ((S_WG, 512*3584), (S_WU, 512*3584), (S_WD, 1792*1024)):
            srd(k, 4, ptr, size)
            k.e("buffer_load_dwordx4 v[160:163], v152, s[4:7], s62 offen")
    k.e(f"""
    v_lshrrev_b32 v2, 3, v0
    v_lshrrev_b32 v3, 1, v0
    v_and_b32 v3, 3, v3
    v_and_b32 v4, 1, v0
    v_add_u32 v5, 16, v2
    v_mul_u32_u24 v5, {RS}, v5
    v_lshlrev_b32 v6, 5, v3
    v_add_u32 v5, v5, v6
    v_mul_u32_u24 v6, {8*RS}, v4
    v_sub_u32 v7, v5, v6
    v_subrev_u32 v7, {6*RS}, v7
    v_lshlrev_b32 v8, 4, v4
    v_add_u32 v9, v7, v8
    v_xor_b32 v10, 1, v4
    v_mul_u32_u24 v10, {8*RS}, v10
    v_sub_u32 v10, v5, v10
    v_subrev_u32 v10, {6*RS}, v10
    v_add_u32 v10, v10, v8
    ds_read_b128 v[16:19], v5
    ds_read_b128 v[20:23], v5 offset:16
    """)
    for i in range(4):
        k.e(f"ds_read_b128 v[{24+8*i}:{27+8*i}], v7 offset:{(6-2*i)*RS+128}")
        k.e(f"ds_read_b128 v[{28+8*i}:{31+8*i}], v7 offset:{(6-2*i)*RS+144}")
    for i in range(4): k.e(f"ds_read_b128 v[{64+4*i}:{67+4*i}], v9 offset:{(6-2*i)*RS+256}")
    k.e("s_waitcnt lgkmcnt(4)")
    for i in range(4): k.e(f"ds_read_b128 v[{80+4*i}:{83+4*i}], v10 offset:{(6-2*i)*RS+256}")
    for i in range(4): k.e(f"v_mov_b32 v{LG+i}, 0")
    for d in range(8):
        for i in range(4): k.e(f"v_dot2_f32_bf16 v{LG+i}, v{16+d}, v{24+8*i+d}, v{LG+i}")
    k.e(f"""
    s_lshl_b32 s24, s{S_RB64}, 6
    v_add_u32 v11, s24, v2
    v_lshlrev_b32 v12, 3, v4
    v_sub_u32 v11, v11, v12
    s_mov_b32 s57, {f2u(-4e9)}
    v_mov_b32 v13, s57
    v_cvt_pk_bf16_f32 v{LG+4}, v{LG}, v{LG+1}
    v_cvt_pk_bf16_f32 v{LG+5}, v{LG+2}, v{LG+3}
    v_lshlrev_b32 v{LG}, 16, v{LG+4}
    v_and_b32 v{LG+1}, 0xffff0000, v{LG+4}
    v_lshlrev_b32 v{LG+2}, 16, v{LG+5}
    v_and_b32 v{LG+3}, 0xffff0000, v{LG+5}
    """)
    for i in range(4):
        k.e(f"v_cmp_gt_i32 vcc, {2*i}, v11")
        k.e(f"v_cndmask_b32 v{LG+i}, v{LG+i}, v13, vcc")
    for i in range(4): k.e(f"v_mov_b32_dpp v{LG+4+i}, v{LG+i} quad_perm:[1,0,3,2] row_mask:0xf bank_mask:0xf")
    c = 0.25*1.4426950408889634
    k.e(f"""
    v_max3_f32 v12, v{LG}, v{LG+1}, v{LG+2}
    v_max3_f32 v12, v12, v{LG+3}, v{LG+4}
    v_max3_f32 v12, v12, v{LG+5}, v{LG+6}
    v_max_f32 v12, v12, v{LG+7}
    s_mov_b32 s57, {f2u(c)}
    v_mul_f32 v12, s57, v12
    """)
    for i in range(8): k.e(f"v_fma_f32 v{LG+i}, v{LG+i}, s57, -v12")
    for i in range(8): k.e(f"v_exp_f32 v{LG+i}, v{LG+i}")
    k.e(f"""
    v_add_f32 v12, v{LG}, v{LG+1}
    v_add_f32 v13, v{LG+2}, v{LG+3}
    v_add_f32 v14, v{LG+4}, v{LG+5}
    v_add_f32 v15, v{LG+6}, v{LG+7}
    v_add_f32 v12, v12, v13
    v_add_f32 v14, v14, v15
    v_add_f32 v12, v12, v14
    v_rcp_f32 v12, v12
    """)
    for i in range(8): k.e(f"v_mul_f32 v{LG+i}, v{LG+i}, v12")
    for i in range(8):
        k.e(f"v_cvt_pk_bf16_f32 v{24+i}, v{LG+i}, 0")
        k.e(f"v_lshlrev_b32 v{32+i}, 16, v{24+i}")
    for i in range(8): k.e(f"v_mov_b32 v{40+i}, 0")
    k.e("s_waitcnt lgkmcnt(0)")
    for i in range(8):
        for d in range(4):
            k.e(f"v_dot2_f32_bf16 v{40+2*d}, v{64+4*i+d}, v{24+i}, v{40+2*d}")
            k.e(f"v_dot2_f32_bf16 v{41+2*d}, v{64+4*i+d}, v{32+i}, v{41+2*d}")
    for d in range(4): k.e(f"v_cvt_pk_bf16_f32 v{48+d}, v{40+2*d}, v{41+2*d}")
    k.e(f"""
    v_add_u32 v11, s24, v2
    v_lshlrev_b32 v11, 10, v11
    v_and_b32 v12, 7, v0
    v_lshlrev_b32 v12, 4, v12
    v_add_u32 v11, v11, v12
    s_lshl_b32 s26, s{S_CB}, 7
    v_add_u32 v11, s26, v11
    buffer_store_dwordx4 v[48:51], v11, s[16:19], 0 offen{SC1}
    """)


def g_common(k):
    k.e(f"""
    s_and_b32 s27, s{S_W}, 1
    s_lshr_b32 s28, s{S_W}, 1
    s_and_b32 s28, s28, 1
    s_lshr_b32 s29, s{S_W}, 2
    v_and_b32 v3, 31, v1
    s_lshl_b32 s24, s27, 5
    v_add_u32 v3, s24, v3
    v_lshrrev_b32 v4, 5, v1
    v_lshrrev_b32 v5, 4, v1
    v_and_b32 v6, 1, v5
    v_lshrrev_b32 v5, 1, v5
    v_and_b32 v7, 15, v1
    v_lshrrev_b32 v8, 2, v7
    v_and_b32 v7, 3, v7
    v_lshl_add_u32 v5, v5, 3, v8
    v_lshlrev_b32 v5, 7, v5
    v_lshrrev_b32 v8, 1, v8
    v_xor_b32 v8, s28, v8
    v_lshl_add_u32 v5, v8, 6, v5
    v_lshl_add_u32 v5, v6, 5, v5
    v_lshl_add_u32 v9, v7, 3, v5
    """)
    for i in range(16): k.e(f"v_mov_b32 v{32+i}, 0")
    for i in range(16): k.e(f"v_mov_b32 v{96+i}, 0")
def g_mfma(k, b): k.e(f"v_mfma_f32_32x32x16_bf16 v[32:47], v[{b+4}:{b+7}], v[{b}:{b+3}], v[32:47]")
def p2_main(k):
    g_common(k)
    k.e(f"""
    v_and_b32 v5, 15, v3
    v_xor_b32 v5, v5, v4
    v_lshlrev_b32 v5, 4, v5
    v_lshl_add_u32 v5, v3, 8, v5
    s_lshl_b32 s24, s29, 7
    v_xor_b32 v5, s24, v5
    v_add_u32 v10, {P2_X}, v5
    v_xor_b32 v11, 32, v10
    v_xor_b32 v12, 64, v10
    v_xor_b32 v13, 0x60, v10
    s_lshl_b32 s24, s29, 13
    s_add_u32 s24, s24, {P2_W}
    v_add_u32 v14, s24, v9
    v_lshrrev_b32 v5, 3, v0
    s_lshl_b32 s25, s{S_RB64}, 6
    v_add_u32 v5, s25, v5
    v_and_b32 v6, 7, v0
    v_lshlrev_b32 v6, 4, v6
    v_lshl_add_u32 v5, v5, 10, v6
    s_lshl_b32 s26, s{S_CB}, 7
    v_add_u32 v57, s26, v5
    """)
    srd(k, 12, S_X, 2<<20)
    k.e(f"buffer_load_dwordx4 v[{VRES}:{VRES+3}], v57, s[12:15], 0 offen")
    g_pre(k, lambda: srd(k, 16, S_WS, 2<<20, add=WS_H), True, 0)
    BUF = [80, 96]
    def reads(st, hf):
        for j2 in range(2):
            j = 2*hf + j2; b = BUF[hf] + 8*j2
            k.e(f"ds_read_b128 v[{b}:{b+3}], v{10+j} offset:{16384*st}")
            k.e(f"ds_read_b64_tr_b16 v[{b+4}:{b+5}], v14 offset:{16384*st+2048*j}")
            k.e(f"ds_read_b64_tr_b16 v[{b+6}:{b+7}], v14 offset:{16384*st+2048*j+512}")
    for st in range(4):
        k.e("s_waitcnt lgkmcnt(0)"); k.e("s_barrier")
        reads(st, 0)
        if st: g_mfma(k, 96); g_mfma(k, 104)
        reads(st, 1)
        k.e("s_waitcnt lgkmcnt(6)")
        g_mfma(k, 80); g_mfma(k, 88)
    k.e("s_waitcnt lgkmcnt(0)")
    g_mfma(k, 96); g_mfma(k, 104)
def p4_main(k):
    g_common(k)
    k.e(f"""
    v_bfe_u32 v5, v3, 3, 1
    v_xor_b32 v5, v5, v4
    v_lshlrev_b32 v5, 4, v5
    v_lshl_add_u32 v5, v3, 5, v5
    s_lshl_b32 s24, s29, 13
    s_add_u32 s24, s24, {P4_X}
    v_add_u32 v10, s24, v5
    s_lshl_b32 s24, s29, 13
    s_add_u32 s24, s24, {P4_W}
    v_add_u32 v14, s24, v9
    s_mov_b32 s49, {(-(P4_NS-1)*P4_SL) & 0xffffffff}
    s_mov_b32 s56, {P4_SL}
    s_mov_b32 s38, 0
    s_mov_b32 s39, 0
    """)
    g_pre(k, lambda: srd(k, 16, S_OUT, 2<<20), False, 22528)
    BUF = [80, 96]
    def body(NK):
        nb = NK - 2
        def reads(hf):
            for j2 in range(2 if hf == 0 else nb):
                j = 2*hf + j2; b = BUF[hf] + 8*j2
                k.e(f"ds_read_b128 v[{b}:{b+3}], v10 offset:{2048*j}")
                k.e(f"ds_read_b64_tr_b16 v[{b+4}:{b+5}], v14 offset:{2048*j}")
                k.e(f"ds_read_b64_tr_b16 v[{b+6}:{b+7}], v14 offset:{2048*j+512}")
        LOOP = k.lab("gloop")
        k.e(".p2align 6")
        k.e(f"""
        {LOOP}:
        s_waitcnt lgkmcnt(0)
        s_barrier
        """)
        reads(0)
        k.e(f"""
        s_add_u32 s39, s39, 1
        s_cmp_ge_u32 s39, {P4_NS}
        s_cselect_b32 s48, s49, s56
        s_cselect_b32 s39, 0, s39
        s_add_u32 s38, s38, 1
        """)
        for j2 in range(nb): g_mfma(k, 96+8*j2)
        reads(1)
        k.e(f"s_waitcnt lgkmcnt({3*nb})")
        g_mfma(k, 80); g_mfma(k, 88)
        k.e(f"""
        v_add_u32 v10, s48, v10
        v_add_u32 v14, s48, v14
        s_cmp_lt_u32 s38, 16
        s_cbranch_scc1 {LOOP}
        s_waitcnt lgkmcnt(0)
        """)
        for j2 in range(nb): g_mfma(k, 96+8*j2)
    L3 = k.lab("p4b"); LE = k.lab("p4e")
    k.e("s_cmp_eq_u32 s29, 0"); k.e(f"s_cbranch_scc0 {L3}")
    body(4)
    k.e(f"s_branch {LE}")
    k.e(f"{L3}:")
    body(3)
    k.e(f"{LE}:")
def g_pre(k, osrd_fn, hstats=False, GB=0):
    osrd_fn()
    k.e(f"""
    v_mul_u32_u24 v5, {GS_RS}, v3
    v_lshl_add_u32 v5, v4, 4, v5
    s_mul_i32 s24, s29, {64*GS_RS}
    s_lshl_b32 s30, s28, 7
    s_add_u32 s24, s24, s30
    s_add_u32 s24, s24, {GB}
    v_add_u32 v16, s24, v5
    v_lshrrev_b32 v6, 3, v0
    v_mul_u32_u24 v5, {GS_RS}, v6
    v_and_b32 v7, 7, v0
    v_lshl_add_u32 v5, v7, 5, v5
    v_add_u32 v17, {GB}, v5
    """)
    if hstats:
        k.e(f"""
        s_lshl_b32 s24, s{S_RB64}, 6
        v_add_u32 v6, s24, v6
        v_lshlrev_b32 v6, 6, v6
        s_lshl_b32 s24, s{S_CB}, 3
        v_add_u32 v6, s24, v6
        v_mov_b32 v5, 0x80000000
        v_cmp_eq_u32 vcc, 0, v7
        v_cndmask_b32 v18, v5, v6, vcc
        """)
def g_epi(k, sc, hstats=False):
    for q in range(4): k.e(f"ds_write_b128 v16, v[{32+4*q}:{35+4*q}] offset:{32*q}")
    if hstats:
        czero(k, 40960)
        srd(k, 12, S_WS, 131072, add=WS_HS)
    k.e("s_waitcnt vmcnt(0)")
    for p in range(4):
        k.e(f"v_lshlrev_b32 v{64+2*p}, 16, v{VRES+p}")
        k.e(f"v_and_b32 v{65+2*p}, 0xffff0000, v{VRES+p}")
    k.e("s_waitcnt lgkmcnt(0)")
    k.e("s_barrier")
    k.e(f"""
    ds_read_b128 v[32:35], v17
    ds_read_b128 v[40:43], v17 offset:{64*GS_RS}
    ds_read_b128 v[36:39], v17 offset:16
    ds_read_b128 v[44:47], v17 offset:{64*GS_RS+16}
    s_waitcnt lgkmcnt(2)
    """)
    for i in range(4): k.e(f"v_add_f32 v{32+i}, v{32+i}, v{40+i}")
    for i in range(4): k.e(f"v_add_f32 v{32+i}, v{32+i}, v{64+i}")
    k.e("s_waitcnt lgkmcnt(0)")
    for i in range(4,8): k.e(f"v_add_f32 v{32+i}, v{32+i}, v{40+i}")
    for i in range(4,8): k.e(f"v_add_f32 v{32+i}, v{32+i}, v{64+i}")
    for p in range(4): k.e(f"v_cvt_pk_bf16_f32 v{VRES+p}, v{32+2*p}, v{33+2*p}")
    k.e(f"buffer_store_dwordx4 v[{VRES}:{VRES+3}], v57, s[16:19], 0 offen{sc}")
    if hstats:
        k.e("""
        v_add_f32 v44, v32, v33
        v_mul_f32 v45, v32, v32
        v_add_f32 v46, v34, v35
        v_mul_f32 v47, v33, v33
        v_add_f32 v44, v44, v36
        v_fmac_f32 v45, v34, v34
        v_add_f32 v46, v46, v37
        v_fmac_f32 v47, v35, v35
        v_add_f32 v44, v44, v38
        v_fmac_f32 v45, v36, v36
        v_add_f32 v46, v46, v39
        v_fmac_f32 v47, v37, v37
        v_add_f32 v44, v44, v46
        v_fmac_f32 v45, v38, v38
        v_fmac_f32 v47, v39, v39
        v_add_f32 v45, v45, v47
        """)
        for perm in ("quad_perm:[1,0,3,2]", "quad_perm:[2,3,0,1]", "row_half_mirror"):
            for r in (44,45): k.e(f"v_add_f32_dpp v{r}, v{r}, v{r} {perm} row_mask:0xf bank_mask:0xf")
        k.e("buffer_store_dwordx2 v[44:45], v18, s[12:15], 0 offen sc1")

def p3_main(k):
    nst = 8
    czero(k, 7168)
    srd(k, 16, S_WS, 7<<20, add=WS_HH)
    k.e(f"""
    s_lshl_b32 s25, s{S_RB128}, 7
    s_and_b32 s27, s{S_W}, 3
    s_lshr_b32 s28, s{S_W}, 2
    v_and_b32 v3, 31, v1
    s_lshl_b32 s29, s27, 5
    v_add_u32 v3, s29, v3
    v_lshrrev_b32 v4, 5, v1
    v_lshrrev_b32 v5, 1, v3
    v_and_b32 v5, 7, v5
    v_xor_b32 v5, v5, v4
    v_lshlrev_b32 v5, 4, v5
    v_lshlrev_b32 v6, 7, v3
    v_add_u32 v5, v6, v5
    v_add_u32 v16, {P3_X}, v5
    v_xor_b32 v17, 32, v16
    v_xor_b32 v18, 64, v16
    v_xor_b32 v19, 0x60, v16
    v_lshrrev_b32 v5, 4, v1
    v_and_b32 v6, 1, v5
    v_lshrrev_b32 v5, 1, v5
    v_and_b32 v7, 15, v1
    v_lshrrev_b32 v8, 2, v7
    v_and_b32 v7, 3, v7
    v_lshlrev_b32 v5, 3, v5
    v_add_u32 v5, v5, v8
    v_mul_u32_u24 v5, 224, v5
    v_mul_u32_u24 v6, {P3_UOFF}, v6
    v_add_u32 v5, v5, v6
    v_lshlrev_b32 v7, 3, v7
    v_add_u32 v5, v5, v7
    v_add_u32 v9, {P3_W}, v5
    v_lshlrev_b32 v5, 5, v3
    v_lshl_add_u32 v5, v4, 4, v5
    s_lshl_b32 s24, s{S_RB128}, 4
    s_add_u32 s24, s24, s{S_FB}
    s_mul_i32 s24, s24, 28672
    v_add_u32 v24, s24, v5
    s_mov_b32 s55, 0x3f803f80
    """)
    k.e("""
    s_cmp_eq_u32 s27, 3
    s_cselect_b32 s60, 0, s27
    s_add_u32 s61, s60, 1
    s_cmp_ge_u32 s61, 3
    s_cselect_b32 s54, 3, 0
    s_sub_u32 s61, s61, s54
    s_add_u32 s62, s60, 2
    s_cmp_ge_u32 s62, 3
    s_cselect_b32 s54, 3, 0
    s_sub_u32 s62, s62, s54
    s_add_u32 s60, s60, 4
    s_add_u32 s61, s61, 4
    s_add_u32 s62, s62, 4
    s_add_u32 s51, s27, 1
    s_and_b32 s51, s51, 3
    s_add_u32 s52, s27, 2
    s_and_b32 s52, s52, 3
    s_add_u32 s53, s27, 3
    s_and_b32 s53, s53, 3
    s_cmp_eq_u32 s28, 0
    s_cselect_b32 s50, s27, s60
    s_cselect_b32 s51, s51, s61
    s_cselect_b32 s52, s52, s62
    """)
    for q in range(4):
        k.e(f"s_lshl_b32 s24, s{50+q}, 5"); k.e(f"v_add_u32 v{20+q}, s24, v9")
    for i in range(26, 32): k.e(f"v_mov_b32 v{i}, 0")
    for i in range(64): k.e(f"v_mov_b32 v{64+i}, 0")
    for i in range(132,136): k.e(f"v_mov_b32 v{i}, 0")
    for i in range(152,168): k.e(f"v_mov_b32 v{i}, 0")
    k.e(f"""
    s_mov_b32 s49, {(-2*P3_XS) & 0xffffffff}
    s_mov_b32 s46, {(-2*P3_WS) & 0xffffffff}
    s_mov_b32 s56, {P3_XS}
    s_mov_b32 s45, {P3_WS}
    s_mov_b32 s38, 0
    s_mov_b32 s39, 0
    """)
    XB = [128, 132]; WBB = [136, 152]
    def body(NQ, nh):
        def rdX(j): k.e(f"ds_read_b128 v[{XB[j&1]}:{XB[j&1]+3}], v{16+j}")
        def rdW(j,q):
            WB = WBB[j&1]
            k.e(f"ds_read_b64_tr_b16 v[{WB+4*q}:{WB+4*q+1}], v{20+q} offset:{3584*j}")
            k.e(f"ds_read_b64_tr_b16 v[{WB+4*q+2}:{WB+4*q+3}], v{20+q} offset:{3584*j+896}")
        def step(j, nxt, waits):
            x = XB[j&1]; WB = WBB[j&1]
            for q in range(NQ):
                if waits: k.e(f"s_waitcnt lgkmcnt({2*(NQ-1) + (1 if q>=1 else 0)})")
                k.e(f"v_mfma_f32_32x32x16_bf16 v[{64+16*q}:{79+16*q}], v[{WB+4*q}:{WB+4*q+3}], v[{x}:{x+3}], v[{64+16*q}:{79+16*q}]")
                if nxt is not None:
                    if q == 0: rdX(nxt)
                    rdW(nxt, q)
        LOOP = k.lab("loop3")
        k.e(".p2align 6")
        k.e(f"""
        {LOOP}:
        s_waitcnt lgkmcnt(0)
        """)
        if FINE == 3: stamp(k)
        k.e("s_barrier")
        if FINE == 3: stamp(k)
        k.e(f"""
        s_add_u32 s39, s39, 1
        s_cmp_ge_u32 s39, 3
        s_cselect_b32 s48, s49, s56
        s_cselect_b32 s47, s46, s45
        s_cselect_b32 s39, 0, s39
        s_add_u32 s38, s38, 1
        """)
        step(3, 0, False)
        step(0, 1, True); step(1, 2, True); step(2, 3, True)
        for r in range(16, 20): k.e(f"v_add_u32 v{r}, s48, v{r}")
        for q in range(NQ): k.e(f"v_add_u32 v{20+q}, s47, v{20+q}")
        k.e(f"""
        s_cmp_lt_u32 s38, {nst}
        s_cbranch_scc1 {LOOP}
        s_waitcnt lgkmcnt(0)
        """)
        step(3, None, False)
    L3 = k.lab("p3b"); LE = k.lab("p3e")
    k.e("s_cmp_eq_u32 s28, 0"); k.e(f"s_cbranch_scc0 {L3}")
    body(4, 0)
    k.e(f"s_branch {LE}")
    k.e(f"{L3}:")
    body(3, 1)
    k.e(f"{LE}:")
    k.e("s_barrier")
def p3_epi(k):
    k.e(f"""
    v_lshlrev_b32 v33, 3, v3
    v_add_u32 v33, {P3_ST}, v33
    ds_read_b64 v[30:31], v33
    """)
    for q in range(4):
        k.e(f"s_lshl_b32 s24, s{50+q}, 5"); k.e(f"s_add_u32 s24, s24, {40960 - P3_W}"); k.e(f"v_add_u32 v{20+q}, s24, v9")
    for q in range(4):
        k.e(f"ds_read_b64_tr_b16 v[{136+4*q}:{137+4*q}], v{20+q}")
        k.e(f"ds_read_b64_tr_b16 v[{138+4*q}:{139+4*q}], v{20+q} offset:896")
    k.e(f"""
    s_waitcnt lgkmcnt(8)
    v_xor_b32 v30, 0x80000000, v30
    v_lshrrev_b32 v129, 16, v30
    v_or_b32 v128, v129, v30
    v_cmp_eq_u32 vcc, 0, v4
    v_cndmask_b32 v128, 0, v128, vcc
    v_cndmask_b32 v129, 0, v129, vcc
    v_mov_b32 v130, 0
    v_mov_b32 v131, 0
    v_mul_f32 v32, v31, v31
    v_mul_f32 v34, {f2u(-2.302208198)}, v31
    v_mul_f32 v35, v32, v31
    v_mul_f32 v35, {f2u(-0.1029432397)}, v35
    v_rcp_f32 v36, v32
    s_waitcnt lgkmcnt(0)
    """)
    for q in range(4):
        k.e(f"v_mfma_f32_32x32x16_bf16 v[{64+16*q}:{79+16*q}], v[{136+4*q}:{139+4*q}], v[128:131], v[{64+16*q}:{79+16*q}]")
    for q in range(4):
        LS = k.lab("skq")
        if q == 3:
            k.e("s_cmp_eq_u32 s28, 1"); k.e(f"s_cbranch_scc1 {LS}")
        A = 64+16*q
        for i in range(8): k.e(f"v_mul_f32 v{144+i}, v{A+i}, v{A+i}")
        for i in range(8): k.e(f"v_fma_f32 v{144+i}, v{144+i}, v35, v34")
        for i in range(8): k.e(f"v_mul_f32 v{144+i}, v{A+i}, v{144+i}")
        for i in range(8): k.e(f"v_exp_f32 v{144+i}, v{144+i}")
        for i in range(8): k.e(f"v_mul_f32 v{A+i}, v{A+i}, v{A+8+i}")
        for i in range(8): k.e(f"v_fma_f32 v{144+i}, v{144+i}, v36, v36")
        for i in range(8): k.e(f"v_rcp_f32 v{144+i}, v{144+i}")
        k.e(f"s_lshl_b32 s57, s{50+q}, 12")
        for i in range(8): k.e(f"v_mul_f32 v{A+i}, v{A+i}, v{144+i}")
        for i in range(0,8,2): k.e(f"v_cvt_pk_bf16_f32 v{160+i//2}, v{A+i}, v{A+i+1}")
        k.e("v_permlane32_swap_b32 v160, v162")
        k.e("v_permlane32_swap_b32 v161, v163")
        k.e(f"buffer_store_dwordx4 v[160:163], v24, s[16:19], s57 offen{SC1}")
        if q == 3: k.e(f"{LS}:")

def build():
    k = Kern(NAME + "_kernel")
    END = "L_end"
    k.e(f"""
    s_cmp_ge_u32 s2, 256
    s_cbranch_scc1 {END}
    s_load_dwordx8 s[84:91], s[0:1], 0
    s_load_dwordx8 s[92:99], s[0:1], 32
    s_load_dwordx4 s[80:83], s[0:1], 64
    s_memrealtime s[100:101]
    v_and_b32 v1, 63, v0
    v_lshrrev_b32 v2, 6, v0
    s_nop 0
    v_readfirstlane_b32 s{S_W}, v2
    """)
    if not os.environ.get("NOCP"):
        LCP = k.lab("nocp")
        k.e(f"""
        s_cmp_lg_u32 s{S_W}, 1
        s_cbranch_scc1 {LCP}
        s_getpc_b64 s[60:61]
        s_and_b32 s60, s60, 0xffffff00
        s_sub_u32 s60, s60, CODEOFF
        s_subb_u32 s61, s61, 0
        s_lshr_b32 s24, s2, 3
        s_min_u32 s24, s24, CODEKB
        s_lshl_b32 s24, s24, 10
        v_lshlrev_b32 v5, 4, v1
        v_add_u32 v5, s24, v5
        global_load_dwordx4 v[164:167], v5, s[60:61]
        {LCP}:
        """)
    k.e(f"""
    s_and_b32 s3, s2, 7
    s_lshr_b32 s23, s2, 3
    s_and_b32 s21, s3, 3
    s_lshr_b32 s22, s3, 2
    s_lshl_b32 s{S_RB128}, s21, 2
    s_lshr_b32 s24, s23, 3
    s_add_u32 s{S_RB128}, s{S_RB128}, s24
    s_and_b32 s24, s23, 7
    s_lshl_b32 s{S_RB64}, s{S_RB128}, 1
    s_and_b32 s25, s24, 1
    s_add_u32 s{S_RB64}, s{S_RB64}, s25
    s_lshl_b32 s{S_CB}, s22, 2
    s_lshr_b32 s25, s24, 1
    s_add_u32 s{S_CB}, s{S_CB}, s25
    s_lshl_b32 s{S_FB}, s22, 3
    s_add_u32 s{S_FB}, s{S_FB}, s24
    s_sub_u32 s{S_J}, s{S_W}, 8
    s_mov_b32 s78, 0
    s_waitcnt lgkmcnt(0)
    """)
    srd(k, 64, S_WS, 1<<20, add=WS_F)
    srd(k, 68, S_DBG, 256)
    LN = k.lab("nonce")
    k.e(f"""
    s_or_b32 s24, s2, s{S_W}
    s_cmp_lg_u32 s24, 0
    s_cbranch_scc1 {LN}
    s_or_b32 s100, s100, 1
    v_mov_b32 v2, 0
    v_mov_b32 v3, s100
    buffer_store_dword v3, v2, s[68:71], 0 offen sc1
    {LN}:
    """)
    stamp(k, True)
    LC = k.lab("compute"); LD = k.lab("done")
    k.e(f"s_cmp_lt_u32 s{S_W}, 8"); k.e(f"s_cbranch_scc1 {LC}")
    loader(k)
    k.e(f"s_branch {LD}")
    k.e(f"{LC}:")
    p1(k); stamp(k)
    attention(k); stamp(k)
    sync(k, 32256, [f"s_lshl_b32 s59, s{S_RB64}, 7\ns_lshl_b32 s58, s{S_CB}, 2\ns_add_u32 s59, s59, s58"],
            [(f"s_lshl_b32 s58, s{S_RB64}, 7", 8)])
    p2_main(k); stamp(k)
    g_epi(k, SC1, True)
    sync(k, 40960, [f"s_lshr_b32 s59, s{S_RB64}, 1\ns_lshl_b32 s59, s59, 7\ns_add_u32 s59, s59, 8192\ns_and_b32 s58, s{S_RB64}, 1\ns_lshl_b32 s58, s58, 3\ns_add_u32 s58, s58, s{S_CB}\ns_lshl_b32 s58, s58, 2\ns_add_u32 s59, s59, s58"],
            [(f"s_lshl_b32 s58, s{S_RB128}, 7\ns_add_u32 s58, s58, 8192", 16), (f"s_lshl_b32 s58, s{S_FB}, 7\ns_add_u32 s58, s58, 24576", 16)])
    stamp(k)
    p3_main(k); stamp(k)
    p3_epi(k); stamp(k)
    sync(k, 7168, [f"s_lshl_b32 s59, s{S_RB128}, 7\ns_add_u32 s59, s59, 16384\ns_lshl_b32 s58, s{S_FB}, 2\ns_add_u32 s59, s59, s58"],
            [(f"s_lshr_b32 s58, s{S_RB64}, 1\ns_lshl_b32 s58, s58, 7\ns_add_u32 s58, s58, 16384", 16)])
    p4_main(k); stamp(k)
    g_epi(k, "", False)
    k.e(f"{LD}:")
    if STAMP:
        k.e("s_waitcnt vmcnt(0)")
        stamp(k, True)
        srd(k, 4, S_WS, 1<<20, add=32<<20)
        k.e(f"""
        s_lshl_b32 s24, s2, 4
        s_add_u32 s24, s24, s{S_W}
        s_lshl_b32 s24, s24, 8
        v_lshlrev_b32 v2, 2, v1
        v_add_u32 v2, s24, v2
        buffer_store_dword v63, v2, s[4:7], 0 offen
        """)
    k.e(f"{END}:")
    k.e("s_endpgm")
    return k

if __name__ == "__main__":
    k = build()
    if FINE == 9:
        out_l = []
        for ln in k.lines:
            out_l.append(ln)
            if ln == "s_barrier":
                out_l += ["s_memrealtime s[100:101]" if os.environ.get("RT") else "s_memtime s[100:101]", "s_waitcnt lgkmcnt(0)", "v_cmp_eq_u32 vcc, s78, v1", "v_mov_b32 v62, s100", "v_cndmask_b32 v63, v63, v62, vcc", "s_add_u32 s78, s78, 1"]
        k.lines = out_l
    hdr = open("cdna_kernels/"+NAME+".s.ref").read().split("; Override launch")[0]
    out = hdr + "; @launch grid=(256,1,1) block=(768,1,1) lds=163840\n"
    out += '.amdgcn_target "amdgcn-amd-amdhsa--gfx950"\n'
    out += kernel_text(k, 168)
    import subprocess, re
    tmp = out.replace("CODEOFF", "0x100").replace("CODEKB", "1")
    open("_t.s","w").write(tmp)
    subprocess.run(["clang","-x","assembler","-target","amdgcn-amd-amdhsa","-mcpu=gfx950","-c","_t.s","-o","_t.o"], check=True)
    dis = subprocess.run(["llvm-objdump","-d","--mcpu=gfx950","_t.o"], capture_output=True, text=True).stdout
    m = re.search(r"s_getpc_b64.*// ([0-9A-F]+):", dis)
    if m:
        pc = int(m.group(1), 16) + 4
        last = [int(x,16) for x in re.findall(r"// ([0-9A-F]+):", dis)][-1]
        out = out.replace("CODEOFF", hex(pc & ~0xff)).replace("CODEKB", str(max(0, (last - 1024)//1024)))
    open(sys.argv[1], "w").write(out)
```

```python
import sys, os, struct
from asmlib import *
NAME = "sequential_preLN__sliding_local_dilated__glu_gated_geglu__prompt"
WS_O, WS_H, WS_HH, WS_F = 0, 2<<20, 4<<20, 12<<20
def f2u(f): return struct.unpack("<I", struct.pack("<f", f))[0]
S_X, S_WQKV, S_WO, S_WG, S_WU, S_WD, S_OUT, S_DBG, S_WS = 84, 86, 88, 92, 94, 96, 98, 80, 82
S_W, S_RB64, S_CB, S_RB128, S_FB, S_NONCE, S_J = 20, 76, 77, 74, 75, 79, 21
STAMP = bool(os.environ.get("STAMP"))
FINE = int(os.environ.get("FINE","0"))
SC1 = " sc1"
PSLEEP = int(os.environ.get("PSLEEP","2"))
VRES = 58

def srd(k, sd, ptr, size, add=0):
    if add:
        k.e(f"s_add_u32 s{sd}, s{ptr}, {add}")
        k.e(f"s_addc_u32 s{sd+1}, s{ptr+1}, 0")
    else:
        k.e(f"s_mov_b32 s{sd}, s{ptr}")
        k.e(f"s_mov_b32 s{sd+1}, s{ptr+1}")
    k.e(f"s_mov_b32 s{sd+2}, {size}")
    k.e(f"s_mov_b32 s{sd+3}, 0x00020000")
def round_bf16(k, v, tmp):
    k.e(f"v_cvt_pk_bf16_f32 v{tmp}, v{v}, v{v}")
    k.e(f"v_lshlrev_b32 v{v}, 16, v{tmp}")
def ln_stats(k, vs, vq, vm, vr, tmp):
    k.e(f"""
    v_mul_f32 v{vm}, {f2u(1/512)}, v{vs}
    v_mul_f32 v{vr}, {f2u(1/512)}, v{vq}
    v_fma_f32 v{vr}, -v{vm}, v{vm}, v{vr}
    v_max_f32 v{vr}, 0, v{vr}
    """)
    round_bf16(k, vm, tmp); round_bf16(k, vr, tmp)
    k.e(f"v_add_f32 v{vr}, {f2u(1e-5)}, v{vr}")
    round_bf16(k, vr, tmp)
    k.e(f"v_sqrt_f32 v{vr}, v{vr}")
    round_bf16(k, vr, tmp)
    k.e(f"v_rcp_f32 v{vr}, v{vr}")
def red32(k, v, tmp):
    k.e(f"v_mov_b32 v{tmp}, v{v}"); k.e(f"v_permlane32_swap_b32 v{v}, v{tmp}"); k.e(f"v_add_f32 v{v}, v{v}, v{tmp}")
def red16(k, v, tmp):
    k.e(f"v_mov_b32 v{tmp}, v{v}"); k.e(f"v_permlane16_swap_b32 v{v}, v{tmp}"); k.e(f"v_add_f32 v{v}, v{v}, v{tmp}")
def stamp(k, force=False):
    if not STAMP: return
    if FINE == 9 and not force: return
    k.e("s_memrealtime s[100:101]" if os.environ.get("RT") else "s_memtime s[100:101]")
    k.e("s_waitcnt lgkmcnt(0)")
    k.e("v_cmp_eq_u32 vcc, s78, v1")
    k.e("v_mov_b32 v62, s100")
    k.e("v_cndmask_b32 v63, v63, v62, vcc")
    k.e("s_add_u32 s78, s78, 1")

P1_NS, P1_SLOT, P1_WOFF = 4, 34816, 10240
P1_SC = P1_NS*P1_SLOT
P1_SC2 = P1_SC + 2560
RS = 400
P2_X, P2_W = 98304, 32768
P4_X, P4_W, P4_NS, P4_SL = 8192, 81920, 5, 14336
P3_OUT, RSO = 8192, 240
GS_RS = 272
P3_X, P3_XS, P3_W, P3_WS, P3_UOFF = 8192, 16384, 57344, 28800, 14464
P3_CS, P3_ST, P3_CS2 = 0, 4096, 6144

def dma(k, v, srdn, soff, m0expr, sc=""):
    k.e(m0expr)
    k.e(f"buffer_load_dwordx4 v{v}, s[{srdn}:{srdn+3}], {soff} offen{sc} lds")


WS_XS, WS_HS = (13<<20)+(512<<10), (13<<20)+(768<<10)
WS_CS = 13<<20
def merge(k, groups, fill):
    if not fill:
        for g in groups: g()
        return
    fill = [x.strip() for x in fill if x.strip()]
    f2 = []; i = 0
    while i < len(fill):
        if fill[i].startswith("s_cmp"):
            j = i
            for t in range(i+1, min(i+8, len(fill))):
                if fill[t].startswith("s_cselect"): j = t
            f2.append("\n".join(fill[i:j+1])); i = j+1
        else:
            f2.append(fill[i]); i += 1
    fill = f2
    n = len(groups); m = len(fill); fi = 0
    for i, g in enumerate(groups):
        g()
        upto = (m*(i+1))//n
        while fi < upto:
            k.e(fill[fi]); fi += 1
def lstats_reads(k, base_sreg, ne):
    k.e(f"v_add_u32 v50, s{base_sreg}, v51")
    for e_ in range(ne): k.e(f"ds_read_b128 v[{64+4*e_}:{67+4*e_}], v50 offset:{1024*e_}")
def lstats_valu(ne, acc0):
    out = []
    for e_ in range(ne):
        out.append(f"s_waitcnt lgkmcnt({ne-1-e_})")
        a = acc0 + 4*e_
        for d in range(4):
            t0 = 52 + 2*(d&1)
            out += [f"v_lshlrev_b32 v{t0}, 16, v{64+4*e_+d}", f"v_and_b32 v{t0+1}, 0xffff0000, v{64+4*e_+d}",
                    f"v_pk_add_f32 v[{a}:{a+1}], v[{a}:{a+1}], v[{t0}:{t0+1}]",
                    f"v_pk_fma_f32 v[{a+2}:{a+3}], v[{t0}:{t0+1}], v[{t0}:{t0+1}], v[{a+2}:{a+3}]"]
    return out
def lstats_fin(k, ne, acc0, row0_sreg, stbase):
    k.e(f"""
    v_lshrrev_b32 v50, 3, v1
    v_add_u32 v50, s{row0_sreg}, v50
    v_lshlrev_b32 v50, 3, v50
    v_add_u32 v50, {stbase}, v50
    """)
    for e_ in range(ne):
        a = acc0 + 4*e_
        k.e(f"v_add_f32 v{a}, v{a}, v{a+1}")
        k.e(f"v_add_f32 v{a+2}, v{a+2}, v{a+3}")
    for perm in ("quad_perm:[1,0,3,2]", "quad_perm:[2,3,0,1]", "row_half_mirror"):
        for e_ in range(ne):
            a = acc0 + 4*e_
            for r in (a, a+2): k.e(f"v_add_f32_dpp v{r}, v{r}, v{r} {perm} row_mask:0xf bank_mask:0xf")
    for e_ in range(ne):
        a = acc0 + 4*e_
        k.e(f"v_mov_b32 v{a+1}, v{a+2}")
        k.e(f"ds_write_b64 v50, v[{a}:{a+1}] offset:{64*e_}")

def loader(k):
    J = S_J
    k.e("s_setprio 3")
    k.e(f"""
    s_lshl_b32 s25, s{S_RB64}, 6
    s_sub_u32 s25, s25, 16
    s_lshl_b32 s26, s{S_CB}, 7
    v_lshrrev_b32 v3, 3, v1
    v_and_b32 v4, 7, v1
    s_mul_i32 s24, s{J}, 20
    v_add_u32 v5, s24, v3
    s_lshl_b32 s30, s24, 7
    s_cmp_eq_u32 s{J}, 0
    s_cselect_b32 s31, 0xffffff00, -1
    """)
    for e_ in range(3):
        if e_: k.e("v_add_u32 v5, 8, v5")
        k.e(f"""
        v_bfe_u32 v6, v5, 1, 3
        v_xor_b32 v6, v6, v4
        v_add_u32 v7, s25, v5
        v_max_i32 v7, 0, v7
        v_lshlrev_b32 v7, 10, v7
        v_lshl_add_u32 v{10+e_}, v6, 4, v7
        """)
    srd(k, 4, S_X, 2<<20); srd(k, 8, S_WQKV, 512*3072)
    def x1(base, soff):
        return [lambda: (k.e(f"s_mov_b32 m0, {base}"), k.e("s_mov_b32 exec_lo, s31"), k.e(f"buffer_load_dwordx4 v10, s[4:7], {soff} offen lds"), k.e("s_mov_b32 exec_lo, -1")),
                lambda: dma(k, 11, 4, soff, f"s_add_u32 m0, {base}, 1024"),
                lambda: (k.e(f"s_add_u32 m0, {base}, 2048"), k.e("s_mov_b32 exec_hi, 0"), k.e(f"buffer_load_dwordx4 v12, s[4:7], {soff} offen lds"), k.e("s_mov_b32 exec_hi, -1"))]
    def w1(base, soff):
        return [(lambda e_=e_: dma(k, 13+e_, 8, soff, f"s_add_u32 m0, {base}, {1024*e_}")) for e_ in range(6)]
    wmath = [f"s_mul_i32 s24, s{J}, 384", "v_add_u32 v5, s24, v1", f"s_mul_i32 s32, s{J}, 6144", f"s_add_u32 s32, s32, {P1_WOFF}"]
    for e_ in range(3):
        if e_: wmath.append("v_add_u32 v5, 64, v5")
        wmath += f"""v_mul_u32_u24 v6, 2731, v5
        v_lshrrev_b32 v6, 16, v6
        v_mul_u32_u24 v7, 24, v6
        v_sub_u32 v7, v5, v7
        v_lshrrev_b32 v8, 1, v7
        v_and_b32 v7, 1, v7
        v_bfe_u32 v9, v6, 1, 1
        v_lshrrev_b32 v2, 2, v6
        v_and_b32 v2, 2, v2
        v_or_b32 v9, v9, v2
        v_xor_b32 v9, v8, v9
        v_and_b32 v9, 3, v9
        v_lshrrev_b32 v8, 2, v8
        v_mul_u32_u24 v6, 3072, v6
        v_lshl_add_u32 v6, v8, 10, v6
        v_lshl_add_u32 v6, v9, 5, v6
        v_lshl_add_u32 v6, v7, 4, v6
        v_add_u32 v{13+e_}, s26, v6
        v_xor_b32 v6, 64, v{13+e_}
        v_add_u32 v{16+e_}, 24576, v6""".split("\n")
    g = []
    for st in range(3):
        g.append(lambda st=st: (k.e(f"s_add_u32 s46, s30, {st*P1_SLOT}"), k.e(f"s_movk_i32 s36, {128*st}")))
        g += x1("s46", "s36")
    merge(k, g, wmath)
    misc = f"""v_lshrrev_b32 v3, 3, v1
    v_and_b32 v4, 7, v1
    s_lshl_b32 s24, s{J}, 5
    v_add_u32 v5, s24, v3
    v_bfe_u32 v6, v1, 4, 1
    v_lshlrev_b32 v6, 2, v6
    v_xor_b32 v6, v6, v4
    v_lshlrev_b32 v7, 10, v5
    v_lshl_add_u32 v7, v6, 4, v7
    v_add_u32 v20, s26, v7
    v_add_u32 v21, 0x2000, v20
    v_add_u32 v22, 0x4000, v20
    v_add_u32 v23, 0x6000, v20
    s_lshl_b32 s40, s{J}, 12
    v_lshlrev_b32 v51, 4, v1
    s_mov_b32 s12, s{S_WO}
    s_mov_b32 s13, s{S_WO+1}
    s_mov_b32 s14, {512*1024}
    s_mov_b32 s15, 0x00020000""".split("\n")
    misc += [f"v_mov_b32 v{i}, 0" for i in range(80, 92)]
    g = []
    for st in range(3):
        g.append(lambda st=st: (k.e(f"s_add_u32 s47, s32, {st*P1_SLOT}"), k.e(f"s_mov_b32 s37, {64*3072*st}")))
        g += w1("s47", "s37")
    merge(k, g, misc)
    def gW(srdn, soff, base):
        return [(lambda e_=e_: dma(k, 20+e_, srdn, soff, f"s_add_u32 m0, {base}, {1024*e_}")) for e_ in range(4)]
    def gX(soff, base):
        return [(lambda e_=e_: dma(k, 24+e_, 4, soff, f"s_add_u32 m0, {base}, {1024*e_}", SC1)) for e_ in range(4)]
    def run(lst):
        for f in lst: f()
    k.e(f"""
    s_movk_i32 s36, 384
    s_mov_b32 s37, {64*3072*3}
    s_mov_b32 s33, {3*P1_SLOT}
    s_mov_b32 s38, 0
    s_mov_b32 s45, s30
    s_waitcnt vmcnt(12)
    """)
    adv1 = f"""
    s_add_u32 s45, s45, {P1_SLOT}
    s_sub_u32 s46, s45, {P1_NS*P1_SLOT}
    s_cmp_ge_u32 s45, {P1_NS*P1_SLOT}
    s_cselect_b32 s45, s46, s45
    """
    L = k.lab("l1"); L15 = k.lab("l15")
    k.e(".p2align 6")
    k.e(f"""
    {L}:
    s_waitcnt vmcnt(15)
    s_barrier
    """)
    k.e("s_add_u32 s46, s33, s30"); k.e("s_add_u32 s47, s33, s32")
    run(x1("s46","s36") + w1("s47","s37"))
    k.e(f"""
    s_add_u32 s36, s36, 128
    s_add_u32 s37, s37, {64*3072}
    s_add_u32 s33, s33, {P1_SLOT}
    s_cmp_ge_u32 s33, {P1_NS*P1_SLOT}
    s_cselect_b32 s33, 0, s33
    """)
    k.e(f"""
    s_add_u32 s38, s38, 1
    s_cmp_lt_u32 s38, 5
    s_cbranch_scc1 {L}
    """)
    k.e("s_waitcnt vmcnt(18)"); k.e("s_barrier")
    LQ_ = k.lab("lgetn"); LXS = k.lab("lxs")
    srd(k, 8, S_WS, 32768, add=WS_XS)
    k.e(f"""
    v_mov_b32 v2, 0
    s_mov_b32 s59, 0
    s_mul_i32 s24, s{J}, 20
    v_min_u32 v6, 19, v1
    v_add_u32 v6, s24, v6
    v_add_u32 v7, s25, v6
    v_max_i32 v7, 0, v7
    v_lshlrev_b32 v7, 4, v7
    v_lshlrev_b32 v6, 3, v6
    v_add_u32 v6, {P1_SC}, v6
    v_mov_b32 v44, v6
    v_mov_b32 v45, v7
    v_mov_b32 v2, {P1_SC+712}
    ds_read_b32 v3, v2
    buffer_load_dwordx4 v[64:67], v45, s[8:11], 0 offen sc1
    s_waitcnt lgkmcnt(0)
    v_readfirstlane_b32 s{S_NONCE}, v3
    """)
    k.e(f"""
    s_cmp_ge_u32 s{J}, 2
    s_cselect_b32 s16, s{S_WU}, s{S_WG}
    s_cselect_b32 s17, s{S_WU+1}, s{S_WG+1}
    s_mov_b32 s18, {512*3584}
    s_mov_b32 s19, 0x00020000
    s_lshr_b32 s24, s2, 3
    s_mul_i32 s24, s24, 6
    s_and_b32 s29, s{J}, 1
    s_mul_i32 s29, s29, 3
    s_add_u32 s24, s24, s29
    s_mul_i32 s24, s24, 3584
    s_bfe_u32 s29, s2, 0x10002
    s_mul_i32 s29, s29, 1792
    s_add_u32 s28, s24, s29
    v_add_u32 v8, 1024, v51
    v_mov_b32 v9, 0x80000000
    v_cmp_gt_u32 vcc, 48, v1
    v_cndmask_b32 v46, v9, v8, vcc
    """)
    for st2 in range(2):
        k.e(f"s_waitcnt vmcnt({10-st2})")
        if st2 == 1:
            k.e(f"""
            s_waitcnt vmcnt(8)
            {LQ_}:
            s_add_u32 s59, s59, 1
            s_cmp_ge_u32 s59, 400000
            s_cbranch_scc1 {LXS}
            v_cmp_ne_u32 vcc, s{S_NONCE}, v66
            s_cmp_eq_u64 vcc, 0
            s_cbranch_scc1 {LXS}
            buffer_load_dwordx4 v[64:67], v45, s[8:11], 0 offen sc1
            s_waitcnt vmcnt(0)
            s_branch {LQ_}
            {LXS}:
            """)
            ln_stats(k, 64, 65, 52, 53, 54)
            k.e("v_mul_f32 v52, v52, v53"); k.e("v_sub_f32 v52, 0, v52")
            k.e("ds_write_b64 v44, v[52:53]")
            k.e("s_waitcnt lgkmcnt(0)")
        k.e("s_barrier")
        k.e(f"s_mov_b32 s41, {st2*0x40000}"); k.e(f"s_add_u32 s46, s40, {P2_W+st2*32768}")
        k.e(f"s_mov_b32 s42, {st2*0x40000+0x20000}"); k.e(f"s_add_u32 s47, s40, {P2_W+st2*32768+16384}")
        run(gW(12,"s41","s46") + gW(12,"s42","s47"))
    k.e("s_barrier")
    k.e("s_setprio 0")
    if FINE == 8: stamp(k)
    for r in range(3):
        k.e(f"buffer_load_dwordx4 v[{128+8*r}:{131+8*r}], v51, s[16:19], s28 offen")
        k.e(f"buffer_load_dwordx4 v[{132+8*r}:{135+8*r}], v46, s[16:19], s28 offen")
        k.e("s_add_u32 s28, s28, 3584")
    def gx_setup(xstride):
        k.e(f"""
        v_lshrrev_b32 v3, 4, v1
        v_and_b32 v4, 15, v1
        s_lshl_b32 s24, s{J}, 4
        v_add_u32 v5, s24, v3
        s_lshl_b32 s25, s{S_RB64}, 6
        s_movk_i32 s42, {xstride}
        """)
        for e_ in range(4):
            if e_: k.e("v_add_u32 v5, 4, v5")
            k.e(f"""
            v_and_b32 v6, 15, v5
            v_xor_b32 v6, v6, v4
            v_add_u32 v7, s25, v5
            v_mul_lo_u32 v7, v7, s42
            v_lshl_add_u32 v{24+e_}, v6, 4, v7
            """)
    gx_setup(1024)
    srd(k, 4, S_WS, 2<<20, add=WS_O)
    k.e(f"""
    s_and_b32 s53, s2, 1
    s_lshr_b32 s52, s2, 1
    s_and_b32 s52, s52, 15
    s_lshr_b32 s54, s2, 5
    s_cmp_eq_u32 s53, 1
    s_cselect_b32 s16, s{S_WU}, s{S_WG}
    s_cselect_b32 s17, s{S_WU+1}, s{S_WG+1}
    v_mul_u32_u24 v6, 4682, v1
    v_lshrrev_b32 v6, 16, v6
    v_mul_u32_u24 v7, 14, v6
    v_sub_u32 v7, v1, v7
    v_mul_u32_u24 v8, 3584, v6
    v_lshl_add_u32 v8, v7, 4, v8
    s_mul_i32 s24, s52, 224
    s_lshl_b32 s29, s54, 2
    s_add_u32 s29, s29, s{J}
    s_mul_i32 s29, s29, {16*3584}
    s_add_u32 s24, s24, s29
    v_add_u32 v8, s24, v8
    v_mov_b32 v9, 0x80000000
    v_cmp_gt_u32 vcc, 56, v1
    v_cndmask_b32 v48, v9, v8, vcc
    s_mov_b32 s29, 0
    """)
    for e_ in range(4):
        k.e(f"buffer_load_dwordx4 v[{96+4*e_}:{99+4*e_}], v48, s[16:19], s29 offen"); k.e(f"s_add_u32 s29, s29, {4*3584}")
    for i in range(8): k.e(f"v_mov_b32 v{112+i}, 0")
    for e_ in range(4):
        k.e(f"s_waitcnt vmcnt({3-e_})")
        for d in range(4):
            t0 = 52 + 2*(d&1)
            k.e(f"v_lshlrev_b32 v{t0}, 16, v{96+4*e_+d}")
            k.e(f"v_and_b32 v{t0+1}, 0xffff0000, v{96+4*e_+d}")
            k.e(f"v_add_f32 v{112+2*d}, v{112+2*d}, v{t0}")
            k.e(f"v_add_f32 v{113+2*d}, v{113+2*d}, v{t0+1}")
    k.e(f"""
    v_add_u32 v50, 14, v1
    v_lshlrev_b32 v50, 2, v50
    v_add_u32 v49, 28, v1
    v_lshlrev_b32 v49, 2, v49
    """)
    for i in range(8): k.e(f"ds_bpermute_b32 v{64+i}, v50, v{112+i}")
    k.e("s_waitcnt lgkmcnt(0)")
    for i in range(8): k.e(f"v_add_f32 v{112+i}, v{112+i}, v{64+i}")
    for i in range(8): k.e(f"ds_bpermute_b32 v{64+i}, v49, v{112+i}")
    k.e("s_waitcnt lgkmcnt(0)")
    for i in range(8): k.e(f"v_add_f32 v{112+i}, v{112+i}, v{64+i}")
    srd(k, 16, S_WS, 1<<18, add=WS_CS)
    if FINE == 8: stamp(k)
    k.e("s_barrier")
    k.e("s_setprio 3")
    if FINE == 8: stamp(k)
    m3 = [f"s_mul_i32 s26, s{S_FB}, 224", "v_mov_b32 v5, v1"]
    for e_ in range(7):
        if e_: m3.append("v_add_u32 v5, 64, v5")
        m3 += f"""v_mul_u32_u24 v6, 4682, v5
        v_lshrrev_b32 v6, 16, v6
        v_mul_u32_u24 v7, 14, v6
        v_sub_u32 v7, v5, v7
        v_mul_u32_u24 v6, 3584, v6
        v_lshl_add_u32 v6, v7, 4, v6
        v_add_u32 v{30+e_}, s26, v6""".split("\n")
    m3 += f"""s_cmp_ge_u32 s{J}, 2
    s_cselect_b32 s8, s{S_WU}, s{S_WG}
    s_cselect_b32 s9, s{S_WU+1}, s{S_WG+1}
    s_mov_b32 s10, {512*3584}
    s_mov_b32 s11, 0x00020000
    s_cselect_b32 s44, {P3_UOFF}, 0
    s_and_b32 s24, s{J}, 1
    s_mul_i32 s45, s24, 7168
    s_add_u32 s44, s44, s45
    s_add_u32 s44, s44, {P3_W}
    s_mul_i32 s41, s24, {32*3584}
    v_lshrrev_b32 v3, 3, v1
    v_and_b32 v4, 7, v1
    s_lshl_b32 s24, s{J}, 5
    v_add_u32 v5, s24, v3
    s_lshl_b32 s25, s{S_RB128}, 7""".split("\n")
    for e_ in range(4):
        if e_: m3.append("v_add_u32 v5, 8, v5")
        m3 += f"""v_bfe_u32 v6, v5, 1, 3
        v_xor_b32 v6, v6, v4
        v_add_u32 v7, s25, v5
        v_lshlrev_b32 v7, 10, v7
        v_lshl_add_u32 v{40+e_}, v6, 4, v7""".split("\n")
    m3 += [f"v_mov_b32 v{i}, 0" for i in range(80, 96)]
    g = []
    for st in range(4):
        g.append(lambda st=st: (k.e(f"s_movk_i32 s43, {st*256}"), k.e(f"s_add_u32 s46, s40, {P2_X+st*16384}")))
        g += gX("s43", "s46")
    merge(k, g, m3)
    k.e(f"""
    v_min_u32 v50, 15, v1
    v_lshlrev_b32 v50, 5, v50
    s_lshl_b32 s24, s{J}, 9
    s_add_u32 s24, s24, 1024
    v_add_u32 v50, s24, v50
    v_cmp_gt_u32 vcc, 14, v1
    s_and_saveexec_b64 s[60:61], vcc
    ds_write_b128 v50, v[112:115]
    ds_write_b128 v50, v[116:119] offset:16
    s_mov_b64 exec, s[60:61]
    s_waitcnt vmcnt(12) lgkmcnt(0)
    s_barrier
    """)
    LJ0 = k.lab("csj0")
    k.e(f"""
    s_cmp_lg_u32 s{J}, 0
    s_cbranch_scc1 {LJ0}
    v_min_u32 v50, 31, v1
    v_lshlrev_b32 v50, 4, v50
    ds_read_b128 v[96:99], v50 offset:1024
    ds_read_b128 v[100:103], v50 offset:1536
    ds_read_b128 v[104:107], v50 offset:2048
    ds_read_b128 v[108:111], v50 offset:2560
    s_lshl_b32 s48, s52, 4
    s_lshl_b32 s49, s53, 3
    s_add_u32 s49, s49, s54
    s_add_u32 s48, s48, s49
    s_lshl_b32 s48, s48, 9
    v_add_u32 v8, s48, v51
    v_mov_b32 v9, 0x80000000
    v_cmp_gt_u32 vcc, 28, v1
    v_cndmask_b32 v8, v9, v8, vcc
    s_waitcnt lgkmcnt(0)
    """)
    for w in range(1,4):
        for i in range(4): k.e(f"v_add_f32 v{96+i}, v{96+i}, v{96+4*w+i}")
    k.e("buffer_store_dwordx4 v[96:99], v8, s[16:19], 0 offen sc1")
    k.e(f"{LJ0}:")
    for st in range(1,4):
        k.e(f"s_waitcnt vmcnt({12-4*st})"); k.e("s_barrier")
    LJ1 = k.lab("csj1")
    k.e(f"""
    s_cmp_lg_u32 s{J}, 0
    s_cbranch_scc1 {LJ1}
    s_lshl_b32 s47, s52, 7
    s_add_u32 s47, s47, 24576
    s_lshl_b32 s49, s49, 2
    s_add_u32 s47, s47, s49
    s_lshl_b32 s47, s47, 5
    v_mov_b32 v2, s47
    v_mov_b32 v3, s{S_NONCE}
    buffer_store_dword v3, v2, s[64:67], 0 offen sc1
    {LJ1}:
    """)
    def p3W(sbase):
        return [(lambda e_=e_: dma(k, 30+e_, 8, "s41", f"s_add_u32 m0, {sbase}, {1024*e_}")) for e_ in range(7)] + [lambda: k.e(f"s_add_u32 s41, s41, {64*3584}")]
    def p3X(sbase):
        return [(lambda e_=e_: dma(k, 40+e_, 4, "s43", f"s_add_u32 m0, {sbase}, {1024*e_}", SC1)) for e_ in range(4)] + [lambda: k.e("s_add_u32 s43, s43, 128")]
    k.e("s_barrier")
    if FINE == 8: stamp(k)
    LWC = k.lab("waitc2")
    k.e(f"""
    s_setprio 0
    v_mov_b32 v2, 40960
    {LWC}:
    ds_read_b32 v3, v2
    s_waitcnt lgkmcnt(0)
    v_readfirstlane_b32 s59, v3
    s_cmp_lt_u32 s59, {os.environ.get("C2W","8")}
    s_cbranch_scc1 {LWC}
    """)
    for st in range(2):
        k.e(f"s_add_u32 s46, s44, {st*P3_WS}"); run(p3W("s46"))
    srd(k, 4, S_WS, 2<<20, add=WS_H)
    if FINE == 8: stamp(k)
    k.e("s_barrier")
    k.e("s_setprio 3")
    k.e("s_mov_b32 s43, 0")
    k.e(f"s_add_u32 s45, s40, {P3_X}")
    for st in range(3):
        k.e(f"s_add_u32 s46, s45, {st*P3_XS}"); run(p3X("s46"))
    k.e(f"s_add_u32 s46, s44, {2*P3_WS}"); run(p3W("s46"))
    adv3 = f"""
    s_add_u32 s48, s48, {P3_XS}
    s_sub_u32 s46, s48, {3*P3_XS}
    s_add_u32 s47, s45, {3*P3_XS}
    s_cmp_ge_u32 s48, s47
    s_cselect_b32 s48, s46, s48
    """
    k.e("s_mov_b32 s48, s45")
    k.e(f"""
    s_mov_b32 s12, s{S_WD}
    s_mov_b32 s13, s{S_WD+1}
    s_mov_b32 s14, {1792*1024}
    s_mov_b32 s15, 0x00020000
    v_lshrrev_b32 v6, 5, v1
    v_and_b32 v7, 31, v1
    v_lshlrev_b32 v7, 4, v7
    v_lshl_add_u32 v47, v6, 10, v7
    s_lshr_b32 s24, s2, 3
    s_mul_i32 s24, s24, 56
    s_mul_i32 s29, s{J}, 14
    s_add_u32 s24, s24, s29
    s_lshl_b32 s24, s24, 10
    s_bfe_u32 s29, s2, 0x10002
    s_lshl_b32 s29, s29, 9
    s_add_u32 s50, s24, s29
    """)
    k.e("s_waitcnt vmcnt(15)"); k.e("s_barrier")
    srd(k, 52, S_WS, 131072, add=WS_HS)
    k.e(f"""
    s_lshl_b32 s24, s{S_RB128}, 7
    s_lshl_b32 s29, s{J}, 5
    s_add_u32 s24, s24, s29
    s_lshl_b32 s24, s24, 6
    v_add_u32 v6, s24, v51
    buffer_load_dwordx4 v[64:67], v6, s[52:55], 0 offen sc1
    buffer_load_dwordx4 v[68:71], v6, s[52:55], 0 offen offset:1024 sc1
    """)
    k.e(f"""
    s_lshl_b32 s46, s{S_FB}, 4
    s_and_b32 s49, s{J}, 1
    s_lshl_b32 s49, s49, 3
    s_add_u32 s46, s46, s49
    s_lshl_b32 s46, s46, 9
    v_lshlrev_b32 v8, 4, v1
    v_add_u32 v8, s46, v8
    v_mov_b32 v9, 0x80000000
    v_cmp_gt_u32 vcc, 28, v1
    v_cndmask_b32 v8, v9, v8, vcc
    """)
    for kp in range(8): k.e(f"buffer_load_dwordx4 v[{96+4*kp}:{99+4*kp}], v8, s[16:19], 0 offen offset:{512*kp} sc1")
    for _ in range(2):
        k.e("buffer_load_dwordx4 v[160:163], v47, s[12:15], s50 offen"); k.e("s_add_u32 s50, s50, 2048")
    k.e("s_mov_b32 s38, 1"); k.e("s_mov_b32 s39, 0")
    L = k.lab("l3")
    k.e(".p2align 6")
    k.e(f"""
    {L}:
    s_waitcnt vmcnt(12)
    s_barrier
    """)
    k.e(f"""
    s_mul_i32 s46, s39, {P3_XS}
    s_add_u32 s46, s46, s45
    s_mul_i32 s47, s39, {P3_WS}
    s_add_u32 s47, s47, s44
    """)
    merge(k, p3X("s46") + p3W("s47") + [lambda: (k.e("buffer_load_dwordx4 v[160:163], v47, s[12:15], s50 offen"), k.e("s_add_u32 s50, s50, 2048"))], [])
    k.e(f"""
    s_add_u32 s39, s39, 1
    s_cmp_ge_u32 s39, 3
    s_cselect_b32 s39, 0, s39
    """)
    k.e(f"""
    s_add_u32 s38, s38, 1
    s_cmp_lt_u32 s38, 6
    s_cbranch_scc1 {L}
    s_waitcnt vmcnt(12)
    s_barrier
    """)
    for b0 in (64, 68):
        k.e(f"v_add_f32 v{b0}, v{b0}, v{b0+2}"); k.e(f"v_add_f32 v{b0+1}, v{b0+1}, v{b0+3}")
    for perm in ("quad_perm:[1,0,3,2]", "quad_perm:[2,3,0,1]"):
        for r in (64,65,68,69): k.e(f"v_add_f32_dpp v{r}, v{r}, v{r} {perm} row_mask:0xf bank_mask:0xf")
    k.e(f"""
    v_lshrrev_b32 v6, 2, v1
    s_lshl_b32 s24, s{J}, 5
    v_add_u32 v6, s24, v6
    v_lshlrev_b32 v6, 3, v6
    v_add_u32 v6, {P3_ST}, v6
    """)
    for (b0, off) in ((64,0),(68,128)):
        ln_stats(k, b0, b0+1, 52, 53, 54)
        k.e(f"ds_write_b64 v6, v[52:53] offset:{off}")
    for kp in range(1,8):
        for i in range(4): k.e(f"v_add_f32 v{96+i}, v{96+i}, v{96+4*kp+i}")
    k.e(f"""
    v_min_u32 v8, 27, v1
    v_lshlrev_b32 v8, 3, v8
    s_and_b32 s46, s{J}, 1
    s_mul_i32 s46, s46, {P3_UOFF}
    s_add_u32 s46, s46, 40960
    v_add_u32 v8, s46, v8
    v_cmp_gt_u32 vcc, 28, v1
    s_and_saveexec_b64 s[60:61], vcc
    """)
    for part in range(3):
        k.e("v_cvt_pk_bf16_f32 v100, v96, v97"); k.e("v_cvt_pk_bf16_f32 v101, v98, v99")
        k.e(f"ds_write_b64 v8, v[100:101] offset:{224*part}")
        if part < 2:
            k.e("""
            v_lshlrev_b32 v102, 16, v100
            v_and_b32 v103, 0xffff0000, v100
            v_lshlrev_b32 v104, 16, v101
            v_and_b32 v105, 0xffff0000, v101
            v_sub_f32 v96, v96, v102
            v_sub_f32 v97, v97, v103
            v_sub_f32 v98, v98, v104
            v_sub_f32 v99, v99, v105
            """)
    k.e("s_mov_b64 exec, s[60:61]")
    k.e(f"""
    s_and_b32 s24, s{J}, 1
    s_mul_i32 s24, s24, 448
    v_add_u32 v5, s24, v1
    s_and_b32 s25, s{S_RB64}, 1
    s_lshl_b32 s25, s25, 11
    s_lshr_b32 s29, s{S_RB64}, 1
    s_mul_i32 s29, s29, {16*28672}
    s_add_u32 s25, s25, s29
    s_lshl_b32 s26, s{S_CB}, 7
    """)
    LWS = k.lab("p4ws"); LWD = k.lab("p4wd")
    k.e(f"s_cmp_ge_u32 s{J}, 2"); k.e(f"s_cbranch_scc1 {LWS}")
    for e_ in range(7):
        if e_: k.e("v_add_u32 v5, 64, v5")
        k.e(f"""
        v_lshrrev_b32 v6, 7, v5
        v_bfe_u32 v7, v5, 1, 6
        v_bfe_u32 v8, v7, 3, 1
        v_and_b32 v9, 1, v5
        v_xor_b32 v8, v8, v9
        v_lshlrev_b32 v6, 12, v6
        v_lshl_add_u32 v6, v7, 5, v6
        v_lshl_add_u32 v6, v8, 4, v6
        v_add_u32 v{24+e_}, s25, v6
        """)
    srd(k, 4, S_WS, 7<<20, add=WS_HH)
    k.e(f"""
    s_mov_b32 s42, 28672
    s_mul_i32 s44, s{J}, 7168
    s_add_u32 s44, s44, {P4_X}
    s_branch {LWD}
    {LWS}:
    v_lshrrev_b32 v6, 3, v5
    v_and_b32 v7, 7, v5
    v_bfe_u32 v8, v6, 1, 1
    v_lshlrev_b32 v8, 2, v8
    v_xor_b32 v7, v7, v8
    v_lshlrev_b32 v6, 10, v6
    v_lshl_add_u32 v6, v7, 4, v6
    v_add_u32 v24, s26, v6
    """)
    for e_ in range(1,7): k.e(f"v_add_u32 v{24+e_}, {8192*e_}, v24")
    srd(k, 4, S_WD, 1792*1024)
    k.e(f"""
    s_mov_b32 s42, {112*1024}
    s_and_b32 s44, s{J}, 1
    s_mul_i32 s44, s44, 7168
    s_add_u32 s44, s44, {P4_W}
    {LWD}:
    s_mov_b32 s43, 0
    """)
    def p4(sbase):
        for e_ in range(7): dma(k, 24+e_, 4, "s43", f"s_add_u32 m0, {sbase}, {1024*e_}", SC1)
        k.e("s_add_u32 s43, s43, s42")
    def prefill4():
        Lf = k.lab("p4f")
        k.e("s_mov_b32 s46, s44"); k.e("s_mov_b32 s38, 0")
        k.e(f"{Lf}:")
        p4("s46")
        k.e(f"""
        s_add_u32 s46, s46, {P4_SL}
        s_add_u32 s38, s38, 1
        s_cmp_lt_u32 s38, {P4_NS}
        s_cbranch_scc1 {Lf}
        """)
    k.e("s_waitcnt vmcnt(1) lgkmcnt(0)"); k.e("s_barrier")
    k.e("s_barrier")
    k.e("s_setprio 0")
    LX = k.lab("p4x"); LJ = k.lab("p4j")
    k.e(f"s_cmp_lt_u32 s{J}, 2"); k.e(f"s_cbranch_scc1 {LX}")
    prefill4()
    k.e("s_barrier"); k.e("s_setprio 3")
    k.e(f"s_branch {LJ}")
    k.e(f"{LX}:")
    k.e("s_barrier"); k.e("s_setprio 3")
    prefill4()
    k.e(f"{LJ}:")
    k.e("s_waitcnt vmcnt(28)"); k.e("s_barrier")
    k.e(f"""
    s_mov_b32 s38, 1
    s_mov_b32 s46, s44
    s_add_u32 s48, s44, {P4_NS*P4_SL}
    """)
    L = k.lab("l4")
    k.e(".p2align 6")
    k.e(f"""
    {L}:
    s_waitcnt vmcnt(21)
    s_barrier
    """)
    p4("s46")
    k.e(f"""
    s_add_u32 s46, s46, {P4_SL}
    s_cmp_ge_u32 s46, s48
    s_cselect_b32 s46, s44, s46
    s_add_u32 s38, s38, 1
    s_cmp_lt_u32 s38, 12
    s_cbranch_scc1 {L}
    s_waitcnt vmcnt(21)
    s_barrier
    s_waitcnt vmcnt(14)
    s_barrier
    s_waitcnt vmcnt(7)
    s_barrier
    s_waitcnt vmcnt(0)
    s_barrier
    s_barrier
    """)
    stamp(k)


P1_CSP = P1_SC2 + 4608
def cs_job(k):
    k.e(f"""
    s_and_b32 s73, s2, 1
    s_lshr_b32 s72, s2, 1
    s_and_b32 s72, s72, 15
    s_lshr_b32 s63, s2, 5
    s_cmp_eq_u32 s73, 1
    s_cselect_b32 s8, s{S_WU}, s{S_WG}
    s_cselect_b32 s9, s{S_WU+1}, s{S_WG+1}
    s_mov_b32 s10, {512*3584}
    s_mov_b32 s11, 0x00020000
    v_mul_u32_u24 v6, 4682, v1
    v_lshrrev_b32 v6, 16, v6
    v_mul_u32_u24 v7, 14, v6
    v_sub_u32 v7, v1, v7
    v_mul_u32_u24 v8, 3584, v6
    v_lshl_add_u32 v8, v7, 4, v8
    s_mul_i32 s24, s72, 224
    s_lshl_b32 s29, s63, 3
    s_add_u32 s29, s29, s{S_W}
    s_mul_i32 s29, s29, {8*3584}
    s_add_u32 s24, s24, s29
    v_add_u32 v8, s24, v8
    v_mov_b32 v9, 0x80000000
    v_cmp_gt_u32 vcc, 56, v1
    v_cndmask_b32 v8, v9, v8, vcc
    s_movk_i32 s29, {4*3584}
    buffer_load_dwordx4 v[148:151], v8, s[8:11], 0 offen
    buffer_load_dwordx4 v[152:155], v8, s[8:11], s29 offen
    """)
def cs_job2(k):
    for i in range(8): k.e(f"v_mov_b32 v{40+i}, 0")
    for e_ in range(2):
        k.e(f"s_waitcnt vmcnt({1-e_})")
        for d in range(4):
            t0 = 52 + 2*(d&1)
            k.e(f"v_lshlrev_b32 v{t0}, 16, v{148+4*e_+d}")
            k.e(f"v_and_b32 v{t0+1}, 0xffff0000, v{148+4*e_+d}")
            k.e(f"v_add_f32 v{40+2*d}, v{40+2*d}, v{t0}")
            k.e(f"v_add_f32 v{41+2*d}, v{41+2*d}, v{t0+1}")
    k.e("v_add_u32 v50, 14, v1"); k.e("v_lshlrev_b32 v50, 2, v50")
    k.e("v_add_u32 v49, 28, v1"); k.e("v_lshlrev_b32 v49, 2, v49")
    for i in range(8): k.e(f"ds_bpermute_b32 v{148+i}, v50, v{40+i}")
    k.e("s_waitcnt lgkmcnt(0)")
    for i in range(8): k.e(f"v_add_f32 v{40+i}, v{40+i}, v{148+i}")
    for i in range(8): k.e(f"ds_bpermute_b32 v{148+i}, v49, v{40+i}")
    k.e("s_waitcnt lgkmcnt(0)")
    for i in range(8): k.e(f"v_add_f32 v{40+i}, v{40+i}, v{148+i}")
    k.e(f"""
    v_min_u32 v50, 15, v1
    v_lshlrev_b32 v50, 5, v50
    s_lshl_b32 s24, s{S_W}, 9
    s_add_u32 s24, s24, {P1_CSP}
    v_add_u32 v50, s24, v50
    v_cmp_gt_u32 vcc, 14, v1
    s_and_saveexec_b64 s[60:61], vcc
    ds_write_b128 v50, v[40:43]
    ds_write_b128 v50, v[44:47] offset:16
    s_mov_b64 exec, s[60:61]
    """)
def cs_job3(k):
    L = k.lab("csj3")
    k.e(f"""
    s_cmp_lg_u32 s{S_W}, 0
    s_cbranch_scc1 {L}
    v_min_u32 v50, 31, v1
    v_lshlrev_b32 v50, 4, v50
    v_add_u32 v50, {P1_CSP}, v50
    """)
    for w in range(8): k.e(f"ds_read_b128 v[{104+4*w}:{107+4*w}], v50 offset:{512*w}")
    srd(k, 8, S_WS, 1<<20, add=WS_CS)
    k.e(f"""
    s_lshl_b32 s24, s72, 4
    s_lshl_b32 s29, s73, 3
    s_add_u32 s29, s29, s63
    s_add_u32 s24, s24, s29
    s_lshl_b32 s24, s24, 9
    v_lshlrev_b32 v51, 4, v1
    v_add_u32 v51, s24, v51
    v_mov_b32 v9, 0x80000000
    v_cmp_gt_u32 vcc, 28, v1
    v_cndmask_b32 v51, v9, v51, vcc
    s_waitcnt lgkmcnt(0)
    """)
    for w in range(1,8):
        for i in range(4): k.e(f"v_add_f32 v{104+i}, v{104+i}, v{104+4*w+i}")
    k.e("buffer_store_dwordx4 v[104:107], v51, s[8:11], 0 offen sc1")
    k.e(f"{L}:")
def czero(k, addr):
    k.e(f"v_mov_b32 v2, {addr}"); k.e("v_mov_b32 v5, 0"); k.e("ds_write_b32 v2, v5")
def sync(k, cnt, pubs, polls, first=False):
    L = k.lab("sync"); LNP = k.lab("nopub")
    k.e(f"""
    v_mov_b32 v2, {cnt}
    v_mov_b32 v5, 1
    """)
    for code in pubs[:1]:
        k.e(code)
        k.e("s_lshl_b32 s59, s59, 5")
        k.e("v_mov_b32 v6, s59")
    k.e(f"v_mov_b32 v7, s{S_NONCE}")
    (code, nwords) = polls[0]
    k.e(code)
    k.e(f"""
    v_and_b32 v8, {nwords-1}, v1
    v_lshlrev_b32 v8, 7, v8
    s_lshl_b32 s58, s58, 5
    v_add_u32 v8, s58, v8
    """)
    if len(polls) > 1:
        k.e(polls[1][0])
        k.e(f"""
        v_and_b32 v9, 15, v1
        v_lshlrev_b32 v9, 7, v9
        s_lshl_b32 s58, s58, 5
        v_add_u32 v9, s58, v9
        v_cmp_gt_u32 vcc, 32, v1
        v_cndmask_b32 v8, v9, v8, vcc
        """)
    if FINE == 8: stamp(k)
    k.e("s_waitcnt vmcnt(0)")
    if FINE == 8: stamp(k)
    k.e(f"""
    s_mov_b64 s[60:61], exec
    s_mov_b64 exec, 1
    ds_add_rtn_u32 v5, v2, v5
    s_waitcnt lgkmcnt(0)
    v_readfirstlane_b32 s59, v5
    s_cmp_lg_u32 s59, 7
    s_cbranch_scc1 {LNP}
    buffer_store_dword v7, v6, s[64:67], 0 offen sc1
    {LNP}:
    s_mov_b64 exec, s[60:61]
    """)
    k.e(f"s_cmp_lg_u32 s{S_W}, 0"); k.e(f"s_cbranch_scc1 {L}")
    Lp = k.lab("poll"); D = k.lab("polld")
    k.e(f"""
    s_mov_b32 s59, 0
    buffer_load_dword v55, v8, s[64:67], 0 offen sc1
    {Lp}:
    s_sleep {PSLEEP}
    buffer_load_dword v56, v8, s[64:67], 0 offen sc1
    s_waitcnt vmcnt(1)
    v_cmp_ne_u32 vcc, s{S_NONCE}, v55
    s_cmp_eq_u64 vcc, 0
    s_cbranch_scc1 {D}
    s_sleep {PSLEEP}
    buffer_load_dword v55, v8, s[64:67], 0 offen sc1
    s_waitcnt vmcnt(1)
    v_cmp_ne_u32 vcc, s{S_NONCE}, v56
    s_add_u32 s59, s59, 1
    s_cmp_eq_u64 vcc, 0
    s_cbranch_scc1 {D}
    s_cmp_lt_u32 s59, 200000
    s_cbranch_scc1 {Lp}
    {D}:
    """)
    if FINE == 8: stamp(k)
    k.e(f"{L}:")
    k.e("s_barrier")
    if FINE == 8: stamp(k)

def interleave(k, mfmas, fillers):
    n = len(mfmas); m = len(fillers); fi = 0
    for i, mf in enumerate(mfmas):
        mf()
        upto = (m*(i+1))//n
        while fi < upto:
            fillers[fi](); fi += 1

def xstats1(k):
    if os.environ.get("TLB"):
        LT = k.lab("notlb")
        k.e(f"s_cmp_lg_u32 s{S_W}, 2"); k.e(f"s_cbranch_scc1 {LT}")
        k.e("v_lshlrev_b32 v5, 18, v1")
        srd(k, 4, S_WS, 14<<20)
        k.e("buffer_load_dword v164, v5, s[4:7], 0 offen")
        for (ptr, size) in ((S_WO, 512*1024), (S_WG, 512*3584), (S_WU, 512*3584), (S_WD, 1792*1024), (S_OUT, 2<<20)):
            srd(k, 4, ptr, size)
            k.e("buffer_load_dword v164, v5, s[4:7], 0 offen")
        k.e(f"{LT}:")
    srd(k, 8, S_X, 2<<20); srd(k, 12, S_WS, 32768, add=WS_XS)
    k.e(f"""
    s_lshl_b32 s62, s2, 3
    s_add_u32 s62, s62, s{S_W}
    s_lshl_b32 s29, s62, 10
    v_lshlrev_b32 v5, 4, v1
    v_mov_b32 v152, 0
    """)
    if not os.environ.get("NOWARM"):
        srd(k, 4, S_WQKV, 512*3072)
        k.e(f"s_lshl_b32 s24, s62, 10")
        k.e("buffer_load_dwordx4 v[160:163], v5, s[4:7], s24 offen")
    k.e("buffer_load_dwordx4 v[148:151], v5, s[8:11], s29 offen")

def xstats2(k):
    LQ_ = k.lab("getn0")
    k.e(f"""
    v_mov_b32 v154, {P1_SC+712}
    ds_read_b32 v153, v154
    v_mov_b32 v156, 0
    v_mov_b32 v157, 0
    s_waitcnt vmcnt(0)
    """)
    for d in range(4):
        k.e(f"""
        v_lshlrev_b32 v154, 16, v{148+d}
        v_and_b32 v155, 0xffff0000, v{148+d}
        v_add_f32 v156, v156, v154
        v_fmac_f32 v157, v154, v154
        v_add_f32 v156, v156, v155
        v_fmac_f32 v157, v155, v155
        """)
    for perm in ("quad_perm:[1,0,3,2]", "quad_perm:[2,3,0,1]", "row_half_mirror", "row_mirror"):
        for r in (156,157): k.e(f"v_add_f32_dpp v{r}, v{r}, v{r} {perm} row_mask:0xf bank_mask:0xf")
    for r in (156,157): red16(k, r, 154); red32(k, r, 154)
    k.e(f"""
    s_waitcnt lgkmcnt(0)
    v_readfirstlane_b32 s{S_NONCE}, v153
    v_mov_b32 v158, s{S_NONCE}
    v_mov_b32 v159, 0
    s_lshl_b32 s62, s62, 4
    v_mov_b32 v152, s62
    s_mov_b64 s[60:61], exec
    s_mov_b64 exec, 1
    buffer_store_dwordx4 v[156:159], v152, s[12:15], 0 offen sc1
    s_mov_b64 exec, s[60:61]
    s_lshl_b32 s62, s62, 6
    v_lshlrev_b32 v152, 4, v1
    """)
    if not os.environ.get("NOWARM2"):
        WL = {"o":(S_WO, 512*1024), "g":(S_WG, 512*3584), "u":(S_WU, 512*3584), "d":(S_WD, 1792*1024)}
        for (ptr, size) in [WL[c] for c in os.environ.get("WARM", "")]:
            srd(k, 4, ptr, size)
            k.e("buffer_load_dwordx4 v[160:163], v152, s[4:7], s62 offen")

def p1(k):
    NS, SLOT, WOFF, nst = P1_NS, P1_SLOT, P1_WOFF, 8
    xstats1(k)
    k.e(f"""
    s_and_b32 s27, s{S_W}, 3
    s_lshr_b32 s28, s{S_W}, 2
    v_and_b32 v3, 15, v1
    v_lshrrev_b32 v4, 4, v1
    v_lshrrev_b32 v5, 1, v3
    v_xor_b32 v5, v5, v4
    v_lshlrev_b32 v5, 4, v5
    v_lshlrev_b32 v6, 7, v3
    v_add_u32 v9, v5, v6
    v_lshrrev_b32 v5, 2, v3
    v_and_b32 v6, 3, v3
    v_lshlrev_b32 v7, 3, v4
    v_add_u32 v7, v5, v7
    v_mul_u32_u24 v7, 384, v7
    v_lshrrev_b32 v5, 1, v5
    v_and_b32 v8, 1, v4
    v_lshlrev_b32 v8, 1, v8
    v_or_b32 v5, v5, v8
    v_xor_b32 v5, s27, v5
    v_lshlrev_b32 v5, 5, v5
    v_add_u32 v7, v7, v5
    v_lshlrev_b32 v6, 3, v6
    v_add_u32 v7, v7, v6
    v_add_u32 v18, {WOFF}, v7
    s_mov_b32 s55, 0x3f803f80
    """)
    k.e(f"""
    s_mul_i32 s50, s28, 3
    s_add_u32 s51, s50, 1
    s_add_u32 s52, s50, 2
    v_mov_b32 v5, {P1_SC2+3072}
    v_lshl_add_u32 v5, v3, 2, v5
    v_mov_b32 v6, 0
    ds_write_b32 v5, v6
    """)
    for t in range(3):
        k.e(f"s_lshl_b32 s24, s{50+t}, 11")
        k.e(f"v_add_u32 v{10+2*t}, s24, v9")
        k.e(f"v_xor_b32 v{11+2*t}, 64, v{10+2*t}")
    for i in range(22, 31): k.e(f"v_mov_b32 v{i}, 0")
    for i in range(36): k.e(f"v_mov_b32 v{64+i}, 0")
    for i in range(124, 148): k.e(f"v_mov_b32 v{i}, 0")
    srd(k, 16, S_WS, 2<<20, add=WS_O)
    k.e(f"""
    s_mov_b32 s49, {(-(NS-1)*SLOT) & 0xffffffff}
    s_mov_b32 s56, {SLOT}
    s_mov_b32 s38, 0
    s_mov_b32 s39, 0
    v_lshrrev_b32 v5, 3, v1
    v_and_b32 v5, 3, v5
    v_mul_u32_u24 v5, {SLOT}, v5
    v_and_b32 v6, 7, v1
    v_lshlrev_b32 v6, 4, v6
    v_add_u32 v5, v5, v6
    v_mov_b32 v32, s55
    v_mov_b32 v33, s55
    v_mov_b32 v34, s55
    v_mov_b32 v35, s55
    ds_write_b128 v5, v[32:35]
    """)
    WB = [100, 124]; XB = [112, 136]
    def body(NT, th):
        q = LQ(k)
        def read_list(jj):
            out = []
            def w(u, h):
                return lambda: q.rd(("W",jj,u), f"ds_read_b64_tr_b16 v[{WB[jj]+4*u+2*h}:{WB[jj]+4*u+2*h+1}], v18 offset:{128*u+(32*jj+4*h)*384}")
            def x(t):
                return lambda: q.rd(("X",jj,t), f"ds_read_b128 v[{XB[jj]+4*t}:{XB[jj]+4*t+3}], v{10+2*t+jj}")
            out += [x(0), w(0,0), w(0,1), w(1,0), w(1,1), w(2,0), w(2,1)]
            for t in range(1, NT): out.append(x(t))
            return out
        def dots(jj):
            out = []
            x = XB[jj]
            for d in range(4):
                t0 = 32 + 2*(d&1)
                out.append(lambda d=d,t0=t0: k.e(f"v_lshlrev_b32 v{t0}, 16, v{x+d}"))
                out.append(lambda d=d,t0=t0: k.e(f"v_and_b32 v{t0+1}, 0xffff0000, v{x+d}"))
                out.append(lambda d=d,t0=t0: k.e(f"v_add_f32 v22, v22, v{t0}"))
                out.append(lambda d=d,t0=t0: k.e(f"v_add_f32 v26, v26, v{t0+1}"))
                out.append(lambda d=d,t0=t0: k.e(f"v_fmac_f32 v23, v{t0}, v{t0}"))
                out.append(lambda d=d,t0=t0: k.e(f"v_fmac_f32 v27, v{t0+1}, v{t0+1}"))
            return out
        def step(jj, nxt, waits):
            mf = []
            for t in range(NT):
                for u in range(3):
                    def f(t=t, u=u):
                        if waits: q.wait([("W",jj,u), ("X",jj,t)])
                        a = 64+12*t+4*u; x = XB[jj]+4*t
                        k.e(f"v_mfma_f32_16x16x32_bf16 v[{a}:{a+3}], v[{WB[jj]+4*u}:{WB[jj]+4*u+3}], v[{x}:{x+3}], v[{a}:{a+3}]")
                    mf.append(f)
            rl = read_list(nxt) if nxt is not None else []
            dl = []
            fill = []
            n = len(mf)
            interleave(k, mf[:3], rl[:4])
            interleave(k, mf[3:], rl[4:] + dl)
        LOOP = k.lab("loop")
        k.e(".p2align 6")
        k.e(f"{LOOP}:")
        k.e(f"s_waitcnt lgkmcnt(0)")
        q.q = []
        if FINE == 1: stamp(k)
        k.e("s_barrier")
        if FINE == 1: stamp(k)
        k.e(f"""
        s_add_u32 s39, s39, 1
        s_cmp_ge_u32 s39, {NS}
        s_cselect_b32 s48, s49, s56
        s_cselect_b32 s39, 0, s39
        s_add_u32 s38, s38, 1
        """)
        step(1, 0, False)
        step(0, 1, True)
        for r in list(range(10, 10+2*NT)) + [18]: k.e(f"v_add_u32 v{r}, s48, v{r}")
        LXS = k.lab("xs2"); LXB = k.lab("xsb"); LXD = k.lab("xsd")
        LXN = k.lab("xsn")
        k.e(f"""
        s_cmp_le_u32 s38, 3
        s_cbranch_scc1 {LXN}
        {LXB}:
        s_cmp_lt_u32 s38, {nst}
        s_cbranch_scc1 {LOOP}
        s_branch {LXD}
        {LXN}:
        s_cmp_eq_u32 s38, 3
        s_cbranch_scc1 {LXS}
        s_cmp_lg_u32 s{S_W}, 0
        s_cbranch_scc1 {LXB}
        s_cmp_eq_u32 s38, 2
        s_cbranch_scc1 {LXN}_2
        buffer_load_dword v153, v152, s[68:71], 0 offen sc1
        s_branch {LXB}
        {LXN}_2:
        s_mov_b32 s59, 0
        {LXN}_3:
        s_waitcnt vmcnt(0)
        v_readfirstlane_b32 s{S_NONCE}, v153
        s_add_u32 s59, s59, 1
        s_cmp_lg_u32 s{S_NONCE}, 0
        s_cbranch_scc1 {LXN}_4
        buffer_load_dword v153, v152, s[68:71], 0 offen sc1
        s_cmp_lt_u32 s59, 400000
        s_cbranch_scc1 {LXN}_3
        {LXN}_4:
        v_mov_b32 v154, {P1_SC+712}
        ds_write_b32 v154, v153
        s_branch {LXB}
        {LXS}:
        """)
        xstats2(k)
        k.e(f"""
        s_branch {LXB}
        {LXD}:
        s_waitcnt lgkmcnt(0)
        """)
        q.q = []
        k.e(f"""
        v_lshlrev_b32 v31, 3, v3
        v_add_u32 v31, {P1_SC}, v31
        v_mul_u32_u24 v40, {RS}, v3
        v_lshl_add_u32 v40, v4, 3, v40
        s_lshl_b32 s57, s27, 5
        v_add_u32 v40, s57, v40
        """)
        for t in range(NT):
            k.e(f"s_lshl_b32 s57, s{50+t}, 7")
            k.e(f"v_add_u32 v33, s57, v31")
            k.e(f"ds_read_b64 v[{34+2*t}:{35+2*t}], v33")
            k.e(f"s_mul_i32 s57, s{50+t}, {16*RS}")
            k.e(f"v_add_u32 v{42+t}, s57, v40")
        step(1, None, False)
        k.e(f"""
        s_lshl_b32 s57, s27, 6
        s_add_u32 s57, s57, {P1_SC2}
        v_lshlrev_b32 v32, 4, v4
        v_add_u32 v32, s57, v32
        s_lshl_b32 s57, s27, 2
        s_add_u32 s57, s57, {P1_SC2+3072}
        v_mov_b32 v30, s57
        """)
        if th == 0:
            for u in range(3):
                for i in range(4): k.e(f"v_mov_b32_dpp v{124+4*u+i}, v{64+4*u+i} row_newbcast:0 row_mask:0xf bank_mask:0xf")
            for u in range(3): k.e(f"ds_write_b128 v32, v[{124+4*u}:{127+4*u}] offset:{256*u}")
            k.e("v_mov_b32 v29, 1"); k.e("ds_write_b32 v30, v29")
            k.e("s_waitcnt lgkmcnt(4)")
        else:
            LW_ = k.lab("csw")
            k.e(f"""
            {LW_}:
            ds_read_b32 v29, v30
            s_waitcnt lgkmcnt(0)
            v_readfirstlane_b32 s57, v29
            s_cmp_eq_u32 s57, 0
            s_cbranch_scc1 {LW_}
            """)
            for u in range(3): k.e(f"ds_read_b128 v[{124+4*u}:{127+4*u}], v32 offset:{256*u}")
            k.e("s_waitcnt lgkmcnt(0)")
        for u in range(3):
            for t in range(NT):
                if u == 0 and t == 0 and th == 0: continue
                a = 64+12*t+4*u
                for i in range(4): k.e(f"v_mul_f32 v{a+i}, v{35+2*t}, v{a+i}")
                for i in range(4): k.e(f"v_fmac_f32 v{a+i}, v{34+2*t}, v{124+4*u+i}")
                k.e(f"v_cvt_pk_bf16_f32 v{a}, v{a}, v{a+1}")
                k.e(f"v_cvt_pk_bf16_f32 v{a+1}, v{a+2}, v{a+3}")
                k.e(f"ds_write_b64 v{42+t}, v[{a}:{a+1}] offset:{128*u}")
    L1 = k.lab("th1"); LA = k.lab("attn")
    k.e("s_cmp_eq_u32 s28, 0"); k.e(f"s_cbranch_scc0 {L1}")
    body(3, 0)
    k.e(f"s_branch {LA}")
    k.e(f"{L1}:")
    body(2, 1)
    k.e(f"{LA}:")
    czero(k, 32256)
    k.e("s_waitcnt lgkmcnt(0)")
    k.e("s_barrier")

def attention(k):
    LG = 96
    if os.environ.get("WARMLATE"):
        for (ptr, size) in ((S_WG, 512*3584), (S_WU, 512*3584), (S_WD, 1792*1024)):
            srd(k, 4, ptr, size)
            k.e("buffer_load_dwordx4 v[160:163], v152, s[4:7], s62 offen")
    k.e(f"""
    v_lshrrev_b32 v2, 3, v0
    v_lshrrev_b32 v3, 1, v0
    v_and_b32 v3, 3, v3
    v_and_b32 v4, 1, v0
    v_add_u32 v5, 16, v2
    v_mul_u32_u24 v5, {RS}, v5
    v_lshlrev_b32 v6, 5, v3
    v_add_u32 v5, v5, v6
    v_mul_u32_u24 v6, {8*RS}, v4
    v_sub_u32 v7, v5, v6
    v_subrev_u32 v7, {6*RS}, v7
    v_lshlrev_b32 v8, 4, v4
    v_add_u32 v9, v7, v8
    v_xor_b32 v10, 1, v4
    v_mul_u32_u24 v10, {8*RS}, v10
    v_sub_u32 v10, v5, v10
    v_subrev_u32 v10, {6*RS}, v10
    v_add_u32 v10, v10, v8
    ds_read_b128 v[16:19], v5
    ds_read_b128 v[20:23], v5 offset:16
    """)
    for i in range(4):
        k.e(f"ds_read_b128 v[{24+8*i}:{27+8*i}], v7 offset:{(6-2*i)*RS+128}")
        k.e(f"ds_read_b128 v[{28+8*i}:{31+8*i}], v7 offset:{(6-2*i)*RS+144}")
    for i in range(4): k.e(f"ds_read_b128 v[{64+4*i}:{67+4*i}], v9 offset:{(6-2*i)*RS+256}")
    k.e("s_waitcnt lgkmcnt(4)")
    for i in range(4): k.e(f"ds_read_b128 v[{80+4*i}:{83+4*i}], v10 offset:{(6-2*i)*RS+256}")
    for i in range(4): k.e(f"v_mov_b32 v{LG+i}, 0")
    for d in range(8):
        for i in range(4): k.e(f"v_dot2_f32_bf16 v{LG+i}, v{16+d}, v{24+8*i+d}, v{LG+i}")
    k.e(f"""
    s_lshl_b32 s24, s{S_RB64}, 6
    v_add_u32 v11, s24, v2
    v_lshlrev_b32 v12, 3, v4
    v_sub_u32 v11, v11, v12
    s_mov_b32 s57, {f2u(-4e9)}
    v_mov_b32 v13, s57
    v_cvt_pk_bf16_f32 v{LG+4}, v{LG}, v{LG+1}
    v_cvt_pk_bf16_f32 v{LG+5}, v{LG+2}, v{LG+3}
    v_lshlrev_b32 v{LG}, 16, v{LG+4}
    v_and_b32 v{LG+1}, 0xffff0000, v{LG+4}
    v_lshlrev_b32 v{LG+2}, 16, v{LG+5}
    v_and_b32 v{LG+3}, 0xffff0000, v{LG+5}
    """)
    for i in range(4):
        k.e(f"v_cmp_gt_i32 vcc, {2*i}, v11")
        k.e(f"v_cndmask_b32 v{LG+i}, v{LG+i}, v13, vcc")
    for i in range(4): k.e(f"v_mov_b32_dpp v{LG+4+i}, v{LG+i} quad_perm:[1,0,3,2] row_mask:0xf bank_mask:0xf")
    c = 0.25*1.4426950408889634
    k.e(f"""
    v_max3_f32 v12, v{LG}, v{LG+1}, v{LG+2}
    v_max3_f32 v12, v12, v{LG+3}, v{LG+4}
    v_max3_f32 v12, v12, v{LG+5}, v{LG+6}
    v_max_f32 v12, v12, v{LG+7}
    s_mov_b32 s57, {f2u(c)}
    v_mul_f32 v12, s57, v12
    """)
    for i in range(8): k.e(f"v_fma_f32 v{LG+i}, v{LG+i}, s57, -v12")
    for i in range(8): k.e(f"v_exp_f32 v{LG+i}, v{LG+i}")
    k.e(f"""
    v_add_f32 v12, v{LG}, v{LG+1}
    v_add_f32 v13, v{LG+2}, v{LG+3}
    v_add_f32 v14, v{LG+4}, v{LG+5}
    v_add_f32 v15, v{LG+6}, v{LG+7}
    v_add_f32 v12, v12, v13
    v_add_f32 v14, v14, v15
    v_add_f32 v12, v12, v14
    v_rcp_f32 v12, v12
    """)
    for i in range(8): k.e(f"v_mul_f32 v{LG+i}, v{LG+i}, v12")
    for i in range(8):
        k.e(f"v_cvt_pk_bf16_f32 v{24+i}, v{LG+i}, 0")
        k.e(f"v_lshlrev_b32 v{32+i}, 16, v{24+i}")
    for i in range(8): k.e(f"v_mov_b32 v{40+i}, 0")
    k.e("s_waitcnt lgkmcnt(0)")
    for i in range(8):
        for d in range(4):
            k.e(f"v_dot2_f32_bf16 v{40+2*d}, v{64+4*i+d}, v{24+i}, v{40+2*d}")
            k.e(f"v_dot2_f32_bf16 v{41+2*d}, v{64+4*i+d}, v{32+i}, v{41+2*d}")
    for d in range(4): k.e(f"v_cvt_pk_bf16_f32 v{48+d}, v{40+2*d}, v{41+2*d}")
    k.e(f"""
    v_add_u32 v11, s24, v2
    v_lshlrev_b32 v11, 10, v11
    v_and_b32 v12, 7, v0
    v_lshlrev_b32 v12, 4, v12
    v_add_u32 v11, v11, v12
    s_lshl_b32 s26, s{S_CB}, 7
    v_add_u32 v11, s26, v11
    buffer_store_dwordx4 v[48:51], v11, s[16:19], 0 offen{SC1}
    """)


def g_common(k):
    k.e(f"""
    s_and_b32 s27, s{S_W}, 1
    s_lshr_b32 s28, s{S_W}, 1
    s_and_b32 s28, s28, 1
    s_lshr_b32 s29, s{S_W}, 2
    v_and_b32 v3, 31, v1
    s_lshl_b32 s24, s27, 5
    v_add_u32 v3, s24, v3
    v_lshrrev_b32 v4, 5, v1
    v_lshrrev_b32 v5, 4, v1
    v_and_b32 v6, 1, v5
    v_lshrrev_b32 v5, 1, v5
    v_and_b32 v7, 15, v1
    v_lshrrev_b32 v8, 2, v7
    v_and_b32 v7, 3, v7
    v_lshl_add_u32 v5, v5, 3, v8
    v_lshlrev_b32 v5, 7, v5
    v_lshrrev_b32 v8, 1, v8
    v_xor_b32 v8, s28, v8
    v_lshl_add_u32 v5, v8, 6, v5
    v_lshl_add_u32 v5, v6, 5, v5
    v_lshl_add_u32 v9, v7, 3, v5
    """)
    for i in range(16): k.e(f"v_mov_b32 v{32+i}, 0")
    for i in range(16): k.e(f"v_mov_b32 v{96+i}, 0")
def g_mfma(k, b): k.e(f"v_mfma_f32_32x32x16_bf16 v[32:47], v[{b+4}:{b+7}], v[{b}:{b+3}], v[32:47]")
def p2_main(k):
    g_common(k)
    k.e(f"""
    v_and_b32 v5, 15, v3
    v_xor_b32 v5, v5, v4
    v_lshlrev_b32 v5, 4, v5
    v_lshl_add_u32 v5, v3, 8, v5
    s_lshl_b32 s24, s29, 7
    v_xor_b32 v5, s24, v5
    v_add_u32 v10, {P2_X}, v5
    v_xor_b32 v11, 32, v10
    v_xor_b32 v12, 64, v10
    v_xor_b32 v13, 0x60, v10
    s_lshl_b32 s24, s29, 13
    s_add_u32 s24, s24, {P2_W}
    v_add_u32 v14, s24, v9
    v_lshrrev_b32 v5, 3, v0
    s_lshl_b32 s25, s{S_RB64}, 6
    v_add_u32 v5, s25, v5
    v_and_b32 v6, 7, v0
    v_lshlrev_b32 v6, 4, v6
    v_lshl_add_u32 v5, v5, 10, v6
    s_lshl_b32 s26, s{S_CB}, 7
    v_add_u32 v57, s26, v5
    """)
    srd(k, 12, S_X, 2<<20)
    k.e(f"buffer_load_dwordx4 v[{VRES}:{VRES+3}], v57, s[12:15], 0 offen")
    g_pre(k, lambda: srd(k, 16, S_WS, 2<<20, add=WS_H), True, 0)
    BUF = [80, 96]
    def reads(st, hf):
        for j2 in range(2):
            j = 2*hf + j2; b = BUF[hf] + 8*j2
            k.e(f"ds_read_b128 v[{b}:{b+3}], v{10+j} offset:{16384*st}")
            k.e(f"ds_read_b64_tr_b16 v[{b+4}:{b+5}], v14 offset:{16384*st+2048*j}")
            k.e(f"ds_read_b64_tr_b16 v[{b+6}:{b+7}], v14 offset:{16384*st+2048*j+512}")
    for st in range(4):
        k.e("s_waitcnt lgkmcnt(0)"); k.e("s_barrier")
        reads(st, 0)
        if st: g_mfma(k, 96); g_mfma(k, 104)
        reads(st, 1)
        k.e("s_waitcnt lgkmcnt(6)")
        g_mfma(k, 80); g_mfma(k, 88)
    k.e("s_waitcnt lgkmcnt(0)")
    g_mfma(k, 96); g_mfma(k, 104)
def p4_main(k):
    g_common(k)
    k.e(f"""
    v_bfe_u32 v5, v3, 3, 1
    v_xor_b32 v5, v5, v4
    v_lshlrev_b32 v5, 4, v5
    v_lshl_add_u32 v5, v3, 5, v5
    s_lshl_b32 s24, s29, 13
    s_add_u32 s24, s24, {P4_X}
    v_add_u32 v10, s24, v5
    s_lshl_b32 s24, s29, 13
    s_add_u32 s24, s24, {P4_W}
    v_add_u32 v14, s24, v9
    s_mov_b32 s49, {(-(P4_NS-1)*P4_SL) & 0xffffffff}
    s_mov_b32 s56, {P4_SL}
    s_mov_b32 s38, 0
    s_mov_b32 s39, 0
    """)
    g_pre(k, lambda: srd(k, 16, S_OUT, 2<<20), False, 22528)
    BUF = [80, 96]
    def body(NK):
        nb = NK - 2
        def reads(hf):
            for j2 in range(2 if hf == 0 else nb):
                j = 2*hf + j2; b = BUF[hf] + 8*j2
                k.e(f"ds_read_b128 v[{b}:{b+3}], v10 offset:{2048*j}")
                k.e(f"ds_read_b64_tr_b16 v[{b+4}:{b+5}], v14 offset:{2048*j}")
                k.e(f"ds_read_b64_tr_b16 v[{b+6}:{b+7}], v14 offset:{2048*j+512}")
        LOOP = k.lab("gloop")
        k.e(".p2align 6")
        k.e(f"""
        {LOOP}:
        s_waitcnt lgkmcnt(0)
        s_barrier
        """)
        reads(0)
        k.e(f"""
        s_add_u32 s39, s39, 1
        s_cmp_ge_u32 s39, {P4_NS}
        s_cselect_b32 s48, s49, s56
        s_cselect_b32 s39, 0, s39
        s_add_u32 s38, s38, 1
        """)
        for j2 in range(nb): g_mfma(k, 96+8*j2)
        reads(1)
        k.e(f"s_waitcnt lgkmcnt({3*nb})")
        g_mfma(k, 80); g_mfma(k, 88)
        k.e(f"""
        v_add_u32 v10, s48, v10
        v_add_u32 v14, s48, v14
        s_cmp_lt_u32 s38, 16
        s_cbranch_scc1 {LOOP}
        s_waitcnt lgkmcnt(0)
        """)
        for j2 in range(nb): g_mfma(k, 96+8*j2)
    L3 = k.lab("p4b"); LE = k.lab("p4e")
    k.e("s_cmp_eq_u32 s29, 0"); k.e(f"s_cbranch_scc0 {L3}")
    body(4)
    k.e(f"s_branch {LE}")
    k.e(f"{L3}:")
    body(3)
    k.e(f"{LE}:")
def g_pre(k, osrd_fn, hstats=False, GB=0):
    osrd_fn()
    k.e(f"""
    v_mul_u32_u24 v5, {GS_RS}, v3
    v_lshl_add_u32 v5, v4, 4, v5
    s_mul_i32 s24, s29, {64*GS_RS}
    s_lshl_b32 s30, s28, 7
    s_add_u32 s24, s24, s30
    s_add_u32 s24, s24, {GB}
    v_add_u32 v16, s24, v5
    v_lshrrev_b32 v6, 3, v0
    v_mul_u32_u24 v5, {GS_RS}, v6
    v_and_b32 v7, 7, v0
    v_lshl_add_u32 v5, v7, 5, v5
    v_add_u32 v17, {GB}, v5
    """)
    if hstats:
        k.e(f"""
        s_lshl_b32 s24, s{S_RB64}, 6
        v_add_u32 v6, s24, v6
        v_lshlrev_b32 v6, 6, v6
        s_lshl_b32 s24, s{S_CB}, 3
        v_add_u32 v6, s24, v6
        v_mov_b32 v5, 0x80000000
        v_cmp_eq_u32 vcc, 0, v7
        v_cndmask_b32 v18, v5, v6, vcc
        """)
def g_epi(k, sc, hstats=False):
    for q in range(4): k.e(f"ds_write_b128 v16, v[{32+4*q}:{35+4*q}] offset:{32*q}")
    if hstats:
        czero(k, 40960)
        srd(k, 12, S_WS, 131072, add=WS_HS)
    k.e("s_waitcnt vmcnt(0)")
    for p in range(4):
        k.e(f"v_lshlrev_b32 v{64+2*p}, 16, v{VRES+p}")
        k.e(f"v_and_b32 v{65+2*p}, 0xffff0000, v{VRES+p}")
    k.e("s_waitcnt lgkmcnt(0)")
    k.e("s_barrier")
    k.e(f"""
    ds_read_b128 v[32:35], v17
    ds_read_b128 v[40:43], v17 offset:{64*GS_RS}
    ds_read_b128 v[36:39], v17 offset:16
    ds_read_b128 v[44:47], v17 offset:{64*GS_RS+16}
    s_waitcnt lgkmcnt(2)
    """)
    for i in range(4): k.e(f"v_add_f32 v{32+i}, v{32+i}, v{40+i}")
    for i in range(4): k.e(f"v_add_f32 v{32+i}, v{32+i}, v{64+i}")
    k.e("s_waitcnt lgkmcnt(0)")
    for i in range(4,8): k.e(f"v_add_f32 v{32+i}, v{32+i}, v{40+i}")
    for i in range(4,8): k.e(f"v_add_f32 v{32+i}, v{32+i}, v{64+i}")
    for p in range(4): k.e(f"v_cvt_pk_bf16_f32 v{VRES+p}, v{32+2*p}, v{33+2*p}")
    k.e(f"buffer_store_dwordx4 v[{VRES}:{VRES+3}], v57, s[16:19], 0 offen{sc}")
    if hstats:
        k.e("""
        v_add_f32 v44, v32, v33
        v_mul_f32 v45, v32, v32
        v_add_f32 v46, v34, v35
        v_mul_f32 v47, v33, v33
        v_add_f32 v44, v44, v36
        v_fmac_f32 v45, v34, v34
        v_add_f32 v46, v46, v37
        v_fmac_f32 v47, v35, v35
        v_add_f32 v44, v44, v38
        v_fmac_f32 v45, v36, v36
        v_add_f32 v46, v46, v39
        v_fmac_f32 v47, v37, v37
        v_add_f32 v44, v44, v46
        v_fmac_f32 v45, v38, v38
        v_fmac_f32 v47, v39, v39
        v_add_f32 v45, v45, v47
        """)
        for perm in ("quad_perm:[1,0,3,2]", "quad_perm:[2,3,0,1]", "row_half_mirror"):
            for r in (44,45): k.e(f"v_add_f32_dpp v{r}, v{r}, v{r} {perm} row_mask:0xf bank_mask:0xf")
        k.e("buffer_store_dwordx2 v[44:45], v18, s[12:15], 0 offen sc1")

def p3_main(k):
    nst = 8
    czero(k, 7168)
    srd(k, 16, S_WS, 7<<20, add=WS_HH)
    k.e(f"""
    s_lshl_b32 s25, s{S_RB128}, 7
    s_and_b32 s27, s{S_W}, 3
    s_lshr_b32 s28, s{S_W}, 2
    v_and_b32 v3, 31, v1
    s_lshl_b32 s29, s27, 5
    v_add_u32 v3, s29, v3
    v_lshrrev_b32 v4, 5, v1
    v_lshrrev_b32 v5, 1, v3
    v_and_b32 v5, 7, v5
    v_xor_b32 v5, v5, v4
    v_lshlrev_b32 v5, 4, v5
    v_lshlrev_b32 v6, 7, v3
    v_add_u32 v5, v6, v5
    v_add_u32 v16, {P3_X}, v5
    v_xor_b32 v17, 32, v16
    v_xor_b32 v18, 64, v16
    v_xor_b32 v19, 0x60, v16
    v_lshrrev_b32 v5, 4, v1
    v_and_b32 v6, 1, v5
    v_lshrrev_b32 v5, 1, v5
    v_and_b32 v7, 15, v1
    v_lshrrev_b32 v8, 2, v7
    v_and_b32 v7, 3, v7
    v_lshlrev_b32 v5, 3, v5
    v_add_u32 v5, v5, v8
    v_mul_u32_u24 v5, 224, v5
    v_mul_u32_u24 v6, {P3_UOFF}, v6
    v_add_u32 v5, v5, v6
    v_lshlrev_b32 v7, 3, v7
    v_add_u32 v5, v5, v7
    v_add_u32 v9, {P3_W}, v5
    v_lshlrev_b32 v5, 5, v3
    v_lshl_add_u32 v5, v4, 4, v5
    s_lshl_b32 s24, s{S_RB128}, 4
    s_add_u32 s24, s24, s{S_FB}
    s_mul_i32 s24, s24, 28672
    v_add_u32 v24, s24, v5
    s_mov_b32 s55, 0x3f803f80
    """)
    k.e("""
    s_cmp_eq_u32 s27, 3
    s_cselect_b32 s60, 0, s27
    s_add_u32 s61, s60, 1
    s_cmp_ge_u32 s61, 3
    s_cselect_b32 s54, 3, 0
    s_sub_u32 s61, s61, s54
    s_add_u32 s62, s60, 2
    s_cmp_ge_u32 s62, 3
    s_cselect_b32 s54, 3, 0
    s_sub_u32 s62, s62, s54
    s_add_u32 s60, s60, 4
    s_add_u32 s61, s61, 4
    s_add_u32 s62, s62, 4
    s_add_u32 s51, s27, 1
    s_and_b32 s51, s51, 3
    s_add_u32 s52, s27, 2
    s_and_b32 s52, s52, 3
    s_add_u32 s53, s27, 3
    s_and_b32 s53, s53, 3
    s_cmp_eq_u32 s28, 0
    s_cselect_b32 s50, s27, s60
    s_cselect_b32 s51, s51, s61
    s_cselect_b32 s52, s52, s62
    """)
    for q in range(4):
        k.e(f"s_lshl_b32 s24, s{50+q}, 5"); k.e(f"v_add_u32 v{20+q}, s24, v9")
    for i in range(26, 32): k.e(f"v_mov_b32 v{i}, 0")
    for i in range(64): k.e(f"v_mov_b32 v{64+i}, 0")
    for i in range(132,136): k.e(f"v_mov_b32 v{i}, 0")
    for i in range(152,168): k.e(f"v_mov_b32 v{i}, 0")
    k.e(f"""
    s_mov_b32 s49, {(-2*P3_XS) & 0xffffffff}
    s_mov_b32 s46, {(-2*P3_WS) & 0xffffffff}
    s_mov_b32 s56, {P3_XS}
    s_mov_b32 s45, {P3_WS}
    s_mov_b32 s38, 0
    s_mov_b32 s39, 0
    """)
    XB = [128, 132]; WBB = [136, 152]
    def body(NQ, nh):
        def rdX(j): k.e(f"ds_read_b128 v[{XB[j&1]}:{XB[j&1]+3}], v{16+j}")
        def rdW(j,q):
            WB = WBB[j&1]
            k.e(f"ds_read_b64_tr_b16 v[{WB+4*q}:{WB+4*q+1}], v{20+q} offset:{3584*j}")
            k.e(f"ds_read_b64_tr_b16 v[{WB+4*q+2}:{WB+4*q+3}], v{20+q} offset:{3584*j+896}")
        def step(j, nxt, waits):
            x = XB[j&1]; WB = WBB[j&1]
            for q in range(NQ):
                if waits: k.e(f"s_waitcnt lgkmcnt({2*(NQ-1) + (1 if q>=1 else 0)})")
                k.e(f"v_mfma_f32_32x32x16_bf16 v[{64+16*q}:{79+16*q}], v[{WB+4*q}:{WB+4*q+3}], v[{x}:{x+3}], v[{64+16*q}:{79+16*q}]")
                if nxt is not None:
                    if q == 0: rdX(nxt)
                    rdW(nxt, q)
        LOOP = k.lab("loop3")
        k.e(".p2align 6")
        k.e(f"""
        {LOOP}:
        s_waitcnt lgkmcnt(0)
        """)
        if FINE == 3: stamp(k)
        k.e("s_barrier")
        if FINE == 3: stamp(k)
        k.e(f"""
        s_add_u32 s39, s39, 1
        s_cmp_ge_u32 s39, 3
        s_cselect_b32 s48, s49, s56
        s_cselect_b32 s47, s46, s45
        s_cselect_b32 s39, 0, s39
        s_add_u32 s38, s38, 1
        """)
        step(3, 0, False)
        step(0, 1, True); step(1, 2, True); step(2, 3, True)
        for r in range(16, 20): k.e(f"v_add_u32 v{r}, s48, v{r}")
        for q in range(NQ): k.e(f"v_add_u32 v{20+q}, s47, v{20+q}")
        k.e(f"""
        s_cmp_lt_u32 s38, {nst}
        s_cbranch_scc1 {LOOP}
        s_waitcnt lgkmcnt(0)
        """)
        step(3, None, False)
    L3 = k.lab("p3b"); LE = k.lab("p3e")
    k.e("s_cmp_eq_u32 s28, 0"); k.e(f"s_cbranch_scc0 {L3}")
    body(4, 0)
    k.e(f"s_branch {LE}")
    k.e(f"{L3}:")
    body(3, 1)
    k.e(f"{LE}:")
    k.e("s_barrier")
def p3_epi(k):
    k.e(f"""
    v_lshlrev_b32 v33, 3, v3
    v_add_u32 v33, {P3_ST}, v33
    ds_read_b64 v[30:31], v33
    """)
    for q in range(4):
        k.e(f"s_lshl_b32 s24, s{50+q}, 5"); k.e(f"s_add_u32 s24, s24, {40960 - P3_W}"); k.e(f"v_add_u32 v{20+q}, s24, v9")
    for q in range(4):
        k.e(f"ds_read_b64_tr_b16 v[{136+4*q}:{137+4*q}], v{20+q}")
        k.e(f"ds_read_b64_tr_b16 v[{138+4*q}:{139+4*q}], v{20+q} offset:896")
    k.e(f"""
    s_waitcnt lgkmcnt(8)
    v_xor_b32 v30, 0x80000000, v30
    v_lshrrev_b32 v129, 16, v30
    v_or_b32 v128, v129, v30
    v_cmp_eq_u32 vcc, 0, v4
    v_cndmask_b32 v128, 0, v128, vcc
    v_cndmask_b32 v129, 0, v129, vcc
    v_mov_b32 v130, 0
    v_mov_b32 v131, 0
    v_mul_f32 v32, v31, v31
    v_mul_f32 v34, {f2u(-2.302208198)}, v31
    v_mul_f32 v35, v32, v31
    v_mul_f32 v35, {f2u(-0.1029432397)}, v35
    v_rcp_f32 v36, v32
    s_waitcnt lgkmcnt(0)
    """)
    for q in range(4):
        k.e(f"v_mfma_f32_32x32x16_bf16 v[{64+16*q}:{79+16*q}], v[{136+4*q}:{139+4*q}], v[128:131], v[{64+16*q}:{79+16*q}]")
    for q in range(4):
        LS = k.lab("skq")
        if q == 3:
            k.e("s_cmp_eq_u32 s28, 1"); k.e(f"s_cbranch_scc1 {LS}")
        A = 64+16*q
        for i in range(8): k.e(f"v_mul_f32 v{144+i}, v{A+i}, v{A+i}")
        for i in range(8): k.e(f"v_fma_f32 v{144+i}, v{144+i}, v35, v34")
        for i in range(8): k.e(f"v_mul_f32 v{144+i}, v{A+i}, v{144+i}")
        for i in range(8): k.e(f"v_exp_f32 v{144+i}, v{144+i}")
        for i in range(8): k.e(f"v_mul_f32 v{A+i}, v{A+i}, v{A+8+i}")
        for i in range(8): k.e(f"v_fma_f32 v{144+i}, v{144+i}, v36, v36")
        for i in range(8): k.e(f"v_rcp_f32 v{144+i}, v{144+i}")
        k.e(f"s_lshl_b32 s57, s{50+q}, 12")
        for i in range(8): k.e(f"v_mul_f32 v{A+i}, v{A+i}, v{144+i}")
        for i in range(0,8,2): k.e(f"v_cvt_pk_bf16_f32 v{160+i//2}, v{A+i}, v{A+i+1}")
        k.e("v_permlane32_swap_b32 v160, v162")
        k.e("v_permlane32_swap_b32 v161, v163")
        k.e(f"buffer_store_dwordx4 v[160:163], v24, s[16:19], s57 offen{SC1}")
        if q == 3: k.e(f"{LS}:")

def build():
    k = Kern(NAME + "_kernel")
    END = "L_end"
    k.e(f"""
    s_cmp_ge_u32 s2, 256
    s_cbranch_scc1 {END}
    s_load_dwordx8 s[84:91], s[0:1], 0
    s_load_dwordx8 s[92:99], s[0:1], 32
    s_load_dwordx4 s[80:83], s[0:1], 64
    s_memrealtime s[100:101]
    v_and_b32 v1, 63, v0
    v_lshrrev_b32 v2, 6, v0
    s_nop 0
    v_readfirstlane_b32 s{S_W}, v2
    """)
    if not os.environ.get("NOCP"):
        LCP = k.lab("nocp")
        k.e(f"""
        s_cmp_lg_u32 s{S_W}, 1
        s_cbranch_scc1 {LCP}
        s_getpc_b64 s[60:61]
        s_and_b32 s60, s60, 0xffffff00
        s_sub_u32 s60, s60, CODEOFF
        s_subb_u32 s61, s61, 0
        s_lshr_b32 s24, s2, 3
        s_min_u32 s24, s24, CODEKB
        s_lshl_b32 s24, s24, 10
        v_lshlrev_b32 v5, 4, v1
        v_add_u32 v5, s24, v5
        global_load_dwordx4 v[164:167], v5, s[60:61]
        {LCP}:
        """)
    k.e(f"""
    s_and_b32 s3, s2, 7
    s_lshr_b32 s23, s2, 3
    s_and_b32 s21, s3, 3
    s_lshr_b32 s22, s3, 2
    s_lshl_b32 s{S_RB128}, s21, 2
    s_lshr_b32 s24, s23, 3
    s_add_u32 s{S_RB128}, s{S_RB128}, s24
    s_and_b32 s24, s23, 7
    s_lshl_b32 s{S_RB64}, s{S_RB128}, 1
    s_and_b32 s25, s24, 1
    s_add_u32 s{S_RB64}, s{S_RB64}, s25
    s_lshl_b32 s{S_CB}, s22, 2
    s_lshr_b32 s25, s24, 1
    s_add_u32 s{S_CB}, s{S_CB}, s25
    s_lshl_b32 s{S_FB}, s22, 3
    s_add_u32 s{S_FB}, s{S_FB}, s24
    s_sub_u32 s{S_J}, s{S_W}, 8
    s_mov_b32 s78, 0
    s_waitcnt lgkmcnt(0)
    """)
    srd(k, 64, S_WS, 1<<20, add=WS_F)
    srd(k, 68, S_DBG, 256)
    LN = k.lab("nonce")
    k.e(f"""
    s_or_b32 s24, s2, s{S_W}
    s_cmp_lg_u32 s24, 0
    s_cbranch_scc1 {LN}
    s_or_b32 s100, s100, 1
    v_mov_b32 v2, 0
    v_mov_b32 v3, s100
    buffer_store_dword v3, v2, s[68:71], 0 offen sc1
    {LN}:
    """)
    stamp(k, True)
    LC = k.lab("compute"); LD = k.lab("done")
    k.e(f"s_cmp_lt_u32 s{S_W}, 8"); k.e(f"s_cbranch_scc1 {LC}")
    loader(k)
    k.e(f"s_branch {LD}")
    k.e(f"{LC}:")
    p1(k); stamp(k)
    attention(k); stamp(k)
    sync(k, 32256, [f"s_lshl_b32 s59, s{S_RB64}, 7\ns_lshl_b32 s58, s{S_CB}, 2\ns_add_u32 s59, s59, s58"],
            [(f"s_lshl_b32 s58, s{S_RB64}, 7", 8)])
    p2_main(k); stamp(k)
    g_epi(k, SC1, True)
    sync(k, 40960, [f"s_lshr_b32 s59, s{S_RB64}, 1\ns_lshl_b32 s59, s59, 7\ns_add_u32 s59, s59, 8192\ns_and_b32 s58, s{S_RB64}, 1\ns_lshl_b32 s58, s58, 3\ns_add_u32 s58, s58, s{S_CB}\ns_lshl_b32 s58, s58, 2\ns_add_u32 s59, s59, s58"],
            [(f"s_lshl_b32 s58, s{S_RB128}, 7\ns_add_u32 s58, s58, 8192", 16), (f"s_lshl_b32 s58, s{S_FB}, 7\ns_add_u32 s58, s58, 24576", 16)])
    stamp(k)
    p3_main(k); stamp(k)
    p3_epi(k); stamp(k)
    sync(k, 7168, [f"s_lshl_b32 s59, s{S_RB128}, 7\ns_add_u32 s59, s59, 16384\ns_lshl_b32 s58, s{S_FB}, 2\ns_add_u32 s59, s59, s58"],
            [(f"s_lshr_b32 s58, s{S_RB64}, 1\ns_lshl_b32 s58, s58, 7\ns_add_u32 s58, s58, 16384", 16)])
    p4_main(k); stamp(k)
    g_epi(k, "", False)
    k.e(f"{LD}:")
    if STAMP:
        k.e("s_waitcnt vmcnt(0)")
        stamp(k, True)
        srd(k, 4, S_WS, 1<<20, add=32<<20)
        k.e(f"""
        s_lshl_b32 s24, s2, 4
        s_add_u32 s24, s24, s{S_W}
        s_lshl_b32 s24, s24, 8
        v_lshlrev_b32 v2, 2, v1
        v_add_u32 v2, s24, v2
        buffer_store_dword v63, v2, s[4:7], 0 offen
        """)
    k.e(f"{END}:")
    k.e("s_endpgm")
    return k

if __name__ == "__main__":
    k = build()
    if FINE == 9:
        out_l = []
        for ln in k.lines:
            out_l.append(ln)
            if ln == "s_barrier":
                out_l += ["s_memrealtime s[100:101]" if os.environ.get("RT") else "s_memtime s[100:101]", "s_waitcnt lgkmcnt(0)", "v_cmp_eq_u32 vcc, s78, v1", "v_mov_b32 v62, s100", "v_cndmask_b32 v63, v63, v62, vcc", "s_add_u32 s78, s78, 1"]
        k.lines = out_l
    hdr = open("cdna_kernels/"+NAME+".s.ref").read().split("; Override launch")[0]
    out = hdr + "; @launch grid=(256,1,1) block=(768,1,1) lds=163840\n"
    out += '.amdgcn_target "amdgcn-amd-amdhsa--gfx950"\n'
    out += kernel_text(k, 168)
    import subprocess, re
    tmp = out.replace("CODEOFF", "0x100").replace("CODEKB", "1")
    open("_t.s","w").write(tmp)
    subprocess.run(["clang","-x","assembler","-target","amdgcn-amd-amdhsa","-mcpu=gfx950","-c","_t.s","-o","_t.o"], check=True)
    dis = subprocess.run(["llvm-objdump","-d","--mcpu=gfx950","_t.o"], capture_output=True, text=True).stdout
    m = re.search(r"s_getpc_b64.*// ([0-9A-F]+):", dis)
    if m:
        pc = int(m.group(1), 16) + 4
        last = [int(x,16) for x in re.findall(r"// ([0-9A-F]+):", dis)][-1]
        out = out.replace("CODEOFF", hex(pc & ~0xff)).replace("CODEKB", str(max(0, (last - 1024)//1024)))
    open(sys.argv[1], "w").write(out)
```
